```python
import torch

def _softmax(x, axis=-1):
    return torch.softmax(x, dim=axis)
def _gelu(x):
    return torch.nn.functional.gelu(x, approximate="tanh")
def _silu(x):
    return torch.nn.functional.silu(x)
def _sigmoid(x):
    return torch.sigmoid(x)
def _layernorm(x, axis=-1, eps=1e-5):
    m = x.mean(dim=axis, keepdim=True)
    v = x.var(dim=axis, keepdim=True, unbiased=False)
    return (x - m) / torch.sqrt(v + eps)
def _scatter_add(tgt, idx, src, axis=0):
    return tgt.clone().index_add_(axis, idx, src)
def _segment_sum(src, seg, n):
    out = torch.zeros((n,) + src.shape[1:], dtype=src.dtype)
    return out.index_add_(0, seg, src)
def _pad(x, pw):
    flat = tuple(v for pair in reversed(pw) for v in pair)
    return torch.nn.functional.pad(x, flat)

kernel_name = 'gated_mix__spectral_fnet__sliding_local_dilated__prompt'

def setup_inputs():

    _w = (lambda a: (lambda t: t.to(torch.bfloat16) if t.is_floating_point() else t)(torch.as_tensor(a)))
    def _A_setup():
        B, S, D = 1, 2048, 640
        ns = torch.arange(S)[:, None] * torch.arange(S)[None, :]
        nd = torch.arange(D)[:, None] * torch.arange(D)[None, :]
        Ws_re = torch.cos(-2.0 * torch.pi * ns / S).to(float)
        Ws_im = torch.sin(-2.0 * torch.pi * ns / S).to(float)
        Wd_re = torch.cos(-2.0 * torch.pi * nd / D).to(float)
        Wd_im = torch.sin(-2.0 * torch.pi * nd / D).to(float)
        return {
            "x": _w((lambda *s: torch.randn(*s, dtype=torch.bfloat16) * 0.05)(B, S, D)),
            "dft_seq_re": _w(Ws_re),
            "dft_seq_im": _w(Ws_im),
            "dft_hid_re": _w(Wd_re),
            "dft_hid_im": _w(Wd_im),
        }
    _A_in = _A_setup()

    def _B_setup():
        B, S, D = 1, 2048, 640
        return {
            "x": _w((lambda *s: torch.randn(*s, dtype=torch.bfloat16) * 0.05)(B, S, D)),
            "wqkv": _w((lambda *s: torch.randn(*s, dtype=torch.bfloat16) * 1.6)(D, 3 * D)),
            "wo": _w((lambda *s: torch.randn(*s, dtype=torch.bfloat16) * 0.2)(D, D)),
        }
    _B_in = _B_setup()

    return {
        "A_x": _A_in["x"],
        "A_dft_seq_re": _A_in["dft_seq_re"],
        "A_dft_seq_im": _A_in["dft_seq_im"],
        "A_dft_hid_re": _A_in["dft_hid_re"],
        "A_dft_hid_im": _A_in["dft_hid_im"],
        "B_x": _B_in["x"],
        "B_wqkv": _B_in["wqkv"],
        "B_wo": _B_in["wo"],
        "gate_w": _w((lambda *s: torch.randn(*s, dtype=torch.bfloat16) * 0.05)(640) * 16.0),
    }

def reference(A_x, A_dft_seq_re, A_dft_seq_im, A_dft_hid_re, A_dft_hid_im, B_x, B_wqkv, B_wo, gate_w):
    def _A_ref(x, dft_seq_re, dft_seq_im, dft_hid_re, dft_hid_im):
        a = torch.einsum("bsd,ed->bse", x, dft_hid_re)
        b = torch.einsum("bsd,ed->bse", x, dft_hid_im)
        y = torch.einsum("ts,bse->bte", dft_seq_re, a) - torch.einsum("ts,bse->bte", dft_seq_im, b)
        return y

    def _B_ref(x, wqkv, wo):
        B, S, D = x.shape
        H = 32; Dh = D // H
        W, dil = 8, 2
        qkv = (lambda x, *d: x.permute(*d))((x @ wqkv).reshape(B, S, 3, H, Dh), 2, 0, 3, 1, 4)
        q, k, v = qkv[0], qkv[1], qkv[2]
        scale = Dh ** -0.5
        pos = torch.arange(S)
        off = torch.arange(W) * dil
        idx = pos[:, None] - off[None, :]
        mask = idx >= 0
        idx_c = torch.where(mask, idx, 0).reshape(-1)
        kg = k[:, :, idx_c, :].reshape(B, H, S, W, Dh)
        vg = v[:, :, idx_c, :].reshape(B, H, S, W, Dh)
        logits = torch.einsum("bhsd,bhswd->bhsw", q, kg) * scale
        logits = torch.where(mask[None, None, :, :], logits, -1e9)
        attn = _softmax(logits, axis=-1)
        o = torch.einsum("bhsw,bhswd->bhsd", attn, vg)
        return (lambda x, *d: x.permute(*d))(o, 0, 2, 1, 3).reshape(B, S, D) @ wo

    x = A_x
    g = _sigmoid((x * gate_w).sum(-1, keepdims=True))
    a = _A_ref(x, A_dft_seq_re, A_dft_seq_im, A_dft_hid_re, A_dft_hid_im)
    b = _B_ref(x, B_wqkv, B_wo)
    return g * a + (1 - g) * b
```

```python
import re

TRANS = ('v_exp_f32', 'v_log_f32', 'v_rcp_f32', 'v_rsq_f32', 'v_sqrt_f32', 'v_sin_f32', 'v_cos_f32')


def _regs(tok):
    tok = tok.strip()
    tok = tok.lstrip('-')
    m = re.fullmatch(r'abs\((.*)\)', tok) or re.fullmatch(r'\|(.*)\|', tok)
    if m:
        tok = m.group(1)
    m = re.fullmatch(r'([vsa])(\d+)', tok)
    if m:
        return {m.group(1) + m.group(2)}
    m = re.fullmatch(r'([vsa])\[(\d+):(\d+)\]', tok)
    if m:
        return {m.group(1) + str(i) for i in range(int(m.group(2)), int(m.group(3)) + 1)}
    if tok in ('vcc', 'vcc_lo', 'vcc_hi'):
        return {'vcc'}
    if tok in ('exec', 'exec_lo', 'exec_hi'):
        return {'exec'}
    if tok == 'm0':
        return {'m0'}
    return set()


class Ins:
    def __init__(self, text):
        self.text = text
        t = text.split(';')[0].strip()
        self.label = t.endswith(':')
        self.directive = t.startswith('.')
        self.op = ''
        self.w = set()
        self.r = set()
        self.kind = 'other'
        self.states = 1
        if self.label or self.directive or not t:
            self.states = 0
            return
        parts = t.split(None, 1)
        op = parts[0]
        self.op = op
        rest = parts[1] if len(parts) > 1 else ''
        ops = [o.strip() for o in re.split(r',\s*(?![^\[]*\])', rest)] if rest else []
        mods = ''
        if ops:
            last = ops[-1].split(None, 1)
            ops[-1] = last[0]
            mods = last[1] if len(last) > 1 else ''
        self.ops = ops
        self.mods = mods
        R = [_regs(o) for o in ops]
        base = re.sub(r'_(e32|e64|dpp|sdwa)$', '', op)
        self.base = base
        if op == 's_nop':
            self.states = int(ops[0], 0) + 1
            self.kind = 'nop'
        elif op.startswith('v_mfma'):
            self.kind = 'mfma'
            self.passes = 8 if '32x32' in op else 4
            self.w = R[0]
            self.ab = R[1] | R[2]
            self.c = R[3]
            self.r = self.ab | self.c
        elif op.startswith('v_'):
            self.kind = 'valu'
            self.trans = base in TRANS
            self.dpp = op.endswith('_dpp')
            self.perm = op.startswith('v_permlane')
            self.rdlane = base in ('v_readfirstlane_b32', 'v_readlane_b32')
            if self.perm:
                self.w = R[0] | R[1]
                self.r = R[0] | R[1]
            elif base in ('v_add_co_u32', 'v_sub_co_u32', 'v_addc_co_u32', 'v_subrev_co_u32'):
                self.w = R[0] | R[1]
                self.r = set().union(*R[2:])
            else:
                self.w = R[0]
                self.r = set().union(*R[1:]) if len(R) > 1 else set()
                if base in ('v_fmac_f32', 'v_dot2c_f32_bf16') or self.dpp:
                    self.r |= R[0]
                if base.startswith('v_cmpx'):
                    self.w |= {'exec'}
        elif op.startswith('ds_'):
            self.kind = 'ds'
            if 'read' in op or 'permute' in op or 'swizzle' in op:
                self.w = R[0]
                self.r = set().union(*R[1:])
            else:
                self.r = set().union(*R)
        elif op.startswith('buffer_') or op.startswith('global_'):
            self.kind = 'vmem'
            self.lds = bool(re.search(r'\blds\b', mods)) or '_lds_' in op
            self.wide_store = False
            if 'load' in op and not self.lds:
                self.w = R[0]
                self.r = set().union(*R[1:])
            else:
                self.r = set().union(*R) if R else set()
                if self.lds:
                    self.r |= {'m0'}
                if 'store' in op and ('x4' in op or 'x3' in op):
                    self.wide_store = True
                    self.data = R[0] if op.startswith('buffer_') else R[1]
        elif op.startswith('s_'):
            self.kind = 'salu'
            nodst = ('s_cmp', 's_cbranch', 's_branch', 's_waitcnt', 's_barrier', 's_endpgm', 's_setprio', 's_sleep',
                     's_bitcmp')
            if op.startswith(nodst):
                self.r = set().union(*R) if R else set()
            else:
                self.w = R[0] if R else set()
                self.r = set().union(*R[1:]) if len(R) > 1 else set()
                if 'saveexec' in op:
                    self.w |= {'exec'}


def need(p, c):
    n = 0
    isv = lambda s: {x for x in s if x[0] in 'va' and x != 'vcc'}
    iss = lambda s: {x for x in s if (x[0] == 's') or x == 'vcc'}
    if p.kind == 'valu':
        pw = isv(p.w)
        if c.kind == 'mfma' and pw & c.r:
            n = max(n, 2)
        if c.kind == 'valu':
            if p.trans and not c.trans and pw & c.r:
                n = max(n, 1)
            if (c.perm or c.dpp) and pw & c.r:
                n = max(n, 2)
            if c.rdlane and pw & c.r:
                n = max(n, 1)
            if iss(p.w) & c.r:
                n = max(n, 4 if c.rdlane else 2)
            if 'exec' in p.w:
                n = max(n, 5)
        if c.kind == 'vmem' and iss(p.w) & c.r:
            n = max(n, 5)
        if c.kind == 'salu' and iss(p.w) & c.r:
            n = max(n, 2)
        if c.kind == 'mfma' and 'exec' in p.w:
            n = max(n, 4)
    elif p.kind == 'mfma':
        big = p.passes == 8
        if c.kind == 'mfma':
            if p.w & c.ab:
                n = max(n, 12 if big else 8)
            if p.w & c.c and not (p.w == c.c and p.passes == c.passes):
                n = max(n, 10 if big else 6)
        elif c.kind == 'valu':
            if p.w & (c.r | c.w):
                n = max(n, 12 if big else 8)
            if p.c & c.w:
                n = max(n, 7 if big else 3)
        elif c.kind in ('vmem', 'ds'):
            if p.w & (c.r | c.w):
                n = max(n, 12 if big else 8)
    elif p.kind == 'salu':
        if 'm0' in p.w and c.kind == 'vmem' and c.lds:
            n = max(n, 1)
    elif p.kind == 'vmem':
        if p.wide_store and p.data & c.w:
            n = max(n, 2 if c.kind == 'valu' else 1)
    return n


class Asm:
    def __init__(self):
        self.L = []
        self.nnop = 0

    def __call__(self, text):
        for line in text.split('\n'):
            line = line.strip()
            if line:
                self.raw(line)

    def raw(self, line):
        c = Ins(line)
        if c.states:
            dist = 0
            pad = 0
            for p in reversed(self.L):
                if dist >= 20:
                    break
                if p.states:
                    nd = need(p, c)
                    if nd > dist:
                        pad = max(pad, nd - dist)
                    dist += p.states
                if p.op in ('s_branch', 's_endpgm', 's_setpc_b64'):
                    break
            while pad > 0:
                k = min(pad, 16)
                self.L.append(Ins(f's_nop {k - 1}'))
                self.nnop += k
                pad -= k
        self.L.append(c)

    def label(self, name):
        self.L.append(Ins(name + ':'))

    def check_backedge(self, label):
        idx = [i for i, x in enumerate(self.L) if x.label and x.text.split(':')[0].strip() == label][0]
        head = [x for x in self.L[idx:] if x.states][:24]
        tail = [x for x in self.L[-40:] if x.states]
        for ci, c in enumerate(head):
            dist = sum(x.states for x in head[:ci])
            for p in reversed(tail):
                nd = need(p, c)
                assert nd <= dist, f'back-edge hazard {p.text} -> {c.text} need {nd} have {dist}'
                dist += p.states
                if dist >= 20:
                    break

    def text(self):
        out = []
        for x in self.L:
            out.append(x.text if (x.label or x.directive) else '    ' + x.text)
        return '\n'.join(out) + '\n'


class RA:
    def __init__(self, start, limit):
        self.n = start
        self.limit = limit
        self.hi = start

    def get(self, k=1, align=None):
        align = align or (2 if k > 1 else 1)
        self.n = (self.n + align - 1) // align * align
        r = self.n
        self.n += k
        assert self.n <= self.limit, f'out of registers {self.n} > {self.limit}'
        self.hi = max(self.hi, self.n)
        return r


def v(r, n=1):
    return f'v{r}' if n == 1 else f'v[{r}:{r + n - 1}]'


def s(r, n=1):
    return f's{r}' if n == 1 else f's[{r}:{r + n - 1}]'


def interleave(main, fill, start=0, per=1):
    out = []
    fi = 0
    for i, m in enumerate(main):
        out.append(m)
        if i >= start:
            for _ in range(per):
                if fi < len(fill):
                    out.append(fill[fi])
                    fi += 1
    out += fill[fi:]
    return out
```

```python
import sys, struct, math
from asmlib import *

NAME = 'gated_mix__spectral_fnet__sliding_local_dilated__prompt'
NB = 6
for arg in sys.argv[2:]:
    k_, v_ = arg.split('=')
    globals()[k_] = int(v_)
U = 16 * NB - 7
NRT = {5: 7, 6: 6, 7: 5}[NB]
ABYTES = 2 * 16 * NB * 128
STG = ABYTES + 15360
NS = 4 if NB <= 6 else 3
O_OFF = 0
Z_OFF = 2621440
G_OFF = Z_OFF + 3145728
WS_SIZE = G_OFF + 8192
OOB = 0x80000000


def f2u(x):
    return struct.unpack('<I', struct.pack('<f', x))[0]


def hx(x):
    return hex(x & 0xffffffff)


a = Asm()

S_X, S_WDR, S_WDI, S_WQKV, S_WO = 16, 22, 24, 28, 30
S_GW, S_OUT, S_DBG, S_WS = 32, 34, 36, 38
SRD_X, SRD_B, SRD_C, SRD_WS, SRD_G = 40, 44, 48, 52, 56


def srd(d, ptr, size):
    a(f's_mov_b32 s{d}, s{ptr}')
    a(f's_mov_b32 s{d+1}, s{ptr+1}')
    a(f's_mov_b32 s{d+2}, {hx(size)}')
    a(f's_mov_b32 s{d+3}, 0x20000')


def kernel_head(name):
    a(f'.globl {name}')
    a('.p2align 8')
    a(f'.type {name},@function')
    a.label(name)
    a('s_load_dwordx16 s[16:31], s[0:1], 0')
    a('s_load_dwordx8 s[32:39], s[0:1], 64')
    a('v_lshrrev_b32 v1, 6, v0')
    a('v_and_b32 v0, 63, v0')
    a('v_readfirstlane_b32 s3, v1')
    a('s_cmp_ge_u32 s2, 256')
    a(f's_cbranch_scc1 {name}_end')


def gate_addr(vb):
    a(f'v_lshrrev_b32 v{vb+2}, 3, v0')
    a(f'v_and_b32 v{vb+1}, 7, v0')
    a(f'v_lshlrev_b32 v{vb+1}, 4, v{vb+1}')
    a(f'v_mul_u32_u24 v{vb}, 1280, v{vb+2}')
    a(f'v_add_u32 v{vb}, v{vb}, v{vb+1}')
    a('s_and_b32 s60, s2, 3')
    a('s_lshl_b32 s60, s60, 11')
    a('s_lshr_b32 s61, s2, 2')
    a('s_lshl_b32 s61, s61, 2')
    a('s_add_u32 s60, s60, s61')
    a(f's_add_u32 s60, s60, {G_OFF}')
    a(f'v_lshlrev_b32 v{vb+2}, 8, v{vb+2}')
    a(f'v_add_u32 v{vb+2}, s60, v{vb+2}')
    a(f'v_mov_b32 v{vb+3}, {hx(OOB)}')
    a(f'v_cmp_eq_u32 vcc, 0, v{vb+1}')
    a(f'v_cndmask_b32 v{vb+2}, v{vb+3}, v{vb+2}, vcc')
    a('s_mul_i32 s61, s2, 10240')


def gate_loads(vb, vd):
    srd(SRD_G, S_GW, 1280)
    for i in range(10):
        a(f'buffer_load_dwordx4 {v(vd+8*i,4)}, v{vb}, {s(SRD_X,4)}, s61 offen offset:{128*i}')
        a(f'buffer_load_dwordx4 {v(vd+8*i+4,4)}, v{vb+1}, {s(SRD_G,4)}, 0 offen offset:{128*i}')


def gate_compute(vb, vd):
    acc = vb + 4
    for q in range(4):
        a(f'v_mov_b32 v{acc+q}, 0')
    for i in range(10):
        for q in range(4):
            a(f'v_dot2c_f32_bf16 v{acc+q}, v{vd+8*i+q}, v{vd+8*i+4+q}')
    a('s_nop 3')
    a(f'v_add_f32 v{acc}, v{acc}, v{acc+1}')
    a(f'v_add_f32 v{acc+2}, v{acc+2}, v{acc+3}')
    a(f'v_add_f32 v{acc}, v{acc}, v{acc+2}')
    a(f'v_add_f32_dpp v{acc}, v{acc}, v{acc} quad_perm:[1,0,3,2] row_mask:0xf bank_mask:0xf')
    a(f'v_add_f32_dpp v{acc}, v{acc}, v{acc} quad_perm:[2,3,0,1] row_mask:0xf bank_mask:0xf')
    a(f'v_add_f32_dpp v{acc}, v{acc}, v{acc} row_half_mirror row_mask:0xf bank_mask:0xf')
    a(f'v_mul_f32 v{acc}, {hx(f2u(-math.log2(math.e)))}, v{acc}')
    a(f'v_exp_f32 v{acc}, v{acc}')
    a(f'v_add_f32 v{acc}, 1.0, v{acc}')
    a(f'v_rcp_f32 v{acc}, v{acc}')
    a('s_nop 0')
    a(f'buffer_store_dword v{acc}, v{vb+2}, {s(SRD_WS,4)}, 0 offen')


K1 = 'k1_kernel'
kernel_head(K1)
a('s_and_b32 s4, s2, 1')
a('s_bfe_u32 s5, s2, 0x20001')
a('s_lshr_b32 s6, s2, 3')
a('s_cmp_lt_u32 s6, 4')
a('s_cbranch_scc1 L_dft')
if 4 + 4 * NRT < 32:
    a(f's_cmp_ge_u32 s6, {4+4*NRT}')
    a('s_cbranch_scc1 L_idle')
a('s_sub_u32 s6, s6, 4')
a('s_lshr_b32 s7, s6, 2')
a('s_and_b32 s6, s6, 3')
a('s_lshl_b32 s8, s5, 2')
a('s_add_u32 s8, s8, s6')
a('s_cmp_ge_u32 s3, 4')
a('s_cbranch_scc1 L_qc')

vA = 2
vB = 4
vT = 8
a(f'v_lshrrev_b32 v{vT}, 3, v0')
a(f'v_mul_u32_u24 v{vT}, 2560, v{vT}')
a(f'v_lshrrev_b32 v{vT+1}, 4, v0')
a(f'v_xor_b32 v{vT+1}, v{vT+1}, v0')
a(f'v_and_b32 v{vT+1}, 7, v{vT+1}')
a(f'v_lshl_add_u32 v{vA}, v{vT+1}, 4, v{vT}')
if NB & 1:
    a('s_and_b32 s9, s3, 1')
    a('s_lshl_b32 s9, s9, 6')
    a(f'v_xor_b32 v{vA}, s9, v{vA}')
a(f'v_xor_b32 v{vA+1}, 64, v{vA}')
a('s_lshl_b32 s9, s3, 6')
a(f'v_add_u32 v{vT}, s9, v0')
for i in range(4):
    if i:
        a(f'v_add_u32 v{vT}, 256, v{vT}')
    a(f'v_mul_u32_u24 v{vT+1}, 4370, v{vT}')
    a(f'v_lshrrev_b32 v{vT+1}, 16, v{vT+1}')
    a(f'v_mul_u32_u24 v{vT+2}, 15, v{vT+1}')
    a(f'v_sub_u32 v{vT+2}, v{vT}, v{vT+2}')
    a(f'v_and_b32 v{vT+3}, 1, v{vT+1}')
    a(f'v_bfe_u32 v{vT+4}, v{vT+1}, 1, 2')
    a(f'v_lshl_or_b32 v{vT+3}, v{vT+3}, 2, v{vT+4}')
    a(f'v_and_or_b32 v{vT+3}, v{vT+1}, -8, v{vT+3}')
    a(f'v_mul_u32_u24 v{vT+3}, 3840, v{vT+3}')
    a(f'v_mul_u32_u24 v{vT+4}, 13, v{vT+2}')
    a(f'v_lshrrev_b32 v{vT+4}, 6, v{vT+4}')
    a(f'v_mul_u32_u24 v{vT+4}, 1200, v{vT+4}')
    a(f'v_lshl_add_u32 v{vT+3}, v{vT+2}, 4, v{vT+3}')
    a(f'v_add_u32 v{vB+i}, v{vT+3}, v{vT+4}')
JMAX = 1024 - 16 * NB
a('s_lshr_b32 s9, s3, 1')
a('s_lshl_b32 s10, s7, 1')
a('s_add_u32 s10, s10, s9')
a(f's_mul_i32 s10, s10, {U}')
a(f's_min_u32 s10, s10, {JMAX}')
a('s_and_b32 s9, s3, 1')
a(f's_mul_i32 s9, s9, {8*NB}')
a('s_add_u32 s10, s10, s9')
a('s_lshl_b32 s10, s10, 1')
a('s_add_u32 s10, s10, s4')
a('s_mul_i32 s10, s10, 1280')
a('s_mul_i32 s11, s8, 80')
a('s_mul_i32 s12, s6, 5')
a('s_lshr_b32 s12, s12, 1')
a('s_mul_i32 s13, s7, 3')
a('s_add_u32 s12, s12, s13')
a('s_cmp_ge_u32 s12, 20')
a('s_cselect_b32 s13, 20, 0')
a('s_sub_u32 s12, s12, s13')
a('s_cmp_ge_u32 s12, 10')
a('s_cselect_b32 s13, 10, 0')
a('s_sub_u32 s12, s12, s13')
a(f's_mul_i32 s14, s3, {NB*1024}')
a('s_lshl_b32 s15, s3, 10')
a(f's_add_u32 s15, s15, {ABYTES}')
a('s_mov_b32 s62, 0')
a('s_mov_b32 s63, 0')
a('s_waitcnt lgkmcnt(0)')
srd(SRD_X, S_X, 2621440)
srd(SRD_B, S_WQKV, 2457600)
a('s_cmp_eq_u32 s3, 3')
a('s_cbranch_scc1 L_ql3')

vSt = 16
vG = 24
vGD = 32
vOD = 112


def o_store_addr():
    a('s_lshl_b32 s64, s7, 1')
    a(f's_mul_i32 s64, s64, {U}')
    a(f's_min_u32 s65, s64, {JMAX}')
    a(f's_add_u32 s66, s64, {U}')
    a(f's_min_u32 s67, s66, {JMAX}')
    a(f's_sub_u32 s67, s67, {16*NB}')
    a('s_add_u32 s66, s66, 7')
    a(f's_add_u32 s68, s66, {U}')
    a('s_min_u32 s68, s68, 1024')
    a('s_cmp_eq_u32 s7, 0')
    a('s_cselect_b32 s69, 0, 7')
    a('s_add_u32 s64, s64, s69')
    a('s_lshr_b32 s69, s64, 4')
    t2, aa, j, t = vSt + 2, vSt + 3, vSt + 4, vSt + 5
    a(f'v_and_b32 v{t2}, 15, v0')
    a(f'v_add_u32 v{t2}, s69, v{t2}')
    a(f'v_lshrrev_b32 v{aa}, 4, v0')
    a('s_lshl_b32 s69, s3, 2')
    a(f'v_add_u32 v{aa}, s69, v{aa}')
    a(f'v_lshl_add_u32 v{j}, v{t2}, 4, v{aa}')
    a(f'v_mov_b32 v{t}, s65')
    a(f'v_mov_b32 v{t+1}, s67')
    a(f'v_cmp_le_u32 vcc, s66, v{j}')
    a(f'v_cndmask_b32 v{t}, v{t}, v{t+1}, vcc')
    a(f'v_sub_u32 v{t}, v{j}, v{t}')
    a(f'v_min_u32 v{t}, {32*NB-1}, v{t}')
    a(f'v_mul_u32_u24 v{vSt}, 80, v{t}')
    a(f'v_and_b32 v{t}, -16, v{t}')
    a(f'v_add_u32 v{vSt}, v{vSt}, v{t}')
    a(f'v_lshrrev_b32 v{t}, 4, v{t2}')
    a(f'v_lshl_add_u32 v{t}, v{aa}, 3, v{t}')
    a(f'v_mul_u32_u24 v{t}, 20480, v{t}')
    a(f'v_and_b32 v{t2}, 15, v{t2}')
    a(f'v_lshl_add_u32 v{t}, v{t2}, 4, v{t}')
    a('s_mul_i32 s69, s4, 81920')
    a('s_mul_i32 s70, s8, 1280')
    a('s_add_u32 s69, s69, s70')
    a(f'v_add_u32 v{t}, s69, v{t}')
    a(f'v_mov_b32 v{t+1}, {hx(OOB)}')
    a(f'v_cmp_le_u32 vcc, s64, v{j}')
    a(f'v_cndmask_b32 v{t}, v{t+1}, v{t}, vcc')
    a(f'v_cmp_gt_u32 vcc, s68, v{j}')
    a(f'v_cndmask_b32 v{vSt+1}, v{t+1}, v{t}, vcc')


def q_loader(tag, nb, gate):
    n = NB + nb
    a.label(f'L_{tag}')
    a('s_lshl_b32 s64, s12, 7')
    a('s_add_u32 s64, s64, s10')
    a('s_mul_i32 s65, s12, 245760')
    a('s_add_u32 s65, s65, s11')
    a('s_add_u32 m0, s62, s14')
    for i in range(NB):
        if i:
            a('s_add_u32 m0, m0, 1024')
            a('s_add_u32 s64, s64, 20480')
        a(f'buffer_load_dwordx4 v{vA+(i&1)}, {s(SRD_X,4)}, s64 offen lds')
    for i in range(nb):
        a('s_add_u32 m0, s62, s15' if i == 0 else 's_add_u32 m0, m0, 4096')
        a(f'buffer_load_dwordx4 v{vB+i}, {s(SRD_B,4)}, s65 offen lds')
    a('s_add_u32 s12, s12, 1')
    a('s_cmp_eq_u32 s12, 10')
    a('s_cselect_b32 s12, 0, s12')
    a(f's_add_u32 s62, s62, {STG}')
    a(f's_cmp_eq_u32 s62, {NS*STG}')
    a('s_cselect_b32 s62, 0, s62')
    a('s_add_u32 s63, s63, 1')
    a(f's_cmp_lt_u32 s63, {NS}')
    a(f's_cbranch_scc1 L_{tag}')
    a('s_cmp_eq_u32 s63, 10')
    a(f's_cbranch_scc1 L_{tag}_tail')
    a(f's_cmp_lg_u32 s63, {NS}')
    a(f's_cbranch_scc1 L_{tag}_w')
    a(f's_waitcnt vmcnt({(NS-1)*n})')
    a('s_barrier')
    a.label(f'L_{tag}_w')
    a(f's_waitcnt vmcnt({(NS-2)*n})')
    a('s_barrier')
    a(f's_branch L_{tag}')
    a.label(f'L_{tag}_tail')
    ex = 0
    srd(SRD_WS, S_WS, WS_SIZE)
    if gate:
        gate_addr(vG)
        gate_loads(vG, vGD)
        ex = 20
    for k in range(NS - 2, -1, -1):
        a(f's_waitcnt vmcnt({k*n+ex})')
        a('s_barrier')
    o_store_addr()
    a('s_barrier')
    if gate:
        a('s_waitcnt vmcnt(0)')
        gate_compute(vG, vGD)
    a('s_barrier')
    for g in range(5):
        a(f'ds_read_b128 {v(vOD+4*g,4)}, v{vSt} offset:{16*g}')
    for g in range(5):
        a(f's_waitcnt lgkmcnt({4-g})')
        a(f'buffer_store_dwordx4 {v(vOD+4*g,4)}, v{vSt+1}, {s(SRD_WS,4)}, 0 offen offset:{256*g}')
    a('s_endpgm')


q_loader('ql0', 4, False)
q_loader('ql3', 3, True)

a.label('L_qc')
a('s_setprio 2')
ra = RA(2, 256)
vXb = ra.get(2); vWb = ra.get(2)
vXc = ra.get(2); vWc = ra.get(2)
tmp = ra.get(6)
biasC = ra.get(4); biasP = ra.get(4); mCur = ra.get(2); mG0 = ra.get(1); vOm = ra.get(1); vOr = ra.get(1)
Ec = ra.get(4); ones = ra.get(4)
accQ = [ra.get(4) for b in range(NB)]
accK = [ra.get(4) for b in range(NB)]
accV = [ra.get(4) for b in range(NB)]
accR = [ra.get(4) for b in range(NB)]
fX = [[ra.get(4) for b in range(NB)] for k in range(2)]
fW = [[ra.get(4) for t in range(4)] for k in range(2)]
Vp = ra.get(2 * NB + 2); VRp = ra.get(2 * NB + 2)
m_, g_ = tmp, tmp + 1
a('s_sub_u32 s9, s3, 4')
a('s_lshr_b32 s10, s9, 1')
a('s_and_b32 s11, s9, 1')
a(f'v_and_b32 v{m_}, 15, v0')
a(f'v_lshrrev_b32 v{g_}, 4, v0')
a(f'v_lshrrev_b32 v{tmp+2}, 1, v{m_}')
a(f'v_xor_b32 v{tmp+2}, v{tmp+2}, v{g_}')
a(f'v_lshlrev_b32 v{tmp+2}, 4, v{tmp+2}')
a(f'v_lshl_add_u32 v{tmp+2}, v{m_}, 7, v{tmp+2}')
a(f's_mul_i32 s12, s10, {16*NB*128}')
a(f'v_add_u32 v{vXb}, s12, v{tmp+2}')
a(f'v_xor_b32 v{vXb+1}, 64, v{vXb}')
a(f'v_lshrrev_b32 v{tmp+2}, 2, v0')
a(f'v_mul_u32_u24 v{tmp+2}, 480, v{tmp+2}')
a('s_mul_i32 s12, s11, 40')
a(f's_add_u32 s13, s12, {ABYTES}')
a(f'v_add_u32 v{tmp+2}, s13, v{tmp+2}')
a(f'v_and_b32 v{tmp+3}, 3, v0')
a(f'v_lshl_add_u32 v{vWb}, v{tmp+3}, 3, v{tmp+2}')
a(f'v_min_u32 v{tmp+3}, 2, v{tmp+3}')
a(f'v_mul_u32_u24 v{tmp+3}, 80, v{tmp+3}')
a(f'v_add3_u32 v{vWb+1}, v{tmp+2}, v{tmp+3}, 32')
for r_ in range(accQ[0], accR[-1] + 4):
    a(f'v_mov_b32 v{r_}, 0')
NEG = hx(f2u(-1e30))
a(f'v_lshlrev_b32 v{tmp+2}, 2, v{g_}')
a(f'v_sub_u32 v{tmp+2}, v{m_}, v{tmp+2}')
a(f'v_mov_b32 v{tmp+4}, {NEG}')
for r_ in range(4):
    a(f'v_subrev_u32 v{tmp+3}, {r_}, v{tmp+2}')
    a(f'v_cmp_gt_u32 vcc, 8, v{tmp+3}')
    a(f'v_cndmask_b32 v{biasC+r_}, v{tmp+4}, 0, vcc' if False else f'v_cndmask_b32_e64 v{biasC+r_}, v{tmp+4}, 0, vcc')
    a(f'v_add_u32 v{tmp+3}, {16-r_}, v{tmp+2}')
    a(f'v_cmp_gt_u32 vcc, 8, v{tmp+3}')
    a(f'v_cndmask_b32_e64 v{biasP+r_}, v{tmp+4}, 0, vcc')
a(f'v_mov_b32 v{tmp+4}, 0xffff')
a(f'v_mov_b32 v{tmp+5}, 0xffff0000')
for d in range(2):
    a(f'v_cmp_le_i32 vcc, {2*d}, v{tmp+2}')
    a(f'v_cndmask_b32 v{mCur+d}, 0, v{tmp+4}, vcc')
    a(f'v_cmp_le_i32 vcc, {2*d+1}, v{tmp+2}')
    a(f'v_cndmask_b32 v{tmp+3}, 0, v{tmp+5}, vcc')
    a(f'v_or_b32 v{mCur+d}, v{mCur+d}, v{tmp+3}')
a(f'v_cmp_gt_u32 vcc, 16, v0')
a(f'v_cndmask_b32_e64 v{mG0}, 0, -1, vcc')
a(f'v_mul_u32_u24 v{tmp+2}, 80, v{m_}')
a(f's_mul_i32 s13, s10, {NB*1296}')
a('s_add_u32 s13, s13, s12')
a(f'v_add_u32 v{tmp+2}, s13, v{tmp+2}')
a(f'v_lshl_add_u32 v{vOm}, v{g_}, 3, v{tmp+2}')
a(f'v_add_u32 v{tmp+2}, 32, v{tmp+2}')
a(f'v_lshlrev_b32 v{tmp+3}, 3, v0')
a(f'v_add_u32 v{tmp+3}, 32768, v{tmp+3}')
a(f'v_cndmask_b32 v{vOr}, v{tmp+3}, v{tmp+2}, vcc')
a(f'v_mov_b32 v{Ec}, 0')
a(f'v_mov_b32 v{Ec+1}, 0')
a(f'v_mov_b32 v{tmp+4}, 0x3f80')
a(f'v_mov_b32 v{tmp+5}, 0x3f800000')
for d in range(2):
    a(f'v_cmp_eq_u32 vcc, {32+2*d}, v0')
    a(f'v_cndmask_b32 v{Ec+2+d}, 0, v{tmp+4}, vcc')
    a(f'v_cmp_eq_u32 vcc, {33+2*d}, v0')
    a(f'v_cndmask_b32 v{Ec+2+d}, v{Ec+2+d}, v{tmp+5}, vcc')
for r_ in range(4):
    a(f'v_mov_b32 v{ones+r_}, 0x3f803f80')
for r_ in (Vp, Vp + 1, VRp, VRp + 1):
    a(f'v_mov_b32 v{r_}, 0')
for i in range(2):
    a(f'v_mov_b32 v{vXc+i}, v{vXb+i}')
    a(f'v_mov_b32 v{vWc+i}, v{vWb+i}')


def q_reads(kk):
    L = []
    W = []
    for t in range(4):
        for bs in range(2):
            ad, off = (vWc, kk * 7680 + t * 80 + bs * 240) if t < 3 else (vWc + 1, kk * 7680 + bs * 240)
            W.append(f'ds_read_b64_tr_b16 {v(fW[kk][t]+2*bs,2)}, v{ad} offset:{off}')
    X = [f'ds_read_b128 {v(fX[kk][b],4)}, v{vXc+kk} offset:{2048*b}' for b in range(NB)]
    return W + X


def q_mfmas(kk):
    L = []
    for b in range(NB):
        x = v(fX[kk][b], 4)
        for t, acc in ((0, accQ), (1, accK), (2, accV), (3, accR)):
            w = v(fW[kk][t], 4)
            d = v(acc[b], 4)
            if t == 2:
                L.append(f'v_mfma_f32_16x16x32_bf16 {d}, {x}, {w}, {d}')
            else:
                L.append(f'v_mfma_f32_16x16x32_bf16 {d}, {w}, {x}, {d}')
    return L


a('s_mov_b32 s14, 0')
a('s_mov_b32 s15, 10')
a('s_waitcnt lgkmcnt(0)')
a('s_barrier')
for x in q_reads(0):
    a(x)
a('.p2align 3')
a.label('L_qc_loop')
a('s_waitcnt lgkmcnt(0)')
a(f's_add_u32 s14, s14, {STG}')
a(f's_cmp_eq_u32 s14, {NS*STG}')
a('s_cselect_b32 s14, 0, s14')
for x in interleave(q_mfmas(0), q_reads(1)):
    a(x)
for i in range(2):
    a(f'v_add_u32 v{vXc+i}, s14, v{vXb+i}')
    a(f'v_add_u32 v{vWc+i}, s14, v{vWb+i}')
a('s_waitcnt lgkmcnt(0)')
a('s_barrier')
for x in interleave(q_mfmas(1), q_reads(0)):
    a(x)
a('s_sub_u32 s15, s15, 1')
a('s_cmp_lg_u32 s15, 0')
a('s_cbranch_scc1 L_qc_loop')
a.check_backedge('L_qc_loop')
a('s_waitcnt lgkmcnt(0)')
B = range(NB)
cvt = 'v_cvt_pk_bf16_f32'
mf = 'v_mfma_f32_16x16x32_bf16'
for b in B:
    q, k, r = accQ[b], accK[b], accR[b]
    a(f'{cvt} v{q}, v{q}, v{q+1}')
    a(f'{cvt} v{q+1}, v{q+2}, v{q+3}')
    a(f'{cvt} v{k}, v{k}, v{k+1}')
    a(f'{cvt} v{k+1}, v{k+2}, v{k+3}')
    a(f'{cvt} v{k+2}, v{r}, v{r+1}')
    a(f'{cvt} v{k+3}, v{r+2}, v{r+3}')
    a(f'v_and_b32 v{q+2}, v{mG0}, v{k+2}')
    a(f'v_and_b32 v{q+3}, v{mG0}, v{k+3}')
for b in B:
    q = accQ[b]
    a(f'v_permlane16_swap_b32 v{q+2}, v{q+2}')
    a(f'v_permlane16_swap_b32 v{q+3}, v{q+3}')
SC = fX[0]; SP = fX[1]
for b in B:
    a(f'{mf} {v(SC[b],4)}, {v(accK[b],4)}, {v(accQ[b],4)}, {v(biasC,4)}')
    if b:
        a(f'{mf} {v(SP[b],4)}, {v(accK[b-1],4)}, {v(accQ[b],4)}, {v(biasP,4)}')
    vv = accV[b]
    a(f'{cvt} v{Vp+2+2*b}, v{vv}, v{vv+1}')
    a(f'{cvt} v{Vp+3+2*b}, v{vv+2}, v{vv+3}')
for b in B:
    a(f'{mf} {v(accR[b],4)}, {v(accK[b],4)}, {v(Ec,4)}, 0')
for b in B:
    if b:
        for r_ in range(4):
            a(f'v_max_f32 v{SC[b]+r_}, v{SC[b]+r_}, v{SP[b]+r_}')
    a(f'v_max3_f32 v{SP[b]}, v{SC[b]}, v{SC[b]+1}, v{SC[b]+2}')
    a(f'v_max_f32 v{SP[b]}, v{SP[b]}, v{SC[b]+3}')
    a(f'v_mov_b32 v{SP[b]+1}, v{SP[b]}')
for b in B:
    r = accR[b]
    a(f'{cvt} v{VRp+2+2*b}, v{r}, v{r+1}')
    a(f'{cvt} v{VRp+3+2*b}, v{r+2}, v{r+3}')
for b in B:
    a(f'v_permlane16_swap_b32 v{SP[b]+1}, v{SP[b]+1}')
for b in B:
    a(f'v_max_f32 v{SP[b]}, v{SP[b]}, v{SP[b]+1}')
    a(f'v_mov_b32 v{SP[b]+1}, v{SP[b]}')
for b in B:
    a(f'v_permlane32_swap_b32 v{SP[b]+1}, v{SP[b]+1}')
CS = 20 ** -0.5 * math.log2(math.e)
a(f's_mov_b32 s16, {hx(f2u(CS))}')
for b in B:
    a(f'v_max_f32 v{SP[b]}, v{SP[b]}, v{SP[b]+1}')
    a(f'v_mul_f32 v{SP[b]}, {hx(f2u(-CS))}, v{SP[b]}')
for b in B:
    for r_ in range(4):
        a(f'v_fma_f32 v{SC[b]+r_}, v{SC[b]+r_}, s16, v{SP[b]}')
    for r_ in range(4):
        a(f'v_exp_f32 v{SC[b]+r_}, v{SC[b]+r_}')
for b in B:
    c_, p_ = SC[b], SP[b]
    a(f'{cvt} v{c_}, v{c_}, v{c_+1}')
    a(f'{cvt} v{c_+1}, v{c_+2}, v{c_+3}')
    a(f'v_and_b32 v{p_+2}, v{mCur}, v{c_}')
    a(f'v_and_b32 v{p_+3}, v{mCur+1}, v{c_+1}')
    a(f'v_xor_b32 v{p_}, v{p_+2}, v{c_}')
    a(f'v_xor_b32 v{p_+1}, v{p_+3}, v{c_+1}')
for b in B:
    a(f'{mf} {v(accK[b],4)}, {v(ones,4)}, {v(SP[b],4)}, 0')
    a(f'{mf} {v(accQ[b],4)}, {v(Vp+2*b,4)}, {v(SP[b],4)}, 0')
    a(f'{mf} {v(accR[b],4)}, {v(VRp+2*b,4)}, {v(SP[b],4)}, 0')
for b in B:
    a(f'v_rcp_f32 v{accK[b]}, v{accK[b]}')
for b in B:
    q, k, r = accQ[b], accK[b], accR[b]
    for x in (q, q + 2, r, r + 2):
        a(f'v_pk_mul_f32 {v(x,2)}, {v(x,2)}, {v(k,2)} op_sel_hi:[1,0]')
    a(f'{cvt} v{q}, v{q}, v{q+1}')
    a(f'{cvt} v{q+1}, v{q+2}, v{q+3}')
    a(f'{cvt} v{r}, v{r}, v{r+1}')
    a(f'{cvt} v{r+1}, v{r+2}, v{r+3}')
    a(f'ds_write_b64 v{vOm}, {v(q,2)} offset:{1296*b}')
    a(f'ds_write_b64 v{vOr}, {v(r,2)} offset:{1296*b}')
a('s_waitcnt lgkmcnt(0)')
a('s_barrier')
a('s_endpgm')
K1_VGPR = ra.hi

if 4 + 4 * NRT < 32:
    a.label('L_idle')
    a('s_cmp_lg_u32 s3, 0')
    a(f's_cbranch_scc1 {K1}_end')
    gate_addr(vG)
    a('s_waitcnt lgkmcnt(0)')
    srd(SRD_X, S_X, 2621440)
    srd(SRD_WS, S_WS, WS_SIZE)
    gate_loads(vG, vGD)
    a('s_waitcnt vmcnt(0)')
    gate_compute(vG, vGD)
    a('s_endpgm')

a.label('L_dft')
AIMG = 81920
a('s_lshr_b32 s7, s6, 1')
a('s_lshl_b32 s9, s5, 1')
a('s_add_u32 s7, s7, s9')
a('s_and_b32 s8, s6, 1')
dX = 2; dWr = 3
dD = 96
a(f'v_lshrrev_b32 v8, 3, v0')
a(f'v_mul_u32_u24 v9, 81920, v8')
a(f'v_and_b32 v10, 7, v0')
a(f'v_lshl_add_u32 v{dX}, v10, 4, v9')
a(f'v_lshrrev_b32 v11, 4, v0')
a(f'v_xor_b32 v11, v11, v10')
a(f'v_lshlrev_b32 v12, 7, v8')
a(f'v_lshl_add_u32 v12, v11, 4, v12')
a('s_mul_i32 s9, s3, 10240')
a(f's_add_u32 s9, s9, {AIMG}')
a(f'v_add_u32 v{dWr}, s9, v12')
a(f'v_xor_b32 v{dWr+1}, 64, v{dWr}')
a('s_lshr_b32 s9, s3, 1')
a('s_lshl_b32 s10, s7, 2')
a('s_add_u32 s9, s9, s10')
a('s_lshl_b32 s9, s9, 1')
a('s_add_u32 s9, s9, s4')
a('s_and_b32 s10, s3, 1')
a('s_lshl_b32 s10, s10, 10')
a('s_add_u32 s9, s9, s10')
a('s_mul_i32 s9, s9, 1280')
a(f's_add_u32 s10, s9, {8*81920}')
a('s_cmp_eq_u32 s8, 0')
a('s_cselect_b32 s11, 0x3f803f80, 0xbf803f80' if False else 's_mov_b32 s11, 0x3f803f80')
a('s_cselect_b32 s12, 0, 0x80000000')
a('s_or_b32 s11, s11, s12')
a('s_mov_b32 s12, 0x05040100')
a('s_mov_b32 s13, 0x07060302')
a('s_waitcnt lgkmcnt(0)')
srd(SRD_X, S_X, 2621440)
for rg in range(2):
    for l in range(5):
        i = rg * 5 + l
        a(f'buffer_load_dwordx4 {v(dD+8*i,4)}, v{dX}, {s(SRD_X,4)}, s{9+rg} offen offset:{128*l}')
        a(f'buffer_load_dwordx4 {v(dD+8*i+4,4)}, v{dX}, {s(SRD_X,4)}, s{9+rg} offen offset:{128*l+640}')
srd(SRD_WS, S_WS, WS_SIZE)
a('s_cmp_ge_u32 s3, 4')
a('s_cbranch_scc1 L_dc')


def fold(extra):
    t = 16
    a(f'v_mov_b32 v15, s11')
    for i in range(10):
        rg, l = divmod(i, 5)
        a(f's_waitcnt vmcnt({18-2*i+extra})')
        lo, hi = dD + 8 * i, dD + 8 * i + 4
        for q in range(4):
            a(f'v_perm_b32 v{t+2*q}, v{hi+q}, v{lo+q}, s12')
            a(f'v_perm_b32 v{t+2*q+1}, v{hi+q}, v{lo+q}, s13')
        for q in range(8):
            a(f'v_dot2_f32_bf16 v{t+q}, v{t+q}, v15, 0')
        a('s_nop 0')
        for q in range(4):
            a(f'{cvt} v{lo+q}, v{t+2*q}, v{t+2*q+1}')
        a(f'ds_write_b128 v{dWr+rg}, {v(lo,4)} offset:{rg*5120+l*1024}')


dB = 5
srd(SRD_B, S_WDR, 819200)
srd(SRD_C, S_WDI, 819200)
a('s_and_b32 s14, s3, 1')
a('s_lshl_b32 s14, s14, 2')
a(f'v_xor_b32 v11, s14, v11')
a(f'v_mul_u32_u24 v9, 2560, v8')
a(f'v_lshl_add_u32 v{dB}, v11, 4, v9')
a('s_lshl_b32 s14, s3, 4')
a('s_add_u32 s14, s14, s8')
a('s_mul_i32 s14, s14, 1280')
a('s_mul_i32 s15, s3, 5120')
a('s_or_b32 s62, s3, s8')
a('s_cmp_eq_u32 s62, 0')
a('s_cselect_b32 s63, 0xffffff00, -1')


def d_issue(blk):
    slot = blk % 4
    for tau in range(2):
        if blk == 0 and tau == 1:
            a('s_mov_b32 exec_lo, s63')
        for l in range(5):
            a(f's_add_u32 m0, s15, {slot*40960+tau*20480+l*1024}')
            a(f's_add_u32 s64, s14, {blk*81920+l*128}')
            a(f'buffer_load_dwordx4 v{dB}, {s(SRD_B if tau == 0 else SRD_C,4)}, s64 offen lds')
        if blk == 0 and tau == 1:
            a('s_mov_b32 exec_lo, -1')


d_issue(0)
d_issue(1)
a('s_cmp_lg_u32 s62, 0')
a('s_cbranch_scc1 L_dl_nospec')
a('v_lshlrev_b32 v12, 10, v8')
a('v_lshl_add_u32 v12, v10, 4, v12')
for q in range(4):
    a(f'v_mov_b32 v{16+q}, 0xbf803f80')
a('s_mov_b32 exec_hi, 0xff')
a('ds_write_b128 v12, v[16:19] offset:20480')
a('s_mov_b32 exec_hi, -1')
a.label('L_dl_nospec')
fold(20)
a('s_waitcnt lgkmcnt(0)')
a('s_barrier')
a('s_waitcnt vmcnt(10)')
a('s_barrier')
d_issue(2)
d_issue(3)
a('s_waitcnt vmcnt(20)')
a('s_barrier')
d_issue(4)
a('s_waitcnt vmcnt(20)')
a('s_barrier')
a('s_waitcnt vmcnt(10)')
a('s_barrier')
a('s_waitcnt vmcnt(0)')
a('s_barrier')
a('s_cmp_lg_u32 s3, 0')
a(f's_cbranch_scc1 {K1}_end')
gate_addr(vG)
gate_loads(vG, vGD)
a('s_waitcnt vmcnt(0)')
gate_compute(vG, vGD)
a('s_endpgm')

a.label('L_dc')
rd = RA(24, 96)
vF = rd.get(4); vZ = rd.get(2)
cC = rd.get(8); cP = rd.get(8); cN = rd.get(8)
pa = rd.get(8); pb = rd.get(8)
t0 = rd.get(6)
rd2 = RA(176, 256)
accA = rd2.get(16); accB = rd2.get(16); Zr = rd2.get(16); Zi = rd2.get(16)
NFB = 8
fB = [2 + 0] * 0
AF = dD
ring = [76, 80, 84, 88, 240, 244, 248, 252]
assert rd.n <= 76 and rd2.n <= 240
a(f'v_and_b32 v{t0}, 31, v0')
a(f'v_lshrrev_b32 v{t0+1}, 5, v0')
a(f'v_cvt_f32_u32 v{t0+2}, v{t0}')
a(f'v_cvt_f32_u32 v{t0+3}, v{t0+1}')
a(f'v_mul_f32 v{t0+3}, v{t0+3}, v{t0+2}')
a(f'v_mul_f32 v{t0+3}, {hx(f2u(0.125))}, v{t0+3}')
for i in range(8):
    for e in range(2):
        r_ = 2 * i + e
        kap = 8 * (r_ >> 2) + (r_ & 3)
        a(f'v_fmamk_f32 v{accA+e}, v{t0+2}, {hx(f2u(kap/32.0))}, v{t0+3}')
    for e in range(2):
        a(f'v_cos_f32 v{accA+2+e}, v{accA+e}')
        a(f'v_sin_f32 v{accA+4+e}, v{accA+e}')
    a(f'{cvt} v{cC+i}, v{accA+2}, v{accA+3}')
    a(f'{cvt} v{cN+i}, v{accA+4}, v{accA+5}')
    a(f'v_xor_b32 v{cP+i}, 0x80008000, v{cN+i}')
a(f'v_lshrrev_b32 v{t0+2}, 3, v{t0}')
a(f'v_mul_u32_u24 v{t0+2}, 5120, v{t0+2}')
a(f'v_and_b32 v{t0+3}, 7, v0')
a(f'v_lshl_add_u32 v{t0+2}, v{t0+3}, 7, v{t0+2}')
a(f'v_bfe_u32 v{t0+3}, v0, 1, 3')
a(f'v_xor_b32 v{t0+3}, v{t0+3}, v{t0+1}')
a(f'v_lshl_add_u32 v{t0+2}, v{t0+3}, 4, v{t0+2}')
a('s_sub_u32 s14, s3, 4')
a('s_mul_i32 s15, s14, 20480')
a(f's_add_u32 s15, s15, {AIMG}')
for q in range(4):
    a(f'v_xor_b32 v{vF+q}, {32*q}, v{t0+2}')
    a(f'v_add_u32 v{vF+q}, s15, v{vF+q}')
a(f'v_mul_u32_u24 v{t0+3}, {4*98304}, v{t0+1}')
a(f'v_lshl_add_u32 v{vZ}, v{t0}, 2, v{t0+3}')
a(f'v_add_u32 v{t0+3}, 640, v{t0+3}')
a(f'v_mov_b32 v{t0+4}, {hx(OOB)}')
a(f'v_cmp_eq_u32 vcc, 0, v{t0}')
a(f'v_cndmask_b32 v{vZ+1}, v{t0+4}, v{t0+3}, vcc')
a(f'v_cndmask_b32_e64 v{t0+5}, -1, 0, vcc')
a('s_lshl_b32 s62, s7, 2')
a('s_add_u32 s62, s62, s14')
a('s_lshl_b32 s62, s62, 1')
a('s_add_u32 s62, s62, s4')
a('s_lshl_b32 s62, s62, 1')
a('s_add_u32 s62, s62, s8')
a('s_mul_i32 s62, s62, 768')
for r_ in range(16):
    a(f's_add_u32 s{64+r_}, s62, {Z_OFF + (8*(r_>>2)+(r_&3))*98304}')
fold(0)
a('s_waitcnt lgkmcnt(0)')
a('s_barrier')
a('s_setprio 2')
for ks in range(20):
    a(f'ds_read_b128 {v(AF+4*ks,4)}, v{vF+(ks&3)} offset:{(ks>>2)*1024}')
for q in range(4):
    a(f'v_subrev_u32 v{vF+q}, s15, v{vF+q}')
a('s_waitcnt lgkmcnt(0)')
a('s_barrier')
M32 = 'v_mfma_f32_32x32x16_bf16'
DEPTH = 6
seq = [(blk, tau, ks) for blk in range(5) for tau in range(2) for ks in range(20)]


def d_read(n):
    blk, tau, ks = seq[n]
    L = []
    if tau == 0 and ks == 0 and blk > 0:
        if blk == 1:
            L.append('s_waitcnt lgkmcnt(0)')
        L.append('s_barrier')
        d = 40960 if blk < 4 else -122880
        for q in range(4):
            L.append(f'v_add_u32 v{vF+q}, {hx(d)}, v{vF+q}')
    L.append(f'ds_read_b128 {v(ring[n%NFB],4)}, v{vF+(ks&3)} offset:{tau*20480+(ks>>2)*1024}')
    return L


def second_stage():
    return [
        f'{M32} {v(Zr,16)}, {v(cC,4)}, {v(pa,4)}, 0',
        f'{M32} {v(Zi,16)}, {v(cP,4)}, {v(pa,4)}, 0',
        f'{M32} {v(Zr,16)}, {v(cC+4,4)}, {v(pa+4,4)}, {v(Zr,16)}',
        f'{M32} {v(Zi,16)}, {v(cP+4,4)}, {v(pa+4,4)}, {v(Zi,16)}',
        f'{M32} {v(Zr,16)}, {v(cN,4)}, {v(pb,4)}, {v(Zr,16)}',
        f'{M32} {v(Zi,16)}, {v(cC,4)}, {v(pb,4)}, {v(Zi,16)}',
        f'{M32} {v(Zr,16)}, {v(cN+4,4)}, {v(pb+4,4)}, {v(Zr,16)}',
        f'{M32} {v(Zi,16)}, {v(cC+4,4)}, {v(pb+4,4)}, {v(Zi,16)}',
    ]


def z_out(blk, va):
    L = []
    for r_ in range(16):
        L.append([f'{cvt} v{Zr+r_}, v{Zr+r_}, v{Zi+r_}',
                  f'buffer_store_dword v{Zr+r_}, v{va}, {s(SRD_WS,4)}, s{64+r_} offen offset:{blk*128}'])
    return L


def special320():
    a('s_cmp_lg_u32 s8, 0')
    a('s_cbranch_scc1 L_dc_nospec')
    a(f'{M32} {v(Zr,16)}, {v(cC,4)}, {v(pb,4)}, 0')
    a(f'{M32} {v(Zi,16)}, {v(cP,4)}, {v(pb,4)}, 0')
    a(f'{M32} {v(Zr,16)}, {v(cC+4,4)}, {v(pb+4,4)}, {v(Zr,16)}')
    a(f'{M32} {v(Zi,16)}, {v(cP+4,4)}, {v(pb+4,4)}, {v(Zi,16)}')
    for i in range(8):
        a(f'v_and_b32 v{pb+i}, v{t0+5}, v{pb+i}')
    for x in z_out(0, vZ + 1):
        a(x[0]); a(x[1])
    a('s_nop 1')
    a.label('L_dc_nospec')


for n in range(DEPTH):
    for x in d_read(n):
        a(x)
outstanding = DEPTH
for n, (blk, tau, ks) in enumerate(seq):
    nxt = n + DEPTH
    drained = False
    if nxt < len(seq):
        rl = d_read(nxt)
    else:
        rl = []
    pend = min(len(seq), n + DEPTH) - n - 1
    a(f's_waitcnt lgkmcnt({pend})')
    acc = accA if tau == 0 else accB
    cin = '0' if ks == 0 else v(acc, 16)
    a(f'{M32} {v(acc,16)}, {v(AF+4*ks,4)}, {v(ring[n%NFB],4)}, {cin}')
    for x in rl:
        a(x)
    if tau == 0 and blk > 0:
        if 4 <= ks < 8:
            for i in (2 * (ks - 4), 2 * (ks - 4) + 1):
                a(f'{cvt} v{pb+i}, v{accB+2*i}, v{accB+2*i+1}')
        if ks == 9 and blk == 1:
            special320()
        if 10 <= ks < 18:
            a(second_stage()[ks - 10])
    if tau == 1:
        if 4 <= ks < 8:
            for i in (2 * (ks - 4), 2 * (ks - 4) + 1):
                a(f'{cvt} v{pa+i}, v{accA+2*i}, v{accA+2*i+1}')
        if blk > 0 and 2 <= ks < 18:
            for x in z_out(blk - 1, vZ)[ks - 2]:
                a(x)
for i in range(8):
    a(f'{cvt} v{pb+i}, v{accB+2*i}, v{accB+2*i+1}')
for x in second_stage():
    a(x)
for x in z_out(4, vZ):
    a(x[0]); a(x[1])
a.label(f'{K1}_end')
a('s_endpgm')

K2 = 'k2_kernel'
kernel_head(K2)
ZIMG = 0
WIMG = 24576
a('s_and_b32 s4, s2, 7')
a('s_bfe_u32 s5, s2, 0x30003')
a('s_lshr_b32 s6, s2, 6')
a('s_lshr_b32 s7, s6, 1')
a('s_lshl_b32 s4, s4, 1')
a('s_add_u32 s4, s4, s7')
a('s_sub_u32 s7, 32, s4')
a('s_cmp_eq_u32 s4, 0')
a('s_cselect_b32 s7, 16, s7')
a('s_bitcmp1_b32 s6, 0')
a('s_cselect_b32 s4, s7, s4')
a('s_sub_u32 s7, 32, s4')
a('s_and_b32 s7, s7, 31')
a('s_sub_u32 s8, 7, s5')
a('s_cmp_ge_u32 s5, 4')
a('s_cselect_b32 s6, 1, 0')
a('s_cselect_b32 s7, s7, s4')
a('s_cselect_b32 s8, s8, s5')
a('s_cmp_ge_u32 s3, 4')
a('s_cbranch_scc1 L_k2c')
kZ = 2; kW = 8; kT = 16
a('s_lshl_b32 s9, s3, 6')
a(f'v_add_u32 v{kT}, s9, v0')
a(f'v_mov_b32 v{kT+5}, {hx(OOB)}')
for i in range(6):
    if i:
        a(f'v_add_u32 v{kT}, 256, v{kT}')
    a(f'v_mul_u32_u24 v{kT+1}, 3121, v{kT}')
    a(f'v_lshrrev_b32 v{kT+1}, 16, v{kT+1}')
    a(f'v_mul_u32_u24 v{kT+2}, 21, v{kT+1}')
    a(f'v_sub_u32 v{kT+2}, v{kT}, v{kT+2}')
    a(f'v_mul_u32_u24 v{kT+1}, 1536, v{kT+1}')
    a(f'v_lshl_add_u32 v{kT+1}, v{kT+2}, 4, v{kT+1}')
    a(f'v_add_u32 v{kT+3}, 768, v{kT+1}')
    a(f'v_subrev_u32 v{kT+1}, 160, v{kT+1}')
    a(f'v_cmp_gt_u32 vcc, 10, v{kT+2}')
    a(f'v_cndmask_b32 v{kZ+i}, v{kT+1}, v{kT+3}, vcc')
    if i == 5:
        a(f'v_cmp_gt_u32 vcc, 1344, v{kT}')
        a(f'v_cndmask_b32 v{kZ+i}, v{kT+5}, v{kZ+i}, vcc')
    if i < 5:
        a(f'v_mul_u32_u24 v{kT+1}, 6554, v{kT}')
        a(f'v_lshrrev_b32 v{kT+1}, 16, v{kT+1}')
        a(f'v_mul_u32_u24 v{kT+2}, 10, v{kT+1}')
        a(f'v_sub_u32 v{kT+2}, v{kT}, v{kT+2}')
        a(f'v_lshrrev_b32 v{kT+3}, 1, v{kT+1}')
        a(f'v_xor_b32 v{kT+3}, v{kT+3}, v{kT+1}')
        a(f'v_and_b32 v{kT+3}, 4, v{kT+3}')
        a(f'v_mul_u32_u24 v{kT+3}, 3, v{kT+3}')
        a(f'v_xor_b32 v{kT+1}, v{kT+3}, v{kT+1}')
        a(f'v_mul_u32_u24 v{kT+1}, 1280, v{kT+1}')
        a(f'v_lshl_add_u32 v{kW+i}, v{kT+2}, 4, v{kT+1}')
a('s_mul_i32 s10, s7, 98304')
a('s_mul_i32 s11, s8, 160')
a('s_add_u32 s10, s10, s11')
a(f's_add_u32 s10, s10, {Z_OFF}')
a('s_mul_i32 s11, s5, 160')
a('s_lshl_b32 s12, s3, 10')
a('s_waitcnt lgkmcnt(0)')
srd(SRD_WS, S_WS, WS_SIZE)
srd(SRD_B, S_WO, 819200)
for i in range(6):
    a(f's_add_u32 m0, s12, {ZIMG+4096*i}')
    a(f'buffer_load_dwordx4 v{kZ+i}, {s(SRD_WS,4)}, s10 offen lds')
for ch in range(5):
    for i in range(5):
        a(f's_add_u32 m0, s12, {WIMG+ch*20480+4096*i}')
        a(f'buffer_load_dwordx4 v{kW+i}, {s(SRD_B,4)}, s11 offen lds')
    a(f's_add_u32 s11, s11, {128*1280}')
for ch in range(6):
    a(f's_waitcnt vmcnt({25-5*ch})')
    a('s_barrier')
a('s_endpgm')
a.label('L_k2c')
rk = RA(2, 256)
vO = rk.get(1); vGt = rk.get(1); vOut = rk.get(2); vZa = rk.get(5); vWa = rk.get(2); kt = rk.get(8)
WsF = rk.get(16)
accD = [rk.get(4) for t in range(5)]
accO = [rk.get(4) for t in range(5)]
oF = rk.get(80)
bF = [[rk.get(4) for t in range(5)] for k in range(2)]
a('s_sub_u32 s9, s3, 4')
a(f'v_lshlrev_b32 v{vO}, 4, v0')
a('s_lshl_b32 s10, s4, 2')
a('s_add_u32 s10, s10, s9')
a('s_lshl_b32 s11, s10, 6')
a(f's_add_u32 s11, s11, {G_OFF}')
a('s_mul_i32 s10, s10, 20480')
a(f'v_and_b32 v{kt}, 15, v0')
a(f'v_lshrrev_b32 v{kt+1}, 4, v0')
a(f'v_lshlrev_b32 v{kt+2}, 2, v{kt}')
a('s_waitcnt lgkmcnt(0)')
srd(SRD_WS, S_WS, WS_SIZE)
a(f'buffer_load_dword v{vGt}, v{kt+2}, {s(SRD_WS,4)}, s11 offen')
for ks in range(20):
    a(f'buffer_load_dwordx4 {v(oF+4*ks,4)}, v{vO}, {s(SRD_WS,4)}, s10 offen offset:{(ks&3)*1024}')
    if ks & 3 == 3:
        a('s_add_u32 s10, s10, 4096')
srd(SRD_C, S_OUT, 2621440)
a('s_lshl_b32 s12, s9, 9')
a('s_add_u32 s12, s12, s4')
a(f'v_lshl_add_u32 v{kt+2}, v{kt}, 5, s12')
a(f'v_mul_u32_u24 v{vOut}, 1280, v{kt+2}')
a('s_mul_i32 s13, s5, 160')
a(f'v_add_u32 v{vOut}, s13, v{vOut}')
a(f'v_lshl_add_u32 v{vOut+1}, v{kt+1}, 3, v{vOut}')
a(f'v_and_b32 v{kt+3}, 1, v{kt+1}')
a(f'v_lshl_add_u32 v{vOut}, v{kt+3}, 5, v{vOut}')
a(f'v_and_b32 v{kt+3}, 2, v{kt+1}')
a(f'v_lshl_add_u32 v{vOut}, v{kt+3}, 3, v{vOut}')
a(f'v_cvt_f32_u32 v{kt+2}, v{kt+2}')
a('s_lshl_b32 s13, s6, 31')
a(f'v_xor_b32 v{kt+2}, s13, v{kt+2}')
a(f'v_cvt_f32_u32 v{kt+3}, v{kt+1}')
a(f'v_mul_f32 v{kt+3}, v{kt+3}, v{kt+2}')
a(f'v_mul_f32 v{kt+3}, {hx(f2u(4/2048.0))}, v{kt+3}')
for i in range(4):
    for jr in range(0, 4, 2):
        for e in range(2):
            a(f'v_fmamk_f32 v{kt+4+e}, v{kt+2}, {hx(f2u((16*i+jr+e)/2048.0))}, v{kt+3}')
        for e in range(2):
            a(f'v_cos_f32 v{kt+6+e}, v{kt+4+e}')
            a(f'v_sin_f32 v{kt+4+e}, v{kt+4+e}')
        for e in range(2):
            a(f'{cvt} v{WsF+4*i+jr+e}, v{kt+6+e}, v{kt+4+e}')
a('s_cmp_eq_u32 s6, 0')
a('s_cselect_b32 s13, 0, 80')
a('s_cselect_b32 s14, 1, -1')
a(f'v_mul_u32_u24 v{kt+4}, {4*336}, v{kt+1}')
for T in range(5):
    a(f'v_add_u32 v{kt+2}, {16*T}, v{kt}')
    a(f'v_mul_lo_u32 v{kt+2}, v{kt+2}, s14')
    a(f'v_add_u32 v{kt+2}, s13, v{kt+2}')
    a(f'v_and_b32 v{kt+3}, 1, v{kt+2}')
    a(f'v_xor_b32 v{kt+3}, 1, v{kt+3}')
    a(f'v_mul_u32_u24 v{kt+3}, 160, v{kt+3}')
    a(f'v_lshrrev_b32 v{kt+2}, 1, v{kt+2}')
    a(f'v_lshl_add_u32 v{kt+2}, v{kt+2}, 2, v{kt+3}')
    a(f'v_add_u32 v{vZa+T}, v{kt+2}, v{kt+4}')
a(f'v_lshrrev_b32 v{kt+2}, 5, v0')
a(f'v_bfe_u32 v{kt+3}, v0, 2, 3')
a(f'v_lshl_add_u32 v{kt+2}, v{kt+2}, 4, v{kt+3}')
a(f'v_mul_u32_u24 v{kt+2}, 160, v{kt+2}')
a(f'v_and_b32 v{kt+3}, 3, v0')
a(f'v_lshl_add_u32 v{kt+2}, v{kt+3}, 3, v{kt+2}')
a(f'v_add_u32 v{vWa}, {WIMG}, v{kt+2}')
a(f'v_add_u32 v{vWa+1}, {WIMG+12*5120}, v{kt+2}')
a('s_setprio 2')


def k2_reads(st):
    L = []
    buf = bF[st & 1]
    if st % 4 == 0:
        L.append('s_barrier')
    if st < 4:
        for T in range(5):
            for jr in range(4):
                L.append(f'ds_read_b32 v{buf[T]+jr}, v{vZa+T} offset:{ZIMG+(16*st+jr)*336}')
    else:
        ks = st - 4
        ad, kb = (vWa, ks) if ks < 12 else (vWa + 1, ks - 12)
        for T in range(5):
            for bs in range(2):
                L.append(f'ds_read_b64_tr_b16 {v(buf[T]+2*bs,2)}, v{ad} offset:{kb*5120+bs*1280+32*T}')
    return L


for x in k2_reads(0):
    a(x)
for st in range(24):
    a('s_waitcnt lgkmcnt(0)' + (f' vmcnt({19-(st-4)})' if st >= 4 else ''))
    M = []
    for T in range(5):
        if st < 4:
            d = v(accD[T], 4); bop = v(WsF + 4 * st, 4); cin = '0' if st == 0 else d
        else:
            d = v(accO[T], 4); bop = v(oF + 4 * (st - 4), 4); cin = '0' if st == 4 else d
        M.append(f'{mf} {d}, {v(bF[st&1][T],4)}, {bop}, {cin}')
    R = k2_reads(st + 1) if st < 23 else []
    per = 4 if st < 3 else 3
    for x in interleave(M, R, per=per):
        a(x)
for T in range(5):
    for r_ in range(4):
        a(f'v_sub_f32 v{accD[T]+r_}, v{accD[T]+r_}, v{accO[T]+r_}')
    for r_ in range(4):
        a(f'v_fma_f32 v{accD[T]+r_}, v{accD[T]+r_}, v{vGt}, v{accO[T]+r_}')
P = oF
for T in range(5):
    a(f'{cvt} v{P+2*T}, v{accD[T]}, v{accD[T]+1}')
    a(f'{cvt} v{P+2*T+1}, v{accD[T]+2}, v{accD[T]+3}')
for T in (0, 2):
    a(f'v_permlane16_swap_b32 v{P+2*T}, v{P+2*T+2}')
    a(f'v_permlane16_swap_b32 v{P+2*T+1}, v{P+2*T+3}')
a(f'buffer_store_dwordx2 {v(P+8,2)}, v{vOut+1}, {s(SRD_C,4)}, 0 offen offset:128')
a(f'buffer_store_dwordx4 {v(P,4)}, v{vOut}, {s(SRD_C,4)}, 0 offen')
a(f'buffer_store_dwordx4 {v(P+4,4)}, v{vOut}, {s(SRD_C,4)}, 0 offen offset:64')
a.label(f'{K2}_end')
a('s_endpgm')


def desc(name, nv):
    return f'''.p2align 6
.amdhsa_kernel {name}
  .amdhsa_next_free_vgpr {nv}
  .amdhsa_next_free_sgpr 96
  .amdhsa_accum_offset {nv}
  .amdhsa_group_segment_fixed_size 0
  .amdhsa_kernarg_size 96
  .amdhsa_user_sgpr_count 2
  .amdhsa_user_sgpr_kernarg_segment_ptr 1
  .amdhsa_system_sgpr_workgroup_id_x 1
.end_amdhsa_kernel
'''


hdr = open('cdna_kernels/' + NAME + '.s.ref').read().split('; Override launch')[0]
out = hdr
out += f'; @launch kernel={K1} grid=(256,1,1) block=(512,1,1) lds=163840\n'
out += f'; @launch kernel={K2} grid=(256,1,1) block=(512,1,1) lds={WIMG+102400}\n'
out += '.amdgcn_target "amdgcn-amd-amdhsa--gfx950"\n.text\n'
out += a.text()
out += '.section .rodata,"a"\n' + desc(K1, 256) + desc(K2, 256)
open(sys.argv[1], 'w').write(out)
print('wrote', sys.argv[1], 'lines', out.count('\n'), 'nops', a.nnop, 'qc vgpr', K1_VGPR, 'k2 vgpr', rk.hi)
```

```python
import re

TRANS = ('v_exp_f32', 'v_log_f32', 'v_rcp_f32', 'v_rsq_f32', 'v_sqrt_f32', 'v_sin_f32', 'v_cos_f32')


def _regs(tok):
    tok = tok.strip()
    tok = tok.lstrip('-')
    m = re.fullmatch(r'abs\((.*)\)', tok) or re.fullmatch(r'\|(.*)\|', tok)
    if m:
        tok = m.group(1)
    m = re.fullmatch(r'([vsa])(\d+)', tok)
    if m:
        return {m.group(1) + m.group(2)}
    m = re.fullmatch(r'([vsa])\[(\d+):(\d+)\]', tok)
    if m:
        return {m.group(1) + str(i) for i in range(int(m.group(2)), int(m.group(3)) + 1)}
    if tok in ('vcc', 'vcc_lo', 'vcc_hi'):
        return {'vcc'}
    if tok in ('exec', 'exec_lo', 'exec_hi'):
        return {'exec'}
    if tok == 'm0':
        return {'m0'}
    return set()


class Ins:
    def __init__(self, text):
        self.text = text
        t = text.split(';')[0].strip()
        self.label = t.endswith(':')
        self.directive = t.startswith('.')
        self.op = ''
        self.w = set()
        self.r = set()
        self.kind = 'other'
        self.states = 1
        if self.label or self.directive or not t:
            self.states = 0
            return
        parts = t.split(None, 1)
        op = parts[0]
        self.op = op
        rest = parts[1] if len(parts) > 1 else ''
        ops = [o.strip() for o in re.split(r',\s*(?![^\[]*\])', rest)] if rest else []
        mods = ''
        if ops:
            last = ops[-1].split(None, 1)
            ops[-1] = last[0]
            mods = last[1] if len(last) > 1 else ''
        self.ops = ops
        self.mods = mods
        R = [_regs(o) for o in ops]
        base = re.sub(r'_(e32|e64|dpp|sdwa)$', '', op)
        self.base = base
        if op == 's_nop':
            self.states = int(ops[0], 0) + 1
            self.kind = 'nop'
        elif op.startswith('v_mfma'):
            self.kind = 'mfma'
            self.passes = 8 if '32x32' in op else 4
            self.w = R[0]
            self.ab = R[1] | R[2]
            self.c = R[3]
            self.r = self.ab | self.c
        elif op.startswith('v_'):
            self.kind = 'valu'
            self.trans = base in TRANS
            self.dpp = op.endswith('_dpp')
            self.perm = op.startswith('v_permlane')
            self.rdlane = base in ('v_readfirstlane_b32', 'v_readlane_b32')
            if self.perm:
                self.w = R[0] | R[1]
                self.r = R[0] | R[1]
            elif base in ('v_add_co_u32', 'v_sub_co_u32', 'v_addc_co_u32', 'v_subrev_co_u32'):
                self.w = R[0] | R[1]
                self.r = set().union(*R[2:])
            else:
                self.w = R[0]
                self.r = set().union(*R[1:]) if len(R) > 1 else set()
                if base in ('v_fmac_f32', 'v_dot2c_f32_bf16') or self.dpp:
                    self.r |= R[0]
                if base.startswith('v_cmpx'):
                    self.w |= {'exec'}
        elif op.startswith('ds_'):
            self.kind = 'ds'
            if 'read' in op or 'permute' in op or 'swizzle' in op:
                self.w = R[0]
                self.r = set().union(*R[1:])
            else:
                self.r = set().union(*R)
        elif op.startswith('buffer_') or op.startswith('global_'):
            self.kind = 'vmem'
            self.lds = bool(re.search(r'\blds\b', mods)) or '_lds_' in op
            self.wide_store = False
            if 'load' in op and not self.lds:
                self.w = R[0]
                self.r = set().union(*R[1:])
            else:
                self.r = set().union(*R) if R else set()
                if self.lds:
                    self.r |= {'m0'}
                if 'store' in op and ('x4' in op or 'x3' in op):
                    self.wide_store = True
                    self.data = R[0] if op.startswith('buffer_') else R[1]
        elif op.startswith('s_'):
            self.kind = 'salu'
            nodst = ('s_cmp', 's_cbranch', 's_branch', 's_waitcnt', 's_barrier', 's_endpgm', 's_setprio', 's_sleep',
                     's_bitcmp', 's_setpc')
            if op.startswith(nodst):
                self.r = set().union(*R) if R else set()
            else:
                self.w = R[0] if R else set()
                self.r = set().union(*R[1:]) if len(R) > 1 else set()
                if 'saveexec' in op:
                    self.w |= {'exec'}


def need(p, c):
    n = 0
    isv = lambda s: {x for x in s if x[0] in 'va' and x != 'vcc'}
    iss = lambda s: {x for x in s if (x[0] == 's') or x == 'vcc'}
    if p.kind == 'valu':
        pw = isv(p.w)
        if c.kind == 'mfma' and pw & c.r:
            n = max(n, 2)
        if c.kind == 'valu':
            if p.trans and not c.trans and pw & c.r:
                n = max(n, 1)
            if (c.perm or c.dpp) and pw & c.r:
                n = max(n, 2)
            if c.rdlane and pw & c.r:
                n = max(n, 1)
            if iss(p.w) & c.r:
                n = max(n, 4 if c.rdlane else 2)
            if 'exec' in p.w:
                n = max(n, 5)
            if p.base.startswith('v_dot') and pw & (c.r | c.w):
                same_c = c.base == p.base and not (pw & set().union(*[_regs(o) for o in c.ops[1:3]]))
                if not same_c:
                    n = max(n, 3)
        if c.kind in ('vmem', 'ds', 'mfma') and p.base.startswith('v_dot') and pw & c.r:
            n = max(n, 3)
        if c.kind in ('vmem', 'ds') and p.trans and pw & c.r:
            n = max(n, 1)
        if c.kind == 'vmem' and iss(p.w) & c.r:
            n = max(n, 5)
        if c.kind == 'salu' and iss(p.w) & c.r:
            n = max(n, 2)
        if c.kind == 'mfma' and 'exec' in p.w:
            n = max(n, 4)
    elif p.kind == 'mfma':
        big = p.passes == 8
        if c.kind == 'mfma':
            if p.w & c.ab:
                n = max(n, 12 if big else 8)
            if p.w & c.c and not (p.w == c.c and p.passes == c.passes):
                n = max(n, 10 if big else 6)
        elif c.kind == 'valu':
            if p.w & (c.r | c.w):
                n = max(n, 12 if big else 8)
            if p.c & c.w:
                n = max(n, 7 if big else 3)
        elif c.kind in ('vmem', 'ds'):
            if p.w & (c.r | c.w):
                n = max(n, 12 if big else 8)
    elif p.kind == 'salu':
        if 'm0' in p.w and c.kind == 'vmem' and c.lds:
            n = max(n, 1)
    elif p.kind == 'vmem':
        if p.wide_store and p.data & c.w:
            n = max(n, 2 if c.kind == 'valu' else 1)
    return n


class Asm:
    def __init__(self):
        self.L = []
        self.nnop = 0

    def __call__(self, text):
        for line in text.split('\n'):
            line = line.strip()
            if line:
                self.raw(line)

    def raw(self, line):
        c = Ins(line)
        if c.states:
            dist = 0
            pad = 0
            for p in reversed(self.L):
                if dist >= 20:
                    break
                if p.states:
                    nd = need(p, c)
                    if nd > dist:
                        pad = max(pad, nd - dist)
                    dist += p.states
                if p.op in ('s_branch', 's_endpgm', 's_setpc_b64'):
                    break
            while pad > 0:
                k = min(pad, 16)
                self.L.append(Ins(f's_nop {k - 1}'))
                self.nnop += k
                pad -= k
        self.L.append(c)

    def label(self, name):
        self.L.append(Ins(name + ':'))

    def check_backedge(self, label):
        idx = [i for i, x in enumerate(self.L) if x.label and x.text.split(':')[0].strip() == label][0]
        head = [x for x in self.L[idx:] if x.states][:24]
        tail = [x for x in self.L[-40:] if x.states]
        for ci, c in enumerate(head):
            dist = sum(x.states for x in head[:ci])
            for p in reversed(tail):
                nd = need(p, c)
                assert nd <= dist, f'back-edge hazard {p.text} -> {c.text} need {nd} have {dist}'
                dist += p.states
                if dist >= 20:
                    break

    def text(self):
        out = []
        for x in self.L:
            out.append(x.text if (x.label or x.directive) else '    ' + x.text)
        return '\n'.join(out) + '\n'


class RA:
    def __init__(self, start, limit):
        self.n = start
        self.limit = limit
        self.hi = start

    def get(self, k=1, align=None):
        align = align or (2 if k > 1 else 1)
        self.n = (self.n + align - 1) // align * align
        r = self.n
        self.n += k
        assert self.n <= self.limit, f'out of registers {self.n} > {self.limit}'
        self.hi = max(self.hi, self.n)
        return r


def v(r, n=1):
    return f'v{r}' if n == 1 else f'v[{r}:{r + n - 1}]'


def s(r, n=1):
    return f's{r}' if n == 1 else f's[{r}:{r + n - 1}]'


def interleave(main, fill, start=0, per=1):
    out = []
    fi = 0
    for i, m in enumerate(main):
        out.append(m)
        if i >= start:
            for _ in range(per):
                if fi < len(fill):
                    out.append(fill[fi])
                    fi += 1
    out += fill[fi:]
    return out


def _cost(x):
    if x.kind == 'mfma':
        return 8
    if x.kind == 'valu' and (x.trans or x.perm):
        return 8
    return 4


def schedule(lines, mfma_first=True):
    I = [Ins(l) for l in lines]
    n = len(I)
    preds = [[] for _ in range(n)]
    succs = [[] for _ in range(n)]
    for j in range(n):
        for i in range(j):
            raw = I[i].w & I[j].r
            war = I[i].r & I[j].w
            waw = I[i].w & I[j].w
            implicit = ('exec' in I[i].w and I[j].kind in ('valu', 'ds', 'vmem', 'mfma')) or \
                       ('exec' in I[j].w and I[i].kind in ('valu', 'ds', 'vmem', 'mfma'))
            if raw or war or waw or implicit:
                preds[j].append(i)
                succs[i].append(j)
    lat = lambda i, j: _cost(I[i]) + 4 * need(I[i], I[j]) + (8 if I[i].kind == 'mfma' and (I[i].w & I[j].r) and I[j].kind == 'mfma' else 0)
    prio = [0] * n
    for i in range(n - 1, -1, -1):
        prio[i] = _cost(I[i]) + max([lat(i, j) - _cost(I[i]) + prio[j] for j in succs[i]] + [0])
    done = [None] * n
    order = []
    left = set(range(n))
    npred = [len(p) for p in preds]
    avail = {i for i in range(n) if npred[i] == 0}
    t = 0
    mf_free = 0
    pos = 0
    while left:
        best = None
        for j in avail:
            pad = max([need(I[i], I[j]) - (pos - done[i] - 1) for i in preds[j]] + [0])
            stall = 4 * pad
            if I[j].kind == 'mfma':
                stall = max(stall, mf_free - t)
            bonus = 1 if (mfma_first and I[j].kind == 'mfma' and stall == 0) else 0
            key = (stall, -bonus, -prio[j], j)
            if best is None or key < best[0]:
                best = (key, j, pad)
        key, j, pad = best
        t += key[0]
        pos += pad
        done[j] = pos
        pos += 1
        if I[j].kind == 'mfma':
            mf_free = t + 4 * I[j].passes
        t += _cost(I[j])
        order.append(lines[j])
        left.remove(j)
        avail.remove(j)
        for k in succs[j]:
            npred[k] -= 1
            if npred[k] == 0:
                avail.add(k)
    return order, t
```

```python
import sys, struct, math
from asmlib import *

NAME = 'gated_mix__spectral_fnet__sliding_local_dilated__prompt'
PROF = 0
PFW = 1
SLP_D = 8
SLP_Q = 2
DBG = 0
for arg in sys.argv[2:]:
    k_, v_ = arg.split('=')
    globals()[k_] = int(v_)
NB = 6
U = 16 * NB - 7
JMAX = 1024 - 16 * NB
ABYTES = 16 * NB * 128
SL = ABYTES + 64 * 480
O_OFF = 0
Z_OFF = 2621440
G_OFF = Z_OFF + 3145728
F_OFF = G_OFF + 8192
N_OFF = F_OFF + 65536
WS_SIZE = N_OFF + 128
OOB = 0x80000000
WCH = [43008, 63488, 86016, 0, 129024]
ZIMG = 20480
OST = 106496
OROW, OBLK = 176, 2976
OIMG = [20480, 106496, 43008, 63488]
CNT = 163000 // 4 * 4
SPIN = 400000


def f2u(x):
    return struct.unpack('<I', struct.pack('<f', x))[0]


def hx(x):
    return hex(x & 0xffffffff)


def swap23(k):
    return (k & ~12) | ((k & 4) << 1) | ((k & 8) >> 1)


a = Asm()
S_X, S_WDR, S_WDI, S_WQKV, S_WO = 16, 22, 24, 28, 30
S_GW, S_OUT, S_DBG, S_WS = 32, 34, 36, 38
SRD_X, SRD_B, SRD_C, SRD_WS, SRD_G = 40, 44, 48, 52, 56
S_N = 18
cvt = 'v_cvt_pk_bf16_f32'
mf = 'v_mfma_f32_16x16x32_bf16'
M32 = 'v_mfma_f32_32x32x16_bf16'
KN = NAME + '_kernel'


def srd(d, ptr, size):
    a(f's_mov_b64 s[{d}:{d+1}], s[{ptr}:{ptr+1}]')
    a(f's_mov_b32 s{d+2}, {hx(size)}')
    a(f's_mov_b32 s{d+3}, 0x20000')


PROF_OFF = 0x800000
NST = 10


def stamp(i, mode=None):
    if PROF and (mode is None or mode == PROF):
        a(f's_memtime s[{80+2*i}:{81+2*i}]')


def stamps(i, mode):
    return [f's_memtime s[{80+2*i}:{81+2*i}]'] if PROF == mode else []


def endpgm():
    a('s_branch L_prof_end' if PROF else 's_endpgm')


def nonce_load():
    a(f's_add_u32 s20, s{S_WS}, {N_OFF}')
    a(f's_addc_u32 s21, s{S_WS+1}, 0')
    a(f's_load_dwordx2 s[{S_N}:{S_N+1}], s[20:21], 0')


def my_nonce(d):
    a('s_bitcmp0_b32 s2, 0')
    a(f's_cselect_b32 s{d}, s{S_N}, s{S_N+1}')
    a(f's_add_u32 s{d}, s{d}, 1')


a(f'.globl {KN}')
a('.p2align 8')
a(f'.type {KN},@function')
a.label(KN)
if PROF:
    a('s_memrealtime s[100:101]')
    stamp(0)
a('s_load_dwordx16 s[16:31], s[0:1], 0')
a('s_load_dwordx8 s[32:39], s[0:1], 64')
a('v_lshrrev_b32 v1, 6, v0')
a('v_and_b32 v0, 63, v0')
a('v_readfirstlane_b32 s3, v1')
if PROF:
    for i in range(1, NST):
        a(f's_mov_b32 s{80+2*i}, 0')
a('s_cmp_ge_u32 s2, 256')
a('s_cbranch_scc1 L_exit')
a('s_and_b32 s4, s2, 1')
a('s_bfe_u32 s5, s2, 0x20001')
a('s_lshr_b32 s6, s2, 3')
a('s_cmp_lt_u32 s6, 8')
a('s_cbranch_scc1 L_dft')
a('s_cmp_ge_u32 s3, 4')
a('s_cbranch_scc1 L_qc')

vA = 2; vB = 4; vT = 8; vW = 16; vOL = 22; vOG = 23; vFl = 24; vOD = 32
a('s_sub_u32 s6, s6, 8')
a('s_lshr_b32 s7, s6, 1')
a('s_and_b32 s9, s6, 1')
a('s_lshl_b32 s8, s5, 1')
a('s_add_u32 s8, s8, s9')
a(f'v_lshrrev_b32 v{vT}, 3, v0')
a(f'v_mul_u32_u24 v{vT}, 2560, v{vT}')
a(f'v_lshrrev_b32 v{vT+1}, 4, v0')
a(f'v_xor_b32 v{vT+1}, v{vT+1}, v0')
a(f'v_and_b32 v{vT+1}, 7, v{vT+1}')
a(f'v_lshl_add_u32 v{vA}, v{vT+1}, 4, v{vT}')
a('s_and_b32 s10, s3, 1')
a('s_lshl_b32 s10, s10, 6')
a(f'v_xor_b32 v{vA}, s10, v{vA}')
a(f'v_xor_b32 v{vA+1}, 64, v{vA}')
a(f'v_mul_u32_u24 v{vT}, 205, v0')
a(f'v_lshrrev_b32 v{vT}, 11, v{vT}')
a(f'v_mul_u32_u24 v{vT+1}, 1120, v{vT}')
a(f'v_lshl_add_u32 v{vB}, v0, 4, v{vT+1}')
a(f's_mul_i32 s10, s7, {U}')
a(f's_min_u32 s10, s10, {JMAX}')
a('s_mul_i32 s11, s3, 24')
a('s_add_u32 s11, s11, s10')
a('s_lshl_b32 s11, s11, 1')
a('s_add_u32 s11, s11, s4')
a('s_mul_i32 s11, s11, 1280')
a('s_mul_i32 s13, s8, 160')
a(f's_mul_i32 s14, s3, {16*3840}')
a('s_add_u32 s13, s13, s14')
a('s_mul_i32 s12, s9, 5')
a('s_mul_i32 s14, s7, 3')
a('s_add_u32 s12, s12, s14')
a('s_mul_i32 s14, s12, 205')
a('s_lshr_b32 s14, s14, 11')
a('s_mul_i32 s14, s14, 10')
a('s_sub_u32 s12, s12, s14')
a('s_mul_i32 s14, s3, 3072')
a(f's_mul_i32 s15, s3, {8*960}')
a(f's_add_u32 s15, s15, {ABYTES}')
a('s_mov_b32 s62, 0')
a('s_mov_b32 s63, 0x0fffffff')
a('s_waitcnt lgkmcnt(0)')
stamp(1)
srd(SRD_X, S_X, 2621440)
srd(SRD_B, S_WQKV, 2457600)
a('s_branch L_ql_main')
a.label('L_issue')
a('s_lshl_b32 s64, s12, 7')
a('s_add_u32 m0, s62, s14')
a('s_add_u32 s64, s64, s11')
for i in range(3):
    if i:
        a('s_add_u32 m0, m0, 1024')
        a('s_add_u32 s64, s64, 20480')
    if not (DBG & 2):
        a(f'buffer_load_dwordx4 v{vA+(i&1)}, {s(SRD_X,4)}, s64 offen lds')
a('s_mul_i32 s65, s12, 245760')
a('s_mov_b32 exec_hi, s63')
a('s_add_u32 m0, s62, s15')
a('s_add_u32 s65, s65, s13')
for i in range(8):
    if i:
        a('s_add_u32 m0, m0, 960')
        a(f's_add_u32 s64, s65, {swap23(2*i)*3840}')
    if not (DBG & 4):
        a(f'buffer_load_dwordx4 v{vB}, {s(SRD_B,4)}, s{64 if i else 65} offen lds')
a('s_mov_b32 exec_hi, -1')
a('s_add_u32 s12, s12, 1')
a('s_cmp_eq_u32 s12, 10')
a('s_cselect_b32 s12, 0, s12')
a(f's_add_u32 s62, s62, {SL}')
a(f's_cmp_eq_u32 s62, {3*SL}')
a('s_cselect_b32 s62, 0, s62')
a('s_setpc_b64 s[60:61]')


def wo_addr():
    t = vT
    a('s_lshl_b32 s71, s3, 6')
    a(f'v_add_u32 v{t}, s71, v0')
    for i in range(5):
        if i:
            a(f'v_add_u32 v{t}, 256, v{t}')
        a(f'v_mul_u32_u24 v{t+1}, 6554, v{t}')
        a(f'v_lshrrev_b32 v{t+1}, 16, v{t+1}')
        a(f'v_mul_u32_u24 v{t+2}, 10, v{t+1}')
        a(f'v_sub_u32 v{t+2}, v{t}, v{t+2}')
        a(f'v_lshrrev_b32 v{t+3}, 1, v{t+1}')
        a(f'v_xor_b32 v{t+3}, v{t+3}, v{t+1}')
        a(f'v_and_b32 v{t+3}, 4, v{t+3}')
        a(f'v_mul_u32_u24 v{t+3}, 3, v{t+3}')
        a(f'v_xor_b32 v{t+1}, v{t+3}, v{t+1}')
        a(f'v_mul_u32_u24 v{t+1}, 1280, v{t+1}')
        a(f'v_lshl_add_u32 v{vW+i}, v{t+2}, 4, v{t+1}')
    a('s_bfe_u32 s70, s2, 0x30003')
    a('s_mul_i32 s70, s70, 160')
    a('s_lshl_b32 s71, s3, 10')
    srd(SRD_G, S_WO, 819200)


def wo_chunk(ch):
    a(f's_add_u32 s72, s70, {ch*128*1280}')
    for i in range(5):
        a(f's_add_u32 m0, s71, {WCH[ch]+4096*i}')
        a(f'buffer_load_dwordx4 v{vW+i}, {s(SRD_G,4)}, s72 offen lds')


sOL, sOG, sOM = 22, 26, 44


def o_store_setup():
    a(f's_mul_i32 s66, s7, {U}')
    a(f's_add_u32 s67, s66, {U+7}')
    a('s_min_u32 s67, s67, 1024')
    a('s_cmp_eq_u32 s7, 0')
    a('s_cselect_b32 s68, 0, 7')
    a('s_add_u32 s66, s66, s68')
    a(f'v_mul_u32_u24 v{vT}, 205, v0')
    a(f'v_lshrrev_b32 v{vT}, 11, v{vT}')
    a(f'v_mul_u32_u24 v{vT}, {OBLK-160}, v{vT}')
    a(f'v_lshlrev_b32 v{vOG}, 4, v0')
    a(f'v_add_u32 v{vOL}, v{vT}, v{vOG}')
    for i in range(4):
        a('s_lshl_b32 s68, s3, 2')
        a(f's_add_u32 s68, s68, {i}')
        a('s_sub_u32 s69, s66, s68')
        a('s_add_u32 s69, s69, 15')
        a('s_lshr_b32 s69, s69, 4')
        a('s_sub_u32 s73, s67, s68')
        a('s_add_u32 s73, s73, 15')
        a('s_lshr_b32 s73, s73, 4')
        a('s_sub_u32 s73, s73, s69')
        a('s_mul_i32 s73, s73, 10')
        a(f's_mov_b32 s{74+i}, s73')
        a('s_lshl_b32 s73, s69, 4')
        a('s_add_u32 s73, s73, s68')
        a('s_sub_u32 s73, s73, s10')
        a(f's_lshr_b32 s{sOL+i}, s73, 4')
        a(f's_mul_i32 s{sOL+i}, s{sOL+i}, {OBLK}')
        a('s_and_b32 s73, s73, 15')
        a(f's_mul_i32 s73, s73, {OROW}')
        a(f's_add_u32 s{sOL+i}, s{sOL+i}, s73')
        a(f's_add_u32 s{sOL+i}, s{sOL+i}, {OST}')
        a('s_lshl_b32 s73, s8, 4')
        a('s_add_u32 s73, s73, s68')
        a('s_lshl_b32 s73, s73, 1')
        a('s_add_u32 s73, s73, s4')
        a('s_lshl_b32 s73, s73, 6')
        a('s_add_u32 s73, s73, s69')
        a(f's_mul_i32 s{sOG+i}, s73, 160')
        a(f'v_add_u32 v{vFl+1+i}, s{sOL+i}, v{vOL}')
    a('s_mul_i32 s64, s5, 24')
    a('s_add_u32 s64, s64, s6')
    a('s_lshr_b32 s65, s64, 2')
    a('s_lshl_b32 s65, s65, 7')
    a('s_and_b32 s64, s64, 3')
    a('s_lshl_b32 s64, s64, 2')
    a('s_add_u32 s64, s64, s65')
    a('s_lshl_b32 s65, s4, 13')
    a('s_add_u32 s64, s64, s65')
    a(f's_add_u32 s64, s64, {F_OFF+2048}')
    a(f'v_lshl_add_u32 v{vFl}, v0, 14, s64')


a.label('L_ql_main')
toks = [('I', 0), ('I', 1), ('W', 0), ('I', 2), ('W', 1), ('S', 0)]
for i in range(2, 9):
    toks += [('I', i + 1), ('W', i)]
toks += [('C', 4), ('W', 9), ('C', 0), ('C', 1), ('C', 2)]
seqv = []
for tk, k in toks:
    if tk == 'I':
        a('s_call_b64 s[60:61], L_issue')
        seqv += [('I', k)] * ((0 if DBG & 2 else 3) + (0 if DBG & 4 else 8))
        if k == 9:
            stamp(3)
    elif tk == 'C':
        wo_chunk(k)
        seqv += [('C', k)] * 5
    elif tk == 'S':
        nonce_load()
        wo_addr()
        srd(SRD_WS, S_WS, WS_SIZE)
        o_store_setup()
    elif tk == 'W':
        last = max([n for n, t_ in enumerate(seqv) if t_ == ('I', k)] + [-1])
        a(f's_waitcnt vmcnt({len(seqv)-1-last})')
        if k == 0:
            stamp(2)
        a('s_barrier')
        if k == 9:
            stamp(4)
for i in range(4):
    a(f's_bfm_b64 s[{sOM+2*i}:{sOM+2*i+1}], s{74+i}, 0')
a(f'v_mov_b32 v{vT}, {CNT}')
a(f'v_mov_b32 v{vT+1}, 1')
a('s_waitcnt lgkmcnt(0)')
my_nonce(64)
a(f'v_mov_b32 v{vT+3}, s64')
stamp(5)
a('s_barrier')
stamp(6)
for i in range(4):
    a(f'ds_read_b128 {v(vOD+4*i,4)}, v{vFl+1+i}')
for i in range(4):
    a(f's_mov_b64 exec, s[{sOM+2*i}:{sOM+2*i+1}]')
    a(f's_waitcnt lgkmcnt({3-i})')
    a(f'buffer_store_dwordx4 {v(vOD+4*i,4)}, v{vOG}, {s(SRD_WS,4)}, s{sOG+i} offen sc1')
a('s_mov_b64 exec, -1')
wo_chunk(3)
a('s_mov_b64 exec, 1')
a('s_waitcnt vmcnt(5)')
a(f'ds_add_rtn_u32 v{vT+2}, v{vT}, v{vT+1}')
a('s_waitcnt lgkmcnt(0)')
a(f'v_readfirstlane_b32 s65, v{vT+2}')
stamp(7)
a('s_mov_b64 exec, 15')
a('s_cmp_lg_u32 s65, 3')
a('s_cbranch_scc1 L_noflag')
a(f'buffer_store_dword v{vT+3}, v{vFl}, {s(SRD_WS,4)}, 0 offen sc0 sc1')
a('s_waitcnt vmcnt(1)')
a('s_branch L_p2l')
a.label('L_noflag')
a('s_waitcnt vmcnt(0)')
a.label('L_p2l')
a('s_mov_b64 exec, -1')
a('s_barrier')
a('s_cmp_lg_u32 s65, 0')
a('s_cbranch_scc1 L_end')
my_nonce(64)
a('s_and_b32 s65, s2, 7')
a('s_lshl_b32 s65, s65, 13')
a(f's_add_u32 s65, s65, {F_OFF+2048}')
a('v_min_u32 v2, 23, v0')
a('v_lshlrev_b32 v2, 7, v2')
a(f's_mov_b32 s66, {SPIN}')


def check(cur, sn):
    for q in range(4):
        a(f'v_xor_b32 v{cur+q}, s{sn}, v{cur+q}')
    a(f'v_or3_b32 v{cur}, v{cur}, v{cur+1}, v{cur+2}')
    a(f'v_or_b32 v{cur}, v{cur}, v{cur+3}')
    a(f'v_cmp_ne_u32 vcc, 0, v{cur}')


def poll(tag, va, vd, soff, sn, scnt, slp):
    a(f'buffer_load_dwordx4 {v(vd,4)}, v{va}, {s(SRD_WS,4)}, s{soff} offen sc1')
    a.label(f'L_poll_{tag}')
    for h in range(2):
        cur, nxt = (vd, vd + 4) if h == 0 else (vd + 4, vd)
        a(f's_sleep {slp}')
        a(f'buffer_load_dwordx4 {v(nxt,4)}, v{va}, {s(SRD_WS,4)}, s{soff} offen sc1')
        a('s_waitcnt vmcnt(1)')
        check(cur, sn)
        a(f's_cbranch_vccz L_polled_{tag}')
    a(f's_sub_u32 s{scnt}, s{scnt}, 1')
    a(f's_cmp_lg_u32 s{scnt}, 0')
    a(f's_cbranch_scc1 L_poll_{tag}')
    a.label(f'L_polled_{tag}')


poll('q', 2, 4, 65, 64, 66, SLP_Q)
stamp(8)
a('s_barrier')
a('s_cmp_ge_u32 s2, 2')
a('s_cbranch_scc1 L_end')
a('s_lshl_b32 s65, s2, 2')
a(f's_add_u32 s65, s65, {N_OFF}')
a('v_mov_b32 v2, s65')
a('v_mov_b32 v3, s64')
a('s_mov_b64 exec, 1')
a(f'buffer_store_dword v3, v2, {s(SRD_WS,4)}, 0 offen')
a('s_mov_b64 exec, -1')
a.label('L_end')
endpgm()

a.label('L_qc')
a('s_setprio 2')
ra = RA(2, 256)
vXb = ra.get(2); vWb = ra.get(2)
vXc = ra.get(2); vWc = ra.get(2)
tmp = ra.get(6)
biasC = ra.get(4); biasP = ra.get(4); mCur = ra.get(2); mG0 = ra.get(1); vOm = ra.get(1)
Ec = ra.get(4); ones = ra.get(4)
accQ = [ra.get(4) for b in range(NB)]
accK = [ra.get(4) for b in range(NB)]
accV = [ra.get(4) for b in range(NB)]
accR = [ra.get(4) for b in range(NB)]
fX = [[ra.get(4) for b in range(NB)] for k in range(2)]
fW = [[ra.get(4) for t in range(4)] for k in range(2)]
Vp = ra.get(2 * NB + 2); VRp = ra.get(2 * NB + 2)
m_, g_ = tmp, tmp + 1
a('s_sub_u32 s9, s3, 4')
a('s_mul_i32 s12, s9, 40')
a(f'v_and_b32 v{m_}, 15, v0')
a(f'v_lshrrev_b32 v{g_}, 4, v0')
a(f'v_lshrrev_b32 v{tmp+2}, 1, v{m_}')
a(f'v_xor_b32 v{tmp+2}, v{tmp+2}, v{g_}')
a(f'v_lshlrev_b32 v{tmp+2}, 4, v{tmp+2}')
a(f'v_lshl_add_u32 v{vXb}, v{m_}, 7, v{tmp+2}')
a(f'v_xor_b32 v{vXb+1}, 64, v{vXb}')
a(f'v_lshrrev_b32 v{tmp+2}, 5, v0')
a(f'v_bfe_u32 v{tmp+3}, v0, 2, 3')
a(f'v_lshl_add_u32 v{tmp+2}, v{tmp+2}, 4, v{tmp+3}')
a(f'v_mul_u32_u24 v{tmp+2}, 480, v{tmp+2}')
a(f's_add_u32 s13, s12, {ABYTES}')
a(f'v_add_u32 v{tmp+2}, s13, v{tmp+2}')
a(f'v_and_b32 v{tmp+3}, 3, v0')
a(f'v_lshl_add_u32 v{vWb}, v{tmp+3}, 3, v{tmp+2}')
a(f'v_min_u32 v{tmp+3}, 2, v{tmp+3}')
a(f'v_mul_u32_u24 v{tmp+3}, 160, v{tmp+3}')
a(f'v_add3_u32 v{vWb+1}, v{tmp+2}, v{tmp+3}, 32')
for r_ in range(accQ[0], accR[-1] + 4, 2):
    a(f'v_mov_b64 {v(r_,2)}, 0')
a(f'v_mov_b32 v{tmp+2}, {CNT}')
a(f'ds_write_b32 v{tmp+2}, v{accQ[0]}')
NEG = hx(f2u(-1e30))
a(f'v_lshlrev_b32 v{tmp+2}, 2, v{g_}')
a(f'v_sub_u32 v{tmp+2}, v{m_}, v{tmp+2}')
a(f'v_mov_b32 v{tmp+4}, {NEG}')
for r_ in range(4):
    a(f'v_subrev_u32 v{tmp+3}, {r_}, v{tmp+2}')
    a(f'v_cmp_gt_u32 vcc, 8, v{tmp+3}')
    a(f'v_cndmask_b32_e64 v{biasC+r_}, v{tmp+4}, 0, vcc')
    a(f'v_add_u32 v{tmp+3}, {16-r_}, v{tmp+2}')
    a(f'v_cmp_gt_u32 vcc, 8, v{tmp+3}')
    a(f'v_cndmask_b32_e64 v{biasP+r_}, v{tmp+4}, 0, vcc')
a(f'v_mov_b32 v{tmp+4}, 0xffff')
a(f'v_mov_b32 v{tmp+5}, 0xffff0000')
for d in range(2):
    a(f'v_cmp_le_i32 vcc, {2*d}, v{tmp+2}')
    a(f'v_cndmask_b32 v{mCur+d}, 0, v{tmp+4}, vcc')
    a(f'v_cmp_le_i32 vcc, {2*d+1}, v{tmp+2}')
    a(f'v_cndmask_b32 v{tmp+3}, 0, v{tmp+5}, vcc')
    a(f'v_or_b32 v{mCur+d}, v{mCur+d}, v{tmp+3}')
a(f'v_cmp_gt_u32 vcc, 16, v0')
a(f'v_cndmask_b32_e64 v{mG0}, 0, -1, vcc')
a(f'v_mul_u32_u24 v{tmp+2}, {OROW}, v{m_}')
a(f's_add_u32 s13, s12, {OST}')
a(f'v_add_u32 v{tmp+2}, s13, v{tmp+2}')
a(f'v_lshl_add_u32 v{vOm}, v{g_}, 3, v{tmp+2}')
a(f'v_mov_b64 {v(Ec,2)}, 0')
a(f'v_mov_b32 v{tmp+4}, 0x3f80')
a(f'v_mov_b32 v{tmp+5}, 0x3f800000')
for d in range(2):
    a(f'v_cmp_eq_u32 vcc, {32+2*d}, v0')
    a(f'v_cndmask_b32 v{Ec+2+d}, 0, v{tmp+4}, vcc')
    a(f'v_cmp_eq_u32 vcc, {33+2*d}, v0')
    a(f'v_cndmask_b32 v{Ec+2+d}, v{Ec+2+d}, v{tmp+5}, vcc')
for r_ in range(4):
    a(f'v_mov_b32 v{ones+r_}, 0x3f803f80')
a(f'v_mov_b64 {v(Vp,2)}, 0')
a(f'v_mov_b64 {v(VRp,2)}, 0')
a(f'v_mov_b64 {v(vXc,2)}, {v(vXb,2)}')
a(f'v_mov_b64 {v(vWc,2)}, {v(vWb,2)}')


def q_reads(kk):
    W = []
    for t in range(4):
        for bs in range(2):
            ad, off = (vWc, kk * 15360 + t * 160 + bs * 3840) if t < 3 else (vWc + 1, kk * 15360 + bs * 3840)
            W.append(f'ds_read_b64_tr_b16 {v(fW[kk][t]+2*bs,2)}, v{ad} offset:{off}')
    X = [f'ds_read_b128 {v(fX[kk][b],4)}, v{vXc+kk} offset:{2048*b}' for b in range(NB)]
    if DBG & 8:
        return X[:1]
    return W + X


def q_mfmas(kk):
    L = []
    for b in range(NB):
        x = v(fX[kk][b], 4)
        for t, acc in ((0, accQ), (1, accK), (2, accV), (3, accR)):
            w = v(fW[kk][t], 4)
            d = v(acc[b], 4)
            L.append(f'{mf} {d}, {x}, {w}, {d}' if t == 2 else f'{mf} {d}, {w}, {x}, {d}')
    if DBG & 1:
        L = L[:1]
    return L


a('s_mov_b32 s14, 0')
a('s_mov_b32 s15, 10')
a('s_waitcnt lgkmcnt(0)')
nonce_load()
srd(SRD_WS, S_WS, WS_SIZE)
stamp(1)
a('s_barrier')
stamp(2)
for x in q_reads(0):
    a(x)
a('.p2align 3')
a.label('L_qc_loop')
a('s_waitcnt lgkmcnt(0)')
a('s_sub_u32 s15, s15, 1')
a(f's_add_u32 s14, s14, {SL}')
a(f's_cmp_eq_u32 s14, {3*SL}')
a('s_cselect_b32 s14, 0, s14')
a('s_cmp_eq_u32 s15, 0')
fill = q_reads(1) + [f'v_add_u32_e64 v{vXc}, s14, v{vXb}', f'v_add_u32_e64 v{vXc+1}, s14, v{vXb+1}',
                     f'v_add_u32_e64 v{vWc}, s14, v{vWb}', f'v_add_u32_e64 v{vWc+1}, s14, v{vWb+1}']
for x in interleave(q_mfmas(0), fill):
    a(x)
a('s_waitcnt lgkmcnt(0)')
a('s_cbranch_scc1 L_qc_last')
a('s_barrier')
a('s_nop 0')
for x in interleave(q_mfmas(1), q_reads(0)):
    a(x)
a('s_branch L_qc_loop')
a.check_backedge('L_qc_loop')
a.label('L_qc_last')
stamp(3)
B = range(NB)
for x in q_mfmas(1):
    a(x)
for b in B:
    q, k, r = accQ[b], accK[b], accR[b]
    a(f'{cvt} v{q}, v{q}, v{q+1}')
    a(f'{cvt} v{q+1}, v{q+2}, v{q+3}')
    a(f'{cvt} v{k}, v{k}, v{k+1}')
    a(f'{cvt} v{k+1}, v{k+2}, v{k+3}')
    a(f'{cvt} v{k+2}, v{r}, v{r+1}')
    a(f'{cvt} v{k+3}, v{r+2}, v{r+3}')
    a(f'v_and_b32 v{q+2}, v{mG0}, v{k+2}')
    a(f'v_and_b32 v{q+3}, v{mG0}, v{k+3}')
for b in B:
    q = accQ[b]
    a(f'v_permlane16_swap_b32 v{q+2}, v{q+2}')
    a(f'v_permlane16_swap_b32 v{q+3}, v{q+3}')
SC = fX[0]; SP = fX[1]
for b in B:
    a(f'{mf} {v(SC[b],4)}, {v(accK[b],4)}, {v(accQ[b],4)}, {v(biasC,4)}')
    if b:
        a(f'{mf} {v(SP[b],4)}, {v(accK[b-1],4)}, {v(accQ[b],4)}, {v(biasP,4)}')
    vv = accV[b]
    a(f'{cvt} v{Vp+2+2*b}, v{vv}, v{vv+1}')
    a(f'{cvt} v{Vp+3+2*b}, v{vv+2}, v{vv+3}')
for b in B:
    a(f'{mf} {v(accR[b],4)}, {v(accK[b],4)}, {v(Ec,4)}, 0')
for b in B:
    if b:
        for r_ in range(4):
            a(f'v_max_f32 v{SC[b]+r_}, v{SC[b]+r_}, v{SP[b]+r_}')
    a(f'v_max3_f32 v{SP[b]}, v{SC[b]}, v{SC[b]+1}, v{SC[b]+2}')
    a(f'v_max_f32 v{SP[b]}, v{SP[b]}, v{SC[b]+3}')
    a(f'v_mov_b32 v{SP[b]+1}, v{SP[b]}')
for b in B:
    r = accR[b]
    a(f'{cvt} v{VRp+2+2*b}, v{r}, v{r+1}')
    a(f'{cvt} v{VRp+3+2*b}, v{r+2}, v{r+3}')
for b in B:
    a(f'v_permlane16_swap_b32 v{SP[b]+1}, v{SP[b]+1}')
for b in B:
    a(f'v_max_f32 v{SP[b]}, v{SP[b]}, v{SP[b]+1}')
    a(f'v_mov_b32 v{SP[b]+1}, v{SP[b]}')
for b in B:
    a(f'v_permlane32_swap_b32 v{SP[b]+1}, v{SP[b]+1}')
CS = 20 ** -0.5 * math.log2(math.e)
a(f's_mov_b32 s14, {hx(f2u(CS))}')
for b in B:
    a(f'v_max_f32 v{SP[b]}, v{SP[b]}, v{SP[b]+1}')
    a(f'v_mul_f32 v{SP[b]}, {hx(f2u(-CS))}, v{SP[b]}')
for b in B:
    for r_ in range(4):
        a(f'v_fma_f32 v{SC[b]+r_}, v{SC[b]+r_}, s14, v{SP[b]}')
    for r_ in range(4):
        a(f'v_exp_f32 v{SC[b]+r_}, v{SC[b]+r_}')
for b in B:
    c_, p_ = SC[b], SP[b]
    a(f'{cvt} v{c_}, v{c_}, v{c_+1}')
    a(f'{cvt} v{c_+1}, v{c_+2}, v{c_+3}')
    a(f'v_and_b32 v{p_+2}, v{mCur}, v{c_}')
    a(f'v_and_b32 v{p_+3}, v{mCur+1}, v{c_+1}')
    a(f'v_xor_b32 v{p_}, v{p_+2}, v{c_}')
    a(f'v_xor_b32 v{p_+1}, v{p_+3}, v{c_+1}')
for b in B:
    a(f'{mf} {v(accK[b],4)}, {v(ones,4)}, {v(SP[b],4)}, 0')
    a(f'{mf} {v(accQ[b],4)}, {v(Vp+2*b,4)}, {v(SP[b],4)}, 0')
    a(f'{mf} {v(accR[b],4)}, {v(VRp+2*b,4)}, {v(SP[b],4)}, 0')
for b in B:
    a(f'v_rcp_f32 v{accK[b]}, v{accK[b]}')
for b in B:
    q, k, r = accQ[b], accK[b], accR[b]
    for x in (q, q + 2, r, r + 2):
        a(f'v_pk_mul_f32 {v(x,2)}, {v(x,2)}, {v(k,2)} op_sel_hi:[1,0]')
    a(f'{cvt} v{q}, v{q}, v{q+1}')
    a(f'{cvt} v{q+1}, v{q+2}, v{q+3}')
    a(f'{cvt} v{r}, v{r}, v{r+1}')
    a(f'{cvt} v{r+1}, v{r+2}, v{r+3}')
    a(f'ds_write_b64 v{vOm}, {v(q,2)} offset:{OBLK*b}')
a('s_mov_b64 exec, 0xffff')
for b in B:
    a(f'ds_write_b64 v{vOm}, {v(accR[b],2)} offset:{OBLK*b+32}')
a('s_mov_b64 exec, -1')
a('s_waitcnt lgkmcnt(0)')
stamp(4)
a('s_barrier')

a.label('L_p2c')
rk = RA(2, 256)
vO = rk.get(2); vOr = rk.get(2); vGt = rk.get(1); vZa = rk.get(5); vOut = rk.get(2); vWa = rk.get(2); kt = rk.get(8)
accD = [rk.get(4) for t in range(5)]
accO = [rk.get(4) for t in range(5)]
NO = 6
oF = [rk.get(4) for i in range(NO)]
NR = 8
bF = [[rk.get(4) for t in range(5)] for k in range(NR)]
WsF = accO[0]
kP = oF[0]
a('s_and_b32 s4, s2, 1')
a('s_bfe_u32 s5, s2, 0x30003')
a('s_lshr_b32 s6, s2, 6')
a('s_and_b32 s7, s2, 6')
a('s_lshr_b32 s8, s6, 1')
a('s_add_u32 s7, s7, s8')
a('s_lshl_b32 s7, s7, 1')
a('s_add_u32 s4, s4, s7')
a('s_sub_u32 s7, 32, s4')
a('s_cmp_eq_u32 s4, 0')
a('s_cselect_b32 s7, 16, s7')
a('s_bitcmp1_b32 s6, 0')
a('s_cselect_b32 s4, s7, s4')
a('s_sub_u32 s7, 32, s4')
a('s_and_b32 s7, s7, 31')
a('s_sub_u32 s8, 7, s5')
a('s_cmp_ge_u32 s5, 4')
a('s_cselect_b32 s6, 1, 0')
a('s_cselect_b32 s7, s7, s4')
a('s_cselect_b32 s8, s8, s5')
a('s_sub_u32 s9, s3, 4')
a(f'v_and_b32 v{kt}, 15, v0')
a('s_cmp_lg_u32 s9, 0')
a('s_cbranch_scc1 L_p2_noz')
my_nonce(64)
a('s_and_b32 s65, s2, 7')
a('s_lshl_b32 s65, s65, 13')
a(f's_add_u32 s65, s65, {F_OFF}')
a(f'v_lshlrev_b32 v{kt+2}, 7, v{kt}')
a(f's_mov_b32 s66, {SPIN}')
a(f'buffer_load_dwordx4 {v(kP,4)}, v{kt+2}, {s(SRD_WS,4)}, s65 offen sc1')
a(f'v_mul_u32_u24 v{kt+4}, 49, v0')
a(f'v_lshrrev_b32 v{kt+4}, 10, v{kt+4}')
a(f'v_mul_u32_u24 v{kt+5}, 21, v{kt+4}')
a(f'v_sub_u32 v{kt+5}, v0, v{kt+5}')
a(f'v_cmp_gt_u32 vcc, 10, v{kt+5}')
a(f'v_mul_u32_u24 v{kt+4}, 1536, v{kt+4}')
a(f'v_lshl_add_u32 v{kt+4}, v{kt+5}, 4, v{kt+4}')
a(f'v_add_u32 v{kt+5}, 768, v{kt+4}')
a(f'v_subrev_u32 v{kt+4}, 160, v{kt+4}')
a(f'v_cndmask_b32 v{kt+3}, v{kt+4}, v{kt+5}, vcc')
a('s_mul_i32 s10, s7, 98304')
a('s_mul_i32 s11, s8, 160')
a('s_add_u32 s10, s10, s11')
a(f's_add_u32 s10, s10, {Z_OFF}')
a('s_waitcnt vmcnt(0)')
check(kP, 64)
a('s_cbranch_vccz L_polled_d')
poll('d', kt + 2, kP, 65, 64, 66, SLP_D)
stamp(5, 1)
a('s_mov_b32 exec_hi, 0x7fffffff')
a(f's_mov_b32 m0, {ZIMG}')
a('s_mov_b32 s11, 21')
a.label('L_zdma')
a(f'buffer_load_dwordx4 v{kt+3}, {s(SRD_WS,4)}, s10 offen sc1 lds')
a('s_add_u32 m0, m0, 1008')
a('s_add_u32 s10, s10, 4608')
a('s_sub_u32 s11, s11, 1')
a('s_cmp_lg_u32 s11, 0')
a('s_cbranch_scc1 L_zdma')
a('s_mov_b64 exec, 0x1fffff')
a(f'buffer_load_dwordx4 v{kt+3}, {s(SRD_WS,4)}, s10 offen sc1 lds')
a('s_mov_b64 exec, -1')
a.label('L_p2_noz')
a(f'v_lshrrev_b32 v{kt+1}, 4, v0')
a(f'v_lshlrev_b32 v{vO}, 4, v0')
a(f'v_lshrrev_b32 v{kt+2}, 5, v0')
a(f'v_mul_u32_u24 v{kt+3}, {327680-2560}, v{kt+2}')
a(f'v_add_u32 v{vO+1}, v{vO}, v{kt+3}')
a('s_cmp_eq_u32 s9, 1')
a(f's_cselect_b32 s15, {OIMG[1]}, {OIMG[0]}' if False else f's_mov_b32 s15, {OIMG[0]}')
a(f's_cselect_b32 s15, {OIMG[1]}, s15')
a('s_cmp_eq_u32 s9, 2')
a(f's_cselect_b32 s15, {OIMG[2]}, s15')
a('s_cmp_eq_u32 s9, 3')
a(f's_cselect_b32 s15, {OIMG[3]}, s15')
a(f'v_mul_u32_u24 v{kt+3}, 160, v{kt}')
a(f'v_lshl_add_u32 v{kt+3}, v{kt+1}, 4, v{kt+3}')
a(f'v_add_u32 v{vOr}, s15, v{kt+3}')
a(f'v_mul_u32_u24 v{kt+3}, 2400, v{kt+2}')
a(f'v_add_u32 v{vOr+1}, v{vOr}, v{kt+3}')
a('s_lshl_b32 s10, s4, 2')
a('s_add_u32 s10, s10, s9')
a('s_lshl_b32 s11, s10, 6')
a(f's_add_u32 s11, s11, {G_OFF}')
a('s_mul_i32 s10, s10, 2560')
srd(SRD_C, S_OUT, 2621440)
a('s_lshl_b32 s12, s9, 9')
a('s_add_u32 s12, s12, s4')
a(f'v_lshl_add_u32 v{kt+2}, v{kt}, 5, s12')
a(f'v_mul_u32_u24 v{vOut}, 1280, v{kt+2}')
a('s_mul_i32 s13, s5, 160')
a(f'v_add_u32 v{vOut}, s13, v{vOut}')
a(f'v_lshl_add_u32 v{vOut+1}, v{kt+1}, 3, v{vOut}')
a(f'v_and_b32 v{kt+3}, 1, v{kt+1}')
a(f'v_lshl_add_u32 v{vOut}, v{kt+3}, 5, v{vOut}')
a(f'v_and_b32 v{kt+3}, 2, v{kt+1}')
a(f'v_lshl_add_u32 v{vOut}, v{kt+3}, 3, v{vOut}')
a(f'v_cvt_f32_u32 v{kt+2}, v{kt+2}')
a('s_lshl_b32 s13, s6, 31')
a(f'v_xor_b32 v{kt+2}, s13, v{kt+2}')
a(f'v_cvt_f32_u32 v{kt+3}, v{kt+1}')
a(f'v_mul_f32 v{kt+3}, v{kt+3}, v{kt+2}')
a(f'v_mul_f32 v{kt+3}, {hx(f2u(4/2048.0))}, v{kt+3}')
for i in range(4):
    for jr in range(0, 4, 2):
        for e in range(2):
            a(f'v_fmamk_f32 v{kt+4+e}, v{kt+2}, {hx(f2u((16*i+jr+e)/2048.0))}, v{kt+3}')
        for e in range(2):
            a(f'v_cos_f32 v{kt+6+e}, v{kt+4+e}')
            a(f'v_sin_f32 v{kt+4+e}, v{kt+4+e}')
        for e in range(2):
            a(f'{cvt} v{WsF+4*i+jr+e}, v{kt+6+e}, v{kt+4+e}')
a('s_cmp_eq_u32 s6, 0')
a('s_cselect_b32 s13, 0, 80')
a('s_cselect_b32 s14, 1, -1')
a(f'v_mul_u32_u24 v{kt+4}, {4*336}, v{kt+1}')
for T in range(5):
    a(f'v_add_u32 v{kt+2}, {16*T}, v{kt}')
    a(f'v_mul_lo_u32 v{kt+2}, v{kt+2}, s14')
    a(f'v_add_u32 v{kt+2}, s13, v{kt+2}')
    a(f'v_and_b32 v{kt+3}, 1, v{kt+2}')
    a(f'v_xor_b32 v{kt+3}, 1, v{kt+3}')
    a(f'v_mul_u32_u24 v{kt+3}, 160, v{kt+3}')
    a(f'v_lshrrev_b32 v{kt+2}, 1, v{kt+2}')
    a(f'v_lshl_add_u32 v{kt+2}, v{kt+2}, 2, v{kt+3}')
    a(f'v_add_u32 v{vZa+T}, v{kt+2}, v{kt+4}')
a(f'v_lshrrev_b32 v{kt+2}, 5, v0')
a(f'v_bfe_u32 v{kt+3}, v0, 2, 3')
a(f'v_lshl_add_u32 v{kt+2}, v{kt+2}, 4, v{kt+3}')
a(f'v_mul_u32_u24 v{kt+2}, 160, v{kt+2}')
a(f'v_and_b32 v{kt+3}, 3, v0')
a(f'v_lshl_add_u32 v{vWa}, v{kt+3}, 3, v{kt+2}')
a(f'v_add_u32 v{vWa+1}, {WCH[2]}, v{vWa}')
a(f'v_add_u32 v{kt+4}, {WCH[1]}, v{vWa}')
a(f'v_lshlrev_b32 v{kt+2}, 2, v{kt}')
a('s_waitcnt vmcnt(0)')
stamp(6, 1)
a('s_barrier')
a(f'buffer_load_dword v{vGt}, v{kt+2}, {s(SRD_WS,4)}, s11 offen sc1')


def w_reads(ks):
    ch, kb = ks >> 2, ks & 3
    ad, base = {0: (vWa, WCH[0]), 1: (kt + 4, 0), 2: (vWa + 1, 0), 3: (vWa, 0), 4: (vWa + 1, WCH[4] - WCH[2])}[ch]
    return [f'ds_read_b64_tr_b16 {v(bF[ks%NR][T]+2*bs,2)}, v{ad} offset:{base+kb*5120+bs*1280+32*T}'
            for T in range(5) for bs in range(2)]


for st in range(4):
    for T in range(5):
        for jr in range(4):
            a(f'ds_read_b32 v{bF[st][T]+jr}, v{vZa+T} offset:{ZIMG+(16*st+jr)*336}')
for ks in range(4, 8):
    for x in w_reads(ks):
        a(x)
a('s_waitcnt lgkmcnt(15)')
for st in range(4):
    for T in range(5):
        d = v(accD[T], 4)
        a(f'{mf} {d}, {v(bF[st][T],4)}, {v(WsF+4*st,4)}, {"0" if st == 0 else d}')
    for x in w_reads(st):
        a(x)
a('s_mov_b32 m0, s15')
a('s_waitcnt lgkmcnt(0)')
stamp(7, 1)
a('s_barrier')
stamp(8, 1)
for i in range(20):
    hq2, r5 = divmod(i, 5)
    off = hq2 * 655360 + r5 * 1024 + (327680 - 2560 if r5 >= 3 else 0)
    if i:
        a(f's_add_u32 m0, m0, 1024')
        a(f's_add_u32 s11, s10, {off}')
    a(f'buffer_load_dwordx4 v{vO+(r5==2)}, {s(SRD_WS,4)}, s{11 if i else 10} offen sc1 lds')


def o_read(ks):
    hq2, r5 = divmod(ks, 5)
    off = hq2 * 5120 + r5 * 64 + (2400 if r5 >= 3 else 0)
    return f'ds_read_b128 {v(oF[ks%NO],4)}, v{vOr+(r5==2)} offset:{off}'


def o_need(ks):
    hq2, r5 = divmod(ks, 5)
    return hq2 * 5 + (3 if r5 < 2 else 5)


OD = 2
lds_seq = []
vm_have = -1


def emit_o(ks):
    global vm_have
    n = o_need(ks)
    if n > vm_have:
        a(f's_waitcnt vmcnt({20-n})')
        vm_have = n
    a(o_read(ks))
    lds_seq.append(('o', ks))


for ks in range(OD):
    emit_o(ks)
for ks in range(20):
    if ks + OD < 20:
        emit_o(ks + OD)
    need_ = [n for n, t_ in enumerate(lds_seq) if t_ in (('o', ks), ('w', ks))]
    a(f's_waitcnt lgkmcnt({min(15, len(lds_seq)-1-max(need_))})')
    M = []
    for T in range(5):
        d = v(accO[T], 4)
        M.append(f'{mf} {d}, {v(bF[ks%NR][T],4)}, {v(oF[ks%NO],4)}, {"0" if ks == 0 else d}')
    R = w_reads(ks + NR) if ks + NR < 20 else []
    lds_seq += [('w', ks + NR)] * len(R)
    for x in interleave(M, R, per=2):
        a(x)
stamp(9, 1)
for T in range(5):
    for r_ in range(0, 4, 2):
        a(f'v_pk_add_f32 {v(accD[T]+r_,2)}, {v(accD[T]+r_,2)}, {v(accO[T]+r_,2)} neg_lo:[0,1] neg_hi:[0,1]')
    for r_ in range(4):
        a(f'v_fma_f32 v{accD[T]+r_}, v{accD[T]+r_}, v{vGt}, v{accO[T]+r_}')
P = bF[0][0]
for T in range(5):
    a(f'{cvt} v{P+2*T}, v{accD[T]}, v{accD[T]+1}')
    a(f'{cvt} v{P+2*T+1}, v{accD[T]+2}, v{accD[T]+3}')
for T in (0, 2):
    a(f'v_permlane16_swap_b32 v{P+2*T}, v{P+2*T+2}')
    a(f'v_permlane16_swap_b32 v{P+2*T+1}, v{P+2*T+3}')
a(f'buffer_store_dwordx2 {v(P+8,2)}, v{vOut+1}, {s(SRD_C,4)}, 0 offen offset:128')
a(f'buffer_store_dwordx4 {v(P,4)}, v{vOut}, {s(SRD_C,4)}, 0 offen')
a(f'buffer_store_dwordx4 {v(P+4,4)}, v{vOut}, {s(SRD_C,4)}, 0 offen offset:64')
endpgm()

a.label('L_dft')
AIMG = 122880
a('s_lshr_b32 s7, s6, 1')
a('s_lshl_b32 s9, s5, 2')
a('s_add_u32 s7, s7, s9')
a('s_and_b32 s8, s6, 1')
dX = 2; dWr = 3
dD = 96
gT = 176
a(f'v_lshrrev_b32 v8, 3, v0')
a(f'v_mul_u32_u24 v9, 81920, v8')
a(f'v_and_b32 v10, 7, v0')
a(f'v_lshl_add_u32 v{dX}, v10, 4, v9')
a('s_lshr_b32 s14, s3, 2')
a('s_lshl_b32 s10, s7, 1')
a('s_add_u32 s9, s14, s10')
a('s_lshl_b32 s9, s9, 1')
a('s_add_u32 s62, s9, s4')
a('s_and_b32 s63, s3, 3')
a('s_lshl_b32 s10, s63, 9')
a('s_add_u32 s9, s62, s10')
a('s_mul_i32 s9, s9, 1280')
a('s_mul_i32 s15, s3, 5120')
a(f's_add_u32 s15, s15, {AIMG}')
a('v_lshlrev_b32 v13, 4, v0')
a('s_mov_b32 m0, s15')
a('s_waitcnt lgkmcnt(0)')
stamp(1)
srd(SRD_X, S_X, 2621440)
srd(SRD_G, S_GW, 1280)
a(f'buffer_load_dwordx4 v13, {s(SRD_G,4)}, 0 offen lds')
a(f'buffer_load_dwordx4 v13, {s(SRD_G,4)}, 0 offen offset:1024 lds')
for l in range(5):
    a(f'buffer_load_dwordx4 {v(dD+8*l,4)}, v{dX}, {s(SRD_X,4)}, s9 offen offset:{128*l}')
    a(f'buffer_load_dwordx4 {v(dD+8*l+4,4)}, v{dX}, {s(SRD_X,4)}, s9 offen offset:{128*l+640}')
nonce_load()
srd(SRD_WS, S_WS, WS_SIZE)
a(f'v_lshrrev_b32 v11, 4, v0')
a(f'v_xor_b32 v11, v11, v10')
a('s_and_b32 s9, s3, 1')
a('s_lshl_b32 s9, s9, 2')
a('v_xor_b32 v11, s9, v11')
a(f'v_lshlrev_b32 v12, 7, v8')
a(f'v_lshl_add_u32 v12, v11, 4, v12')
a(f'v_add_u32 v{dWr}, s15, v12')
a('s_lshl_b32 s11, s8, 31')
a('s_or_b32 s11, s11, 0x3f803f80')
a('s_mov_b32 s12, 0x05040100')
a('s_mov_b32 s13, 0x07060302')
a('v_lshlrev_b32 v5, 3, v11')
a('v_cvt_f32_u32 v5, v5')
a('s_lshl_b32 s9, s63, 4')
a('s_add_u32 s9, s9, s8')
a('v_lshl_add_u32 v6, v8, 1, s9')
a('s_mul_i32 s9, s63, 5120')
a('v_add_u32 v7, s9, v13')
a('s_cmp_ge_u32 s3, 4')
a('s_cbranch_scc1 L_dc')
a('s_branch L_dl')

a.label('L_gen')
a(f'v_add_u32 v{gT}, s64, v6')
a(f'v_cvt_f32_u32 v{gT}, v{gT}')
a(f'v_mul_f32 v{gT}, {hx(f2u(1/640.0))}, v{gT}')
a(f'v_mov_b32 v{gT+1}, v5')
a(f'v_add_u32 v{gT+2}, s65, v7')
a('s_mov_b32 s66, 5')
a.label('L_gen_loop')
a(f'v_mul_f32 v{gT+4}, v{gT+1}, v{gT}')
a(f'v_fract_f32 v{gT+4}, v{gT+4}')
for jj in range(1, 8):
    lit = {1: '1.0', 2: '2.0', 4: '4.0'}.get(jj)
    if lit:
        a(f'v_fma_f32 v{gT+4+jj}, v{gT}, {lit}, v{gT+4}')
    else:
        a(f'v_fmamk_f32 v{gT+4+jj}, v{gT}, {hx(f2u(float(jj)))}, v{gT+4}')
for jj in range(8):
    a(f'v_cos_f32 v{gT+12+jj}, v{gT+4+jj}')
for jj in range(8):
    a(f'v_sin_f32 v{gT+4+jj}, v{gT+4+jj}')
for jj in range(4):
    a(f'{cvt} v{gT+20+jj}, v{gT+12+2*jj}, v{gT+13+2*jj}')
a(f'ds_write_b128 v{gT+2}, {v(gT+20,4)}')
for jj in range(4):
    a(f'{cvt} v{gT+24+jj}, -v{gT+4+2*jj}, -v{gT+5+2*jj}')
a(f'ds_write_b128 v{gT+2}, {v(gT+24,4)} offset:20480')
a(f'v_add_f32 v{gT+1}, {hx(f2u(64.0))}, v{gT+1}')
a(f'v_add_u32 v{gT+2}, 1024, v{gT+2}')
a('s_sub_u32 s66, s66, 1')
a('s_cmp_lg_u32 s66, 0')
a('s_cbranch_scc1 L_gen_loop')
a('s_setpc_b64 s[60:61]')


def gen(blk, slot):
    a(f's_mov_b32 s64, {64*blk}')
    a(f's_mov_b32 s65, {40960*slot}')
    a('s_call_b64 s[60:61], L_gen')


a.label('L_fold')
gw = 136
a(f'v_mov_b32 v14, {hx(OOB)}')
a('s_cmp_lg_u32 s14, s8')
a('s_cbranch_scc1 L_fold_go')
a(f'v_lshl_add_u32 v14, v10, 4, s15')
a('s_waitcnt vmcnt(10)')
for i in range(10):
    a(f'ds_read_b128 {v(gw+4*i,4)}, v14 offset:{128*i}')
acc = 16
for q in range(4):
    a(f'v_mov_b32 v{acc+q}, 0')
a('s_and_b32 s64, s62, 31')
a('s_lshl_b32 s64, s64, 8')
a('s_lshr_b32 s65, s62, 5')
a('s_lshl_b32 s65, s65, 2')
a('s_add_u32 s64, s64, s65')
a('s_lshl_b32 s65, s63, 6')
a('s_add_u32 s64, s64, s65')
a(f's_add_u32 s64, s64, {G_OFF}')
a('v_lshl_add_u32 v14, v8, 3, s64')
a(f'v_mov_b32 v15, {hx(OOB)}')
a('v_cmp_eq_u32 vcc, 0, v10')
a('v_cndmask_b32 v14, v15, v14, vcc')
a('s_waitcnt vmcnt(0) lgkmcnt(0)')
for l in range(5):
    for h in range(2):
        for q in range(4):
            a(f'v_dot2c_f32_bf16 v{acc+q}, v{dD+8*l+4*h+q}, v{gw+4*(l+5*h)+q}')
a(f'v_add_f32 v{acc}, v{acc}, v{acc+1}')
a(f'v_add_f32 v{acc+2}, v{acc+2}, v{acc+3}')
a(f'v_add_f32 v{acc}, v{acc}, v{acc+2}')
a(f'v_add_f32_dpp v{acc}, v{acc}, v{acc} quad_perm:[1,0,3,2] row_mask:0xf bank_mask:0xf')
a(f'v_add_f32_dpp v{acc}, v{acc}, v{acc} quad_perm:[2,3,0,1] row_mask:0xf bank_mask:0xf')
a(f'v_add_f32_dpp v{acc}, v{acc}, v{acc} row_half_mirror row_mask:0xf bank_mask:0xf')
a(f'v_mul_f32 v{acc}, {hx(f2u(-math.log2(math.e)))}, v{acc}')
a(f'v_exp_f32 v{acc}, v{acc}')
a(f'v_add_f32 v{acc}, 1.0, v{acc}')
a(f'v_rcp_f32 v9, v{acc}')
a.label('L_fold_go')
t = 16
a(f'v_mov_b32 v15, s11')
for l in range(5):
    a(f's_waitcnt vmcnt({8-2*l})')
    lo, hi = dD + 8 * l, dD + 8 * l + 4
    for q in range(4):
        a(f'v_perm_b32 v{t+2*q}, v{hi+q}, v{lo+q}, s12')
        a(f'v_perm_b32 v{t+2*q+1}, v{hi+q}, v{lo+q}, s13')
    for q in range(8):
        a(f'v_dot2_f32_bf16 v{t+q}, v{t+q}, v15, 0')
    for q in range(4):
        a(f'{cvt} v{lo+q}, v{t+2*q}, v{t+2*q+1}')
    a(f'ds_write_b128 v{dWr}, {v(lo,4)} offset:{l*1024}')
a(f'buffer_store_dword v9, v14, {s(SRD_WS,4)}, 0 offen sc1')
a('s_waitcnt lgkmcnt(0)')
a('s_setpc_b64 s[60:61]')

a.label('L_dl')
gen(2, 0)
gen(3, 2)
stamp(2)
a('s_call_b64 s[60:61], L_fold')
stamp(3)
a('s_barrier')
if PFW:
    srd(SRD_B, S_WO, 819200)
    a('s_lshr_b32 s60, s2, 3')
    a('s_add_u32 s60, s60, s2')
    a('s_lshl_b32 s60, s60, 2')
    a('s_add_u32 s60, s60, s3')
    a('s_and_b32 s60, s60, 31')
    a('s_mul_i32 s60, s60, 25600')
    a('v_lshlrev_b32 v12, 7, v0')
    for i in range(4):
        if i == 3:
            a('s_mov_b64 exec, 0xff')
        a(f'buffer_load_dword v{112+i}, v12, {s(SRD_B,4)}, s60 offen')
        a('s_add_u32 s60, s60, 8192')
    a('s_mov_b64 exec, -1')
a('s_barrier')
stamp(4)
gen(1, 3)
a('s_waitcnt lgkmcnt(0)')
a('s_barrier')
gen(4, 0)
wo_addr()
a('s_lshr_b32 s64, s2, 2')
a('s_lshl_b32 s64, s64, 7')
a('s_and_b32 s65, s2, 3')
a('s_lshl_b32 s65, s65, 2')
a('s_add_u32 s64, s64, s65')
a(f's_add_u32 s64, s64, {F_OFF}')
a(f'v_lshl_add_u32 v22, v0, 13, s64')
a(f'v_mov_b32 v23, s{S_N}')
a(f'v_mov_b32 v24, s{S_N+1}')
a(f'v_and_b32 v25, 1, v0')
a(f'v_cmp_eq_u32 vcc, 1, v25')
a(f'v_cndmask_b32 v23, v23, v24, vcc')
a(f'v_add_u32 v23, 1, v23')
a('s_waitcnt lgkmcnt(0)')
a('s_barrier')
a('s_waitcnt vmcnt(0)')
stamp(5)
a('s_barrier')
stamp(6)
a('s_cmp_lg_u32 s3, 3')
a('s_cbranch_scc1 L_dl_nof')
a('s_mov_b64 exec, 0xff')
a(f'buffer_store_dword v23, v22, {s(SRD_WS,4)}, 0 offen sc0 sc1')
a('s_mov_b64 exec, -1')
a.label('L_dl_nof')
for ch in (0, 1, 2, 3, 4):
    wo_chunk(ch)
a('s_mov_b32 s65, s3')
a('s_waitcnt vmcnt(0)')
stamp(7)
a('s_branch L_p2l')

a.label('L_dc')
rd = RA(24, 96)
vF = rd.get(4); vZ = rd.get(2)
cC = rd.get(8); cP = rd.get(8); cN = rd.get(8)
pa = rd.get(8); pb = rd.get(8)
t0 = rd.get(6)
rd2 = RA(176, 256)
accA = rd2.get(16); accB = rd2.get(16); Zr = rd2.get(16); Zi = rd2.get(16)
NFB = 8
AF = dD
ring = [76, 80, 84, 88, 240, 244, 248, 252]
assert rd.n <= 76 and rd2.n <= 240
gen(0, 1)
a('s_or_b32 s64, s63, s8')
a('s_cmp_lg_u32 s64, 0')
a('s_cbranch_scc1 L_dc_norow')
a('v_lshlrev_b32 v12, 10, v8')
a('v_lshl_add_u32 v12, v10, 4, v12')
for q in range(4):
    a(f'v_mov_b32 v{16+q}, 0xbf803f80')
a('s_mov_b32 exec_hi, 0xff')
a(f'ds_write_b128 v12, v[16:19] offset:{40960+20480}')
a('s_mov_b32 exec_hi, -1')
a.label('L_dc_norow')
a(f'v_and_b32 v{t0}, 31, v0')
a(f'v_lshrrev_b32 v{t0+1}, 5, v0')
a(f'v_cvt_f32_u32 v{t0+2}, v{t0}')
a(f'v_cvt_f32_u32 v{t0+3}, v{t0+1}')
a(f'v_mul_f32 v{t0+3}, v{t0+3}, v{t0+2}')
a(f'v_mul_f32 v{t0+3}, {hx(f2u(0.125))}, v{t0+3}')
for i in range(8):
    for e in range(2):
        r_ = 2 * i + e
        kap = 8 * (r_ >> 2) + (r_ & 3)
        a(f'v_fmamk_f32 v{accA+e}, v{t0+2}, {hx(f2u(kap/32.0))}, v{t0+3}')
    for e in range(2):
        a(f'v_cos_f32 v{accA+2+e}, v{accA+e}')
        a(f'v_sin_f32 v{accA+4+e}, v{accA+e}')
    a(f'{cvt} v{cC+i}, v{accA+2}, v{accA+3}')
    a(f'{cvt} v{cN+i}, v{accA+4}, v{accA+5}')
    a(f'v_xor_b32 v{cP+i}, 0x80008000, v{cN+i}')
a(f'v_lshrrev_b32 v{t0+2}, 3, v{t0}')
a(f'v_mul_u32_u24 v{t0+2}, 5120, v{t0+2}')
a(f'v_and_b32 v{t0+3}, 7, v0')
a(f'v_lshl_add_u32 v{t0+2}, v{t0+3}, 7, v{t0+2}')
a(f'v_bfe_u32 v{t0+3}, v0, 1, 3')
a(f'v_xor_b32 v{t0+3}, v{t0+3}, v{t0+1}')
a(f'v_lshl_add_u32 v{t0+2}, v{t0+3}, 4, v{t0+2}')
stamp(2)
a('s_call_b64 s[60:61], L_fold')
stamp(3)
a('s_bfe_u32 s14, s3, 0x10001')
a('s_and_b32 s6, s3, 1')
a('s_mul_i32 s15, s14, 20480')
a(f's_add_u32 s15, s15, {AIMG}')
for q in range(4):
    a(f'v_xor_b32 v{vF+q}, {32*q}, v{t0+2}')
    a(f'v_add_u32 v{vF+q}, s15, v{vF+q}')
a('s_mul_i32 s61, s6, 40960')
a('s_sub_u32 s15, s15, s61')
a(f'v_mul_u32_u24 v{t0+3}, {4*98304}, v{t0+1}')
a(f'v_lshl_add_u32 v{vZ}, v{t0}, 2, v{t0+3}')
a(f'v_add_u32 v{t0+3}, 640, v{t0+3}')
a(f'v_mov_b32 v{t0+4}, {hx(OOB)}')
a(f'v_cmp_eq_u32 vcc, 0, v{t0}')
a(f'v_cndmask_b32 v{vZ+1}, v{t0+4}, v{t0+3}, vcc')
a(f'v_cndmask_b32_e64 v{t0+5}, -1, 0, vcc')
a('s_lshl_b32 s62, s7, 1')
a('s_add_u32 s62, s62, s14')
a('s_lshl_b32 s62, s62, 1')
a('s_add_u32 s62, s62, s4')
a('s_lshl_b32 s62, s62, 1')
a('s_add_u32 s62, s62, s8')
a('s_mul_i32 s62, s62, 768')
a('s_xor_b32 s63, s6, 1')
a('s_lshl_b32 s61, s63, 8')
a('s_add_u32 s62, s62, s61')
a('s_or_b32 s63, s63, s8')
for r_ in range(16):
    a(f's_add_u32 s{64+r_}, s62, {Z_OFF + (8*(r_>>2)+(r_&3))*98304}')
a('s_barrier')
a('s_setprio 2')
for ks in range(20):
    a(f'ds_read_b128 {v(AF+4*ks,4)}, v{vF+(ks&3)} offset:{(ks>>2)*1024}')
for q in range(4):
    a(f'v_subrev_u32 v{vF+q}, s15, v{vF+q}')
a('s_waitcnt lgkmcnt(0)')
a('s_barrier')
stamp(4)
DEPTH = 6
seq = [(blk, tau, ks) for blk in range(3) for tau in range(2) for ks in range(20)]


def d_read(n):
    blk, tau, ks = seq[n]
    L = []
    if tau == 0 and ks == 0 and blk > 0:
        L.append('s_waitcnt lgkmcnt(0)')
        L.append('s_barrier')
        L += stamps(5 + blk, 2)
        for q in range(4):
            L.append(f'v_add_u32 v{vF+q}, {hx(81920 if blk == 1 else -81920)}, v{vF+q}')
    L.append(f'ds_read_b128 {v(ring[n%NFB],4)}, v{vF+(ks&3)} offset:{tau*20480+(ks>>2)*1024}')
    return L


def second_stage():
    return [
        f'{M32} {v(Zr,16)}, {v(cC,4)}, {v(pa,4)}, 0',
        f'{M32} {v(Zi,16)}, {v(cP,4)}, {v(pa,4)}, 0',
        f'{M32} {v(Zr,16)}, {v(cC+4,4)}, {v(pa+4,4)}, {v(Zr,16)}',
        f'{M32} {v(Zi,16)}, {v(cP+4,4)}, {v(pa+4,4)}, {v(Zi,16)}',
        f'{M32} {v(Zr,16)}, {v(cN,4)}, {v(pb,4)}, {v(Zr,16)}',
        f'{M32} {v(Zi,16)}, {v(cC,4)}, {v(pb,4)}, {v(Zi,16)}',
        f'{M32} {v(Zr,16)}, {v(cN+4,4)}, {v(pb+4,4)}, {v(Zr,16)}',
        f'{M32} {v(Zi,16)}, {v(cC+4,4)}, {v(pb+4,4)}, {v(Zi,16)}',
    ]


def z_out(off, va):
    return [[f'{cvt} v{Zr+r_}, v{Zr+r_}, v{Zi+r_}',
             f'buffer_store_dword v{Zr+r_}, v{va}, {s(SRD_WS,4)}, s{64+r_} offen offset:{off} sc1'] for r_ in range(16)]


def special320():
    a('s_cmp_lg_u32 s63, 0')
    a('s_cbranch_scc1 L_dc_nospec')
    a(f'{M32} {v(Zr,16)}, {v(cC,4)}, {v(pb,4)}, 0')
    a(f'{M32} {v(Zi,16)}, {v(cP,4)}, {v(pb,4)}, 0')
    a(f'{M32} {v(Zr,16)}, {v(cC+4,4)}, {v(pb+4,4)}, {v(Zr,16)}')
    a(f'{M32} {v(Zi,16)}, {v(cP+4,4)}, {v(pb+4,4)}, {v(Zi,16)}')
    for i in range(8):
        a(f'v_and_b32 v{pb+i}, v{t0+5}, v{pb+i}')
    for x in z_out(0, vZ + 1):
        a(x[0]); a(x[1])
    a('s_nop 1')
    a.label('L_dc_nospec')


for n in range(DEPTH):
    for x in d_read(n):
        a(x)
for n, (blk, tau, ks) in enumerate(seq):
    if blk == 2 and tau == 0 and ks == 0:
        a('s_cmp_lg_u32 s6, 0')
        a('s_cbranch_scc1 L_dc_drain')
    rl = d_read(n + DEPTH) if n + DEPTH < len(seq) else []
    pend = min(len(seq), n + DEPTH) - n - 1
    a(f's_waitcnt lgkmcnt({pend})')
    acc = accA if tau == 0 else accB
    cin = '0' if ks == 0 else v(acc, 16)
    a(f'{M32} {v(acc,16)}, {v(AF+4*ks,4)}, {v(ring[n%NFB],4)}, {cin}')
    for x in rl:
        a(x)
    if tau == 0 and blk > 0:
        if 4 <= ks < 8:
            for i in (2 * (ks - 4), 2 * (ks - 4) + 1):
                a(f'{cvt} v{pb+i}, v{accB+2*i}, v{accB+2*i+1}')
        if ks == 9 and blk == 1:
            special320()
        if 10 <= ks < 18:
            a(second_stage()[ks - 10])
    if tau == 1:
        if 4 <= ks < 8:
            for i in (2 * (ks - 4), 2 * (ks - 4) + 1):
                a(f'{cvt} v{pa+i}, v{accA+2*i}, v{accA+2*i+1}')
        if blk > 0 and 2 <= ks < 18:
            for x in z_out((blk - 1) * 128, vZ)[ks - 2]:
                a(x)
a(f'v_add_u32 v{vZ}, 128, v{vZ}')
a.label('L_dc_drain')
stamp(8, 2)
a('s_nop 11')
for i in range(8):
    a(f'{cvt} v{pb+i}, v{accB+2*i}, v{accB+2*i+1}')
for x in second_stage():
    a(x)
for x in z_out(128, vZ):
    a(x[0]); a(x[1])
stamp(9, 2)
a('s_waitcnt vmcnt(0) lgkmcnt(0)')
a('s_barrier')
a('s_branch L_p2c')

a.label('L_exit')
a('s_endpgm')
if PROF:
    a.label('L_prof_end')
    a('s_waitcnt vmcnt(0)')
    a('s_memtime s[76:77]')
    a('s_memrealtime s[78:79]')
    a('s_waitcnt lgkmcnt(0)')
    a(f's_mov_b32 s72, s{S_WS}')
    a(f's_mov_b32 s73, s{S_WS+1}')
    a('s_mov_b32 s74, 0x1000000')
    a('s_mov_b32 s75, 0x20000')
    a('v_mov_b32 v2, s100')
    for i in range(1, NST):
        a(f's_sub_u32 s71, s{80+2*i}, s80')
        a(f's_cmp_eq_u32 s{80+2*i}, 0')
        a(f's_cselect_b32 s71, 0, s71')
        a(f'v_mov_b32 v{2+i}, s71')
    a('s_sub_u32 s76, s76, s80')
    a('v_mov_b32 v12, s76')
    a('v_mov_b32 v13, s78')
    a('s_lshl_b32 s71, s2, 3')
    a('s_add_u32 s71, s71, s3')
    a('s_lshl_b32 s71, s71, 6')
    a(f's_add_u32 s71, s71, {PROF_OFF}')
    a('v_mov_b32 v1, s71')
    a('buffer_store_dwordx4 v[2:5], v1, s[72:75], 0 offen')
    a('buffer_store_dwordx4 v[6:9], v1, s[72:75], 0 offen offset:16')
    a('buffer_store_dwordx4 v[10:13], v1, s[72:75], 0 offen offset:32')
    a('s_endpgm')

hdr = open('cdna_kernels/' + NAME + '.s.ref').read().split('; Override launch')[0]
out = hdr
out += f'; @launch grid=(256,1,1) block=(512,1,1) lds=163840\n'
out += '.amdgcn_target "amdgcn-amd-amdhsa--gfx950"\n.text\n'
out += a.text()
out += f'''.section .rodata,"a"
.p2align 6
.amdhsa_kernel {KN}
  .amdhsa_next_free_vgpr 256
  .amdhsa_next_free_sgpr 102
  .amdhsa_accum_offset 256
  .amdhsa_group_segment_fixed_size 0
  .amdhsa_kernarg_size 96
  .amdhsa_user_sgpr_count 2
  .amdhsa_user_sgpr_kernarg_segment_ptr 1
  .amdhsa_system_sgpr_workgroup_id_x 1
.end_amdhsa_kernel
'''
open(sys.argv[1], 'w').write(out)
print('wrote', sys.argv[1], 'lines', out.count('\n'), 'nops', a.nnop, 'qc vgpr', ra.hi, 'p2 vgpr', rk.hi)
```

```python
import re, subprocess

TRANS = ('v_exp_f32', 'v_log_f32', 'v_rcp_f32', 'v_rsq_f32', 'v_sqrt_f32', 'v_sin_f32', 'v_cos_f32')


def _regs(tok):
    tok = tok.strip()
    tok = tok.lstrip('-')
    m = re.fullmatch(r'abs\((.*)\)', tok) or re.fullmatch(r'\|(.*)\|', tok)
    if m:
        tok = m.group(1)
    m = re.fullmatch(r'([vsa])(\d+)', tok)
    if m:
        return {m.group(1) + m.group(2)}
    m = re.fullmatch(r'([vsa])\[(\d+):(\d+)\]', tok)
    if m:
        return {m.group(1) + str(i) for i in range(int(m.group(2)), int(m.group(3)) + 1)}
    if tok in ('vcc', 'vcc_lo', 'vcc_hi'):
        return {'vcc'}
    if tok in ('exec', 'exec_lo', 'exec_hi'):
        return {'exec'}
    if tok == 'm0':
        return {'m0'}
    return set()


class Ins:
    def __init__(self, text):
        self.text = text
        t = text.split(';')[0].strip()
        self.label = t.endswith(':')
        self.directive = t.startswith('.')
        self.op = ''
        self.w = set()
        self.r = set()
        self.kind = 'other'
        self.states = 1
        if self.label or self.directive or not t:
            self.states = 0
            return
        parts = t.split(None, 1)
        op = parts[0]
        self.op = op
        rest = parts[1] if len(parts) > 1 else ''
        ops = [o.strip() for o in re.split(r',\s*(?![^\[]*\])', rest)] if rest else []
        mods = ''
        if ops:
            last = ops[-1].split(None, 1)
            ops[-1] = last[0]
            mods = last[1] if len(last) > 1 else ''
        self.ops = ops
        self.mods = mods
        R = [_regs(o) for o in ops]
        base = re.sub(r'_(e32|e64|dpp|sdwa)$', '', op)
        self.base = base
        if op == 's_nop':
            self.states = int(ops[0], 0) + 1
            self.kind = 'nop'
        elif op.startswith('v_mfma'):
            self.kind = 'mfma'
            self.passes = 8 if '32x32' in op else 4
            self.w = R[0]
            self.ab = R[1] | R[2]
            self.c = R[3]
            self.r = self.ab | self.c
        elif op.startswith('v_'):
            self.kind = 'valu'
            self.trans = base in TRANS
            self.dpp = op.endswith('_dpp')
            self.perm = op.startswith('v_permlane')
            self.rdlane = base in ('v_readfirstlane_b32', 'v_readlane_b32')
            if self.perm:
                self.w = R[0] | R[1]
                self.r = R[0] | R[1]
            elif base in ('v_add_co_u32', 'v_sub_co_u32', 'v_addc_co_u32', 'v_subrev_co_u32'):
                self.w = R[0] | R[1]
                self.r = set().union(*R[2:])
            else:
                self.w = R[0]
                self.r = set().union(*R[1:]) if len(R) > 1 else set()
                if base in ('v_fmac_f32', 'v_dot2c_f32_bf16') or self.dpp:
                    self.r |= R[0]
                if base.startswith('v_cmpx'):
                    self.w |= {'exec'}
        elif op.startswith('ds_'):
            self.kind = 'ds'
            if 'read' in op or 'permute' in op or 'swizzle' in op:
                self.w = R[0]
                self.r = set().union(*R[1:])
            else:
                self.r = set().union(*R)
        elif op.startswith('buffer_') or op.startswith('global_'):
            self.kind = 'vmem'
            self.lds = bool(re.search(r'\blds\b', mods)) or '_lds_' in op
            self.wide_store = False
            if 'load' in op and not self.lds:
                self.w = R[0]
                self.r = set().union(*R[1:])
            else:
                self.r = set().union(*R) if R else set()
                if self.lds:
                    self.r |= {'m0'}
                if 'store' in op and ('x4' in op or 'x3' in op):
                    self.wide_store = True
                    self.data = R[0] if op.startswith('buffer_') else R[1]
        elif op.startswith('s_'):
            self.kind = 'salu'
            nodst = ('s_cmp', 's_cbranch', 's_branch', 's_waitcnt', 's_barrier', 's_endpgm', 's_setprio', 's_sleep',
                     's_bitcmp', 's_setpc')
            if op.startswith(nodst):
                self.r = set().union(*R) if R else set()
            else:
                self.w = R[0] if R else set()
                self.r = set().union(*R[1:]) if len(R) > 1 else set()
                if 'saveexec' in op:
                    self.w |= {'exec'}


def need(p, c):
    n = 0
    isv = lambda s: {x for x in s if x[0] in 'va' and x != 'vcc'}
    iss = lambda s: {x for x in s if (x[0] == 's') or x == 'vcc'}
    if p.kind == 'valu':
        pw = isv(p.w)
        if c.kind == 'mfma' and pw & c.r:
            n = max(n, 2)
        if c.kind == 'valu':
            if p.trans and not c.trans and pw & c.r:
                n = max(n, 1)
            if (c.perm or c.dpp) and pw & c.r:
                n = max(n, 2)
            if c.rdlane and pw & c.r:
                n = max(n, 1)
            if iss(p.w) & c.r:
                n = max(n, 4 if c.rdlane else 2)
            if 'exec' in p.w:
                n = max(n, 5)
            if p.base.startswith('v_dot') and pw & (c.r | c.w):
                same_c = c.base == p.base and not (pw & set().union(*[_regs(o) for o in c.ops[1:3]]))
                if not same_c:
                    n = max(n, 3)
        if c.kind in ('vmem', 'ds', 'mfma') and p.base.startswith('v_dot') and pw & c.r:
            n = max(n, 3)
        if c.kind in ('vmem', 'ds') and p.trans and pw & c.r:
            n = max(n, 1)
        if c.kind == 'vmem' and iss(p.w) & c.r:
            n = max(n, 5)
        if c.kind == 'salu' and iss(p.w) & c.r:
            n = max(n, 2)
        if c.kind == 'mfma' and 'exec' in p.w:
            n = max(n, 4)
    elif p.kind == 'mfma':
        big = p.passes == 8
        if c.kind == 'mfma':
            if p.w & c.ab:
                n = max(n, 12 if big else 8)
            if p.w & c.c and not (p.w == c.c and p.passes == c.passes):
                n = max(n, 10 if big else 6)
        elif c.kind == 'valu':
            if p.w & (c.r | c.w):
                n = max(n, 12 if big else 8)
            if p.c & c.w:
                n = max(n, 7 if big else 3)
        elif c.kind in ('vmem', 'ds'):
            if p.w & (c.r | c.w):
                n = max(n, 12 if big else 8)
    elif p.kind == 'salu':
        if 'm0' in p.w and c.kind == 'vmem' and c.lds:
            n = max(n, 1)
    elif p.kind == 'vmem':
        if p.wide_store and p.data & c.w:
            n = max(n, 2 if c.kind == 'valu' else 1)
    return n


class Asm:
    def __init__(self):
        self.L = []
        self.nnop = 0

    def __call__(self, text):
        for line in text.split('\n'):
            line = line.strip()
            if line:
                self.raw(line)

    def raw(self, line):
        c = Ins(line)
        if c.states:
            dist = 0
            pad = 0
            for p in reversed(self.L):
                if dist >= 20:
                    break
                if p.states:
                    nd = need(p, c)
                    if nd > dist:
                        pad = max(pad, nd - dist)
                    dist += p.states
                if p.op in ('s_branch', 's_endpgm', 's_setpc_b64'):
                    break
            while pad > 0:
                k = min(pad, 16)
                self.L.append(Ins(f's_nop {k - 1}'))
                self.nnop += k
                pad -= k
        self.L.append(c)

    def label(self, name):
        self.L.append(Ins(name + ':'))

    def check_backedge(self, label):
        idx = [i for i, x in enumerate(self.L) if x.label and x.text.split(':')[0].strip() == label][0]
        head = [x for x in self.L[idx:] if x.states][:24]
        tail = [x for x in self.L[-40:] if x.states]
        for ci, c in enumerate(head):
            dist = sum(x.states for x in head[:ci])
            for p in reversed(tail):
                nd = need(p, c)
                assert nd <= dist, f'back-edge hazard {p.text} -> {c.text} need {nd} have {dist}'
                dist += p.states
                if dist >= 20:
                    break

    def sizes(self):
        src = '.amdgcn_target "amdgcn-amd-amdhsa--gfx950"\n.text\n' + '\n'.join(x.text for x in self.L if not x.directive) + '\n'
        open('_sz.s', 'w').write(src)
        subprocess.run(['clang', '-x', 'assembler', '-target', 'amdgcn-amd-amdhsa', '-mcpu=gfx950', '-c',
                        '_sz.s', '-o', '_sz.o'], check=True)
        d = subprocess.run(['llvm-objdump', '-d', '--mcpu=gfx950', '_sz.o'], capture_output=True, text=True).stdout
        sz = [4 * len(m.group(1).split()) for m in re.finditer(r'// [0-9A-F]+: ((?:[0-9A-F]{8} ?)+)', d)]
        ins = [x for x in self.L if x.states]
        assert len(sz) == len(ins), (len(sz), len(ins))
        for x, n in zip(ins, sz):
            x.size = n

    def align8(self, minrun=2):
        self.sizes()
        off = 0
        L = self.L
        n = len(L)
        promoted = 0
        for i, x in enumerate(L):
            if x.directive:
                m = re.match(r'\.p2align (\d+)', x.text)
                if m:
                    al = 1 << int(m.group(1))
                    off = (off + al - 1) // al * al
                continue
            if not x.states:
                continue
            if x.size == 4 and off % 8 == 0:
                run = 0
                for y in L[i + 1:]:
                    if y.directive:
                        break
                    if not y.states:
                        continue
                    if y.size != 8:
                        break
                    run += 1
                    if run >= minrun:
                        break
                if run >= minrun and x.kind == 'valu' and not x.rdlane and not x.op.endswith(('_e64', '_e32')) \
                        and not x.base.startswith(('v_dot2c', 'v_fmac')):
                    x.text = x.text.replace(x.op, x.op + '_e64', 1)
                    x.size = 8
                    promoted += 1
            off += x.size
        return promoted, off

    def text(self):
        out = []
        for x in self.L:
            out.append(x.text if (x.label or x.directive) else '    ' + x.text)
        return '\n'.join(out) + '\n'


class RA:
    def __init__(self, start, limit):
        self.n = start
        self.limit = limit
        self.hi = start

    def get(self, k=1, align=None):
        align = align or (2 if k > 1 else 1)
        self.n = (self.n + align - 1) // align * align
        r = self.n
        self.n += k
        assert self.n <= self.limit, f'out of registers {self.n} > {self.limit}'
        self.hi = max(self.hi, self.n)
        return r


def v(r, n=1):
    return f'v{r}' if n == 1 else f'v[{r}:{r + n - 1}]'


def s(r, n=1):
    return f's{r}' if n == 1 else f's[{r}:{r + n - 1}]'


def interleave(main, fill, start=0, per=1):
    out = []
    fi = 0
    for i, m in enumerate(main):
        out.append(m)
        if i >= start:
            for _ in range(per):
                if fi < len(fill):
                    out.append(fill[fi])
                    fi += 1
    out += fill[fi:]
    return out


def _cost(x):
    if x.kind == 'mfma':
        return 8
    if x.kind == 'valu' and (x.trans or x.perm):
        return 8
    return 4


def schedule(lines, mfma_first=True, by_order_from=None):
    I = [Ins(l) for l in lines]
    n = len(I)
    preds = [[] for _ in range(n)]
    succs = [[] for _ in range(n)]
    for j in range(n):
        for i in range(j):
            raw = I[i].w & I[j].r
            war = I[i].r & I[j].w
            waw = I[i].w & I[j].w
            implicit = ('exec' in I[i].w and I[j].kind in ('valu', 'ds', 'vmem', 'mfma')) or \
                       ('exec' in I[j].w and I[i].kind in ('valu', 'ds', 'vmem', 'mfma'))
            if raw or war or waw or implicit:
                preds[j].append(i)
                succs[i].append(j)
    lat = lambda i, j: _cost(I[i]) + 4 * need(I[i], I[j]) + (8 if I[i].kind == 'mfma' and (I[i].w & I[j].r) and I[j].kind == 'mfma' else 0)
    prio = [0] * n
    for i in range(n - 1, -1, -1):
        prio[i] = _cost(I[i]) + max([lat(i, j) - _cost(I[i]) + prio[j] for j in succs[i]] + [0])
    if by_order_from is not None:
        for i in range(by_order_from, n):
            prio[i] = -i
    done = [None] * n
    order = []
    left = set(range(n))
    npred = [len(p) for p in preds]
    avail = {i for i in range(n) if npred[i] == 0}
    t = 0
    mf_free = 0
    pos = 0
    while left:
        best = None
        for j in avail:
            pad = max([need(I[i], I[j]) - (pos - done[i] - 1) for i in preds[j]] + [0])
            stall = 4 * pad
            if I[j].kind == 'mfma':
                stall = max(stall, mf_free - t)
            bonus = 1 if (mfma_first and I[j].kind == 'mfma' and stall == 0) else 0
            key = (stall, -bonus, -prio[j], j)
            if best is None or key < best[0]:
                best = (key, j, pad)
        key, j, pad = best
        t += key[0]
        pos += pad
        done[j] = pos
        pos += 1
        if I[j].kind == 'mfma':
            mf_free = t + 4 * I[j].passes
        t += _cost(I[j])
        order.append(lines[j])
        left.remove(j)
        avail.remove(j)
        for k in succs[j]:
            npred[k] -= 1
            if npred[k] == 0:
                avail.add(k)
    return order, t
```

```python
import sys, struct, math
from asmlib import *

NAME = 'gated_mix__spectral_fnet__sliding_local_dilated__prompt'
PROF = 0
PFW = 1
SLP_D = 3
SLP_Q = 2
DBG = 0
PK = 1
PFP = 2
FPOS = 100
PFE = 0
CHK1 = 1
AL8 = 1
NUP = 13
SLP_R = 4
for arg in sys.argv[2:]:
    k_, v_ = arg.split('=')
    globals()[k_] = int(v_)
NB = 7
U = 16 * NB - 7
JMAX = 1024 - 16 * NB
ABYTES = 16 * NB * 128
SL = ABYTES + 64 * 480
O_OFF = 0
Z_OFF = 2621440
G_OFF = Z_OFF + 3145728
F_OFF = G_OFF + 8192
N_OFF = F_OFF + 65536
WS_SIZE = N_OFF + 128
OOB = 0x80000000
WCH = [45056, 65536, 90112, 0, 20480]
ZIMG = 135168
OST = 110592
OROW, OBLK = 176, 2976
OIMG = [135168, 110592, 45056, 65536]
CNT = 163008
SPIN = 400000


def f2u(x):
    return struct.unpack('<I', struct.pack('<f', x))[0]


def hx(x):
    return hex(x & 0xffffffff)


def swap23(k):
    return (k & ~12) | ((k & 4) << 1) | ((k & 8) >> 1)


a = Asm()
S_X, S_WDR, S_WDI, S_WQKV, S_WO = 16, 22, 24, 28, 30
S_GW, S_OUT, S_DBG, S_WS = 32, 34, 36, 38
SRD_X, SRD_B, SRD_C, SRD_WS, SRD_G = 40, 44, 48, 52, 56
S_N = 18
cvt = 'v_cvt_pk_bf16_f32'
mf = 'v_mfma_f32_16x16x32_bf16'
M32 = 'v_mfma_f32_32x32x16_bf16'
KN = NAME + '_kernel'


def srd(d, ptr, size):
    a(f's_mov_b64 s[{d}:{d+1}], s[{ptr}:{ptr+1}]')
    a(f's_mov_b32 s{d+2}, {hx(size)}')
    a(f's_mov_b32 s{d+3}, 0x20000')


PROF_OFF = 0x800000
NST = 10


def stamp(i, mode=None):
    if PROF and ((mode is None and (PROF < 3 or i == 0)) or mode == PROF):
        a(f's_memtime s[{80+2*i}:{81+2*i}]')


def stamps(i, mode):
    return [f's_memtime s[{80+2*i}:{81+2*i}]'] if PROF == mode else []


def endpgm():
    a('s_branch L_prof_end' if PROF else 's_endpgm')


def nonce_load():
    a(f's_add_u32 s20, s{S_WS}, {N_OFF}')
    a(f's_addc_u32 s21, s{S_WS+1}, 0')
    a(f's_load_dwordx2 s[{S_N}:{S_N+1}], s[20:21], 0')


def my_nonce(d):
    a('s_bitcmp0_b32 s2, 0')
    a(f's_cselect_b32 s{d}, s{S_N}, s{S_N+1}')
    a(f's_add_u32 s{d}, s{d}, 1')


a(f'.globl {KN}')
a('.p2align 8')
a(f'.type {KN},@function')
a.label(KN)
if PROF:
    a('s_memrealtime s[100:101]')
    stamp(0)
a('s_load_dwordx16 s[16:31], s[0:1], 0')
a('s_load_dwordx8 s[32:39], s[0:1], 64')
a('v_lshrrev_b32 v1, 6, v0')
a('v_and_b32 v0, 63, v0')
a('v_readfirstlane_b32 s3, v1')
if PROF:
    for i in range(1, NST):
        a(f's_mov_b32 s{80+2*i}, 0')
a('s_cmp_ge_u32 s2, 256')
a('s_cbranch_scc1 L_exit')
a('s_and_b32 s4, s2, 1')
a('s_bfe_u32 s5, s2, 0x20001')
a('s_lshr_b32 s6, s2, 3')
a('s_cmp_lt_u32 s6, 8')
a('s_cbranch_scc1 L_dft')
a('s_sub_u32 s6, s6, 8')
a('s_cmp_ge_u32 s6, 20')
a('s_cbranch_scc1 L_dftx')
a('s_lshr_b32 s12, s6, 2')
a('s_and_b32 s7, s5, 1')
a('s_mul_i32 s7, s7, 5')
a('s_add_u32 s7, s7, s12')
a('s_and_b32 s9, s6, 3')
a('s_and_b32 s8, s2, 4')
a('s_add_u32 s8, s8, s9')
a(f's_mul_i32 s10, s7, {U}')
a(f's_min_u32 s10, s10, {JMAX}')
a('s_cmp_ge_u32 s3, 4')
a('s_cbranch_scc1 L_qc')

rk = RA(2, 256)
vO = rk.get(2); vOr = rk.get(2); vGt = rk.get(2); vZa = rk.get(5); vGa = rk.get(1); vOut = rk.get(2); vWa = rk.get(2); kt = rk.get(8)
accD = [rk.get(4) for t in range(5)]
accO = [rk.get(4) for t in range(5)]
NO = 6
oF = [rk.get(4) for i in range(NO)]
NR = 8
bF = [[rk.get(4) for t in range(5)] for k in range(NR)]
vCn = rk.get(2)
WsF = accO[0]
vT = kt
vPd = oF[0]; vW = oF[2]; vZp = vW + 5; vPa = vW + 6; vFl = vW + 7; vPq = vW + 8
vA = bF[7][0]; vB = vA + 4
sOb, sImg, sGo, sT1, sNon, sZok, sRet, sMir = 22, 23, 24, 25, 26, 27, 28, 29

a(f'v_lshrrev_b32 v{vT}, 3, v0')
a('s_mul_i32 s11, s3, 28')
a(f'v_add_u32 v{vT+1}, s11, v{vT}')
a(f'v_mul_u32_u24 v{vT}, 2560, v{vT}')
for i in range(4):
    if i:
        a(f'v_add_u32 v{vT+1}, 7, v{vT+1}')
        a(f'v_add_u32 v{vT}, {7*2560}, v{vT}')
    a(f'v_lshrrev_b32 v{vT+2}, 1, v{vT+1}')
    a(f'v_xor_b32 v{vT+2}, v{vT+2}, v0')
    a(f'v_and_b32 v{vT+2}, 7, v{vT+2}')
    a(f'v_lshl_add_u32 v{vA+i}, v{vT+2}, 4, v{vT}')
a(f'v_mul_u32_u24 v{vT}, 205, v0')
a(f'v_lshrrev_b32 v{vT}, 11, v{vT}')
a(f'v_mul_u32_u24 v{vT+1}, 1120, v{vT}')
a(f'v_lshl_add_u32 v{vB}, v0, 4, v{vT+1}')
a('s_add_u32 s11, s11, s10')
a('s_lshl_b32 s11, s11, 1')
a('s_add_u32 s11, s11, s4')
a('s_mul_i32 s11, s11, 1280')
a('s_mul_i32 s13, s8, 160')
a(f's_mul_i32 s14, s3, {16*3840}')
a('s_add_u32 s13, s13, s14')
a('s_mul_i32 s14, s9, 5')
a('s_add_u32 s14, s14, 1')
a('s_lshr_b32 s14, s14, 1')
a('s_lshl_b32 s12, s12, 1')
a('s_add_u32 s12, s12, s14')
a('s_cmp_ge_u32 s12, 10')
a('s_cselect_b32 s14, 10, 0')
a('s_sub_u32 s12, s12, s14')
a('s_mul_i32 s14, s3, 3584')
a(f's_mul_i32 s15, s3, {8*960}')
a(f's_add_u32 s15, s15, {ABYTES}')
a('s_mov_b32 s62, 0')
a('s_waitcnt lgkmcnt(0)')
stamp(1)
srd(SRD_X, S_X, 2621440)
srd(SRD_B, S_WQKV, 2457600)
a('s_branch L_ql_main')
a.label('L_issue')
a('s_lshl_b32 s64, s12, 7')
a('s_mov_b32 exec_hi, 0x00ffffff')
a('s_add_u32 m0, s62, s14')
a('s_add_u32 s64, s64, s11')
for i in range(4):
    if i:
        a('s_add_u32 m0, m0, 896')
    if not (DBG & 2):
        a(f'buffer_load_dwordx4 v{vA+i}, {s(SRD_X,4)}, s64 offen lds')
a('s_mul_i32 s65, s12, 245760')
a('s_mov_b32 exec_hi, 0x0fffffff')
a('s_add_u32 m0, s62, s15')
a('s_add_u32 s65, s65, s13')
for i in range(8):
    if i:
        a('s_add_u32 m0, m0, 960')
        a(f's_add_u32 s64, s65, {swap23(2*i)*3840}')
    if not (DBG & 4):
        a(f'buffer_load_dwordx4 v{vB}, {s(SRD_B,4)}, s{64 if i else 65} offen lds')
a('s_mov_b32 exec_hi, -1')
a('s_add_u32 s12, s12, 1')
a('s_cmp_eq_u32 s12, 10')
a('s_cselect_b32 s12, 0, s12')
a(f's_add_u32 s62, s62, {SL}')
a(f's_cmp_eq_u32 s62, {3*SL}')
a('s_cselect_b32 s62, 0, s62')
a('s_setpc_b64 s[60:61]')


def p2_decode(t1, jreg, mir, zt, jj, tmp1, tmp2):
    a(f's_bfe_u32 s{jreg}, s2, 0x30003')
    a(f's_and_b32 s{t1}, s2, 1')
    a(f's_and_b32 s{tmp1}, s2, 6')
    a(f's_lshr_b32 s{tmp2}, s2, 7')
    a(f's_add_u32 s{tmp1}, s{tmp1}, s{tmp2}')
    a(f's_lshl_b32 s{tmp1}, s{tmp1}, 1')
    a(f's_add_u32 s{t1}, s{t1}, s{tmp1}')
    a(f's_sub_u32 s{tmp1}, 32, s{t1}')
    a(f's_cmp_eq_u32 s{t1}, 0')
    a(f's_cselect_b32 s{tmp1}, 16, s{tmp1}')
    a('s_bitcmp1_b32 s2, 6')
    a(f's_cselect_b32 s{t1}, s{tmp1}, s{t1}')
    if zt is None:
        a(f's_cmp_ge_u32 s{jreg}, 4')
        a(f's_cselect_b32 s{mir}, 1, 0')
        return
    a(f's_sub_u32 s{tmp1}, 32, s{t1}')
    a(f's_and_b32 s{tmp1}, s{tmp1}, 31')
    a(f's_sub_u32 s{tmp2}, 7, s{jreg}')
    a(f's_cmp_ge_u32 s{jreg}, 4')
    a(f's_cselect_b32 s{zt}, s{tmp1}, s{t1}')
    a(f's_cselect_b32 s{jj}, s{tmp2}, s{jreg}')


def check(cur, sn):
    for q in range(4):
        a(f'v_xor_b32 v{cur+q}, s{sn}, v{cur+q}')
    a(f'v_or3_b32 v{cur}, v{cur}, v{cur+1}, v{cur+2}')
    a(f'v_or_b32 v{cur}, v{cur}, v{cur+3}')
    a(f'v_cmp_ne_u32 vcc, 0, v{cur}')


def poll(tag, va, vd, soff, sn, scnt, slp):
    a(f'buffer_load_dwordx4 {v(vd,4)}, v{va}, {s(SRD_WS,4)}, s{soff} offen sc1')
    a.label(f'L_poll_{tag}')
    for h in range(2):
        cur, nxt = (vd, vd + 4) if h == 0 else (vd + 4, vd)
        a(f's_sleep {slp}')
        a(f'buffer_load_dwordx4 {v(nxt,4)}, v{va}, {s(SRD_WS,4)}, s{soff} offen sc1')
        a('s_waitcnt vmcnt(1)')
        check(cur, sn)
        a(f's_cbranch_vccz L_polled_{tag}')
    a(f's_sub_u32 s{scnt}, s{scnt}, 1')
    a(f's_cmp_lg_u32 s{scnt}, 0')
    a(f's_cbranch_scc1 L_poll_{tag}')
    a.label(f'L_polled_{tag}')


def wo_addr_body():
    t = vT
    a('s_lshl_b32 s71, s3, 6')
    a(f'v_add_u32 v{t}, s71, v0')
    for i in range(5):
        if i:
            a(f'v_add_u32 v{t}, 256, v{t}')
        a(f'v_mul_u32_u24 v{t+1}, 6554, v{t}')
        a(f'v_lshrrev_b32 v{t+1}, 16, v{t+1}')
        a(f'v_mul_u32_u24 v{t+2}, 10, v{t+1}')
        a(f'v_sub_u32 v{t+2}, v{t}, v{t+2}')
        a(f'v_lshrrev_b32 v{t+3}, 1, v{t+1}')
        a(f'v_xor_b32 v{t+3}, v{t+3}, v{t+1}')
        a(f'v_and_b32 v{t+3}, 4, v{t+3}')
        a(f'v_mul_u32_u24 v{t+3}, 3, v{t+3}')
        a(f'v_xor_b32 v{t+1}, v{t+3}, v{t+1}')
        a(f'v_mul_u32_u24 v{t+1}, 1280, v{t+1}')
        a(f'v_lshl_add_u32 v{vW+i}, v{t+2}, 4, v{t+1}')
    a('s_bfe_u32 s70, s2, 0x30003')
    a('s_mul_i32 s70, s70, 160')
    a('s_lshl_b32 s71, s3, 10')
    srd(SRD_G, S_WO, 819200)


def wo_chunk(ch):
    a(f's_add_u32 s72, s70, {ch*128*1280}')
    for i in range(5):
        a(f's_add_u32 m0, s71, {WCH[ch]+4096*i}')
        a(f'buffer_load_dwordx4 v{vW+i}, {s(SRD_G,4)}, s72 offen lds')


a.label('L_p2setup')
wo_addr_body()
srd(SRD_WS, S_WS, WS_SIZE)
srd(SRD_C, S_OUT, 2621440)
p2_decode(sT1, 65, None, 66, 67, 68, 69)
a(f's_cselect_b32 s{sMir}, 1, 0')
a('s_mul_i32 s78, s66, 98304')
a('s_mul_i32 s67, s67, 160')
a('s_add_u32 s78, s78, s67')
a('s_mul_i32 s67, s3, 4608')
a('s_add_u32 s78, s78, s67')
a(f's_add_u32 s78, s78, {Z_OFF}')
a('s_and_b32 s79, s2, 7')
a('s_lshl_b32 s79, s79, 13')
a(f's_add_u32 s79, s79, {F_OFF}')
a(f'v_mul_u32_u24 v{vT}, 49, v0')
a(f'v_lshrrev_b32 v{vT}, 10, v{vT}')
a(f'v_mul_u32_u24 v{vT+1}, 21, v{vT}')
a(f'v_sub_u32 v{vT+1}, v0, v{vT+1}')
a(f'v_cmp_gt_u32 vcc, 10, v{vT+1}')
a(f'v_mul_u32_u24 v{vT}, 1536, v{vT}')
a(f'v_lshl_add_u32 v{vT}, v{vT+1}, 4, v{vT}')
a(f'v_add_u32 v{vT+1}, 768, v{vT}')
a(f'v_subrev_u32 v{vT}, 160, v{vT}')
a(f'v_cndmask_b32 v{vZp}, v{vT}, v{vT+1}, vcc')
a(f'v_min_u32 v{vPa}, 23, v0')
a(f'v_lshlrev_b32 v{vPa}, 7, v{vPa}')
a(f'v_min_u32 v{vPq}, 19, v0')
a(f'v_lshlrev_b32 v{vPq}, 7, v{vPq}')
a(f'v_add_u32 v{vPq}, 4096, v{vPq}')
a(f'v_mov_b32 v{vCn}, {CNT}')
a(f'v_mov_b32 v{vCn+1}, 1')
a(f'v_and_b32 v{kt}, 15, v0')
a(f'v_lshrrev_b32 v{kt+1}, 4, v0')
a(f'v_lshrrev_b32 v{kt+2}, 5, v0')
a(f'v_bfe_u32 v{kt+3}, v0, 2, 3')
a(f'v_lshl_add_u32 v{kt+3}, v{kt+2}, 4, v{kt+3}')
a(f'v_mul_u32_u24 v{kt+3}, 160, v{kt+3}')
a(f'v_and_b32 v{kt+4}, 3, v0')
a(f'v_lshl_add_u32 v{vWa}, v{kt+4}, 3, v{kt+3}')
a(f'v_add_u32 v{vWa+1}, {WCH[1]}, v{vWa}')
a(f'v_lshlrev_b32 v{vO}, 4, v0')
a(f'v_mul_u32_u24 v{kt+3}, {327680-2560}, v{kt+2}')
a(f'v_add_u32 v{vO+1}, v{vO}, v{kt+3}')
a(f's_mov_b32 s{sImg}, {OIMG[0]}')
for i in range(1, 4):
    a(f's_cmp_eq_u32 s3, {i}')
    a(f's_cselect_b32 s{sImg}, {OIMG[i]}, s{sImg}')
a(f'v_mul_u32_u24 v{kt+3}, 160, v{kt}')
a(f'v_lshl_add_u32 v{kt+3}, v{kt+1}, 4, v{kt+3}')
a(f'v_add_u32 v{vOr}, s{sImg}, v{kt+3}')
a(f'v_mul_u32_u24 v{kt+3}, 2400, v{kt+2}')
a(f'v_add_u32 v{vOr+1}, v{vOr}, v{kt+3}')
a(f's_lshl_b32 s{sOb}, s{sT1}, 2')
a(f's_add_u32 s{sOb}, s{sOb}, s3')
a(f's_lshl_b32 s{sGo}, s{sOb}, 6')
a(f's_add_u32 s{sGo}, s{sGo}, {G_OFF}')
a(f's_mul_i32 s{sOb}, s{sOb}, 2560')
a(f'v_lshlrev_b32 v{vGa}, 2, v{kt}')
a('s_lshl_b32 s66, s3, 9')
a(f's_add_u32 s66, s66, s{sT1}')
a(f'v_lshl_add_u32 v{kt+2}, v{kt}, 5, s66')
a(f'v_mul_u32_u24 v{vOut}, 1280, v{kt+2}')
a(f'v_add_u32 v{vOut}, s70, v{vOut}')
a(f'v_lshl_add_u32 v{vOut+1}, v{kt+1}, 3, v{vOut}')
a(f'v_and_b32 v{kt+3}, 1, v{kt+1}')
a(f'v_lshl_add_u32 v{vOut}, v{kt+3}, 5, v{vOut}')
a(f'v_and_b32 v{kt+3}, 2, v{kt+1}')
a(f'v_lshl_add_u32 v{vOut}, v{kt+3}, 3, v{vOut}')
a(f'v_cvt_f32_u32 v{kt+2}, v{kt+2}')
a(f's_lshl_b32 s66, s{sMir}, 31')
a(f'v_xor_b32 v{kt+2}, s66, v{kt+2}')
a(f'v_cvt_f32_u32 v{kt+3}, v{kt+1}')
a(f'v_mul_f32 v{kt+3}, v{kt+3}, v{kt+2}')
a(f'v_mul_f32 v{kt+3}, {hx(f2u(4/2048.0))}, v{kt+3}')
for i in range(4):
    for jr in range(0, 4, 2):
        for e in range(2):
            a(f'v_fmamk_f32 v{kt+4+e}, v{kt+2}, {hx(f2u((16*i+jr+e)/2048.0))}, v{kt+3}')
        for e in range(2):
            a(f'v_cos_f32 v{kt+6+e}, v{kt+4+e}')
            a(f'v_sin_f32 v{kt+4+e}, v{kt+4+e}')
        for e in range(2):
            a(f'{cvt} v{WsF+4*i+jr+e}, v{kt+6+e}, v{kt+4+e}')
a(f's_cmp_eq_u32 s{sMir}, 0')
a('s_cselect_b32 s66, 0, 80')
a('s_cselect_b32 s67, 1, -1')
a('s_cselect_b32 s68, 32, -32' if False else 's_cselect_b32 s68, 32, 0xffffffe0')
a(f'v_mul_u32_u24 v{kt+4}, {4*336}, v{kt+1}')
a(f'v_add_u32 v{kt+4}, {ZIMG}, v{kt+4}')
a(f'v_mul_lo_u32 v{kt+2}, v{kt}, s67')
a(f'v_add_u32 v{kt+2}, s66, v{kt+2}')
a(f'v_and_b32 v{kt+3}, 1, v{kt+2}')
a(f'v_xor_b32 v{kt+3}, 1, v{kt+3}')
a(f'v_mul_u32_u24 v{kt+3}, 160, v{kt+3}')
a(f'v_lshrrev_b32 v{kt+2}, 1, v{kt+2}')
a(f'v_lshl_add_u32 v{kt+2}, v{kt+2}, 2, v{kt+3}')
a(f'v_add_u32 v{vZa}, v{kt+2}, v{kt+4}')
for T in range(1, 5):
    a(f'v_add_u32 v{vZa+T}, s68, v{vZa+T-1}')
a(f's_mov_b32 s{sZok}, s3')
a(f's_mov_b32 s{sRet}, 20000')
a('s_setpc_b64 s[60:61]')

def _unused(ch):
    a(f's_add_u32 s72, s70, {ch*128*1280}')
    for i in range(5):
        a(f's_add_u32 m0, s71, {WCH[ch]+4096*i}')
        a(f'buffer_load_dwordx4 v{vW+i}, {s(SRD_G,4)}, s72 offen lds')


def spin(tag, off, n):
    a(f's_branch L_spin1_{tag}')
    a.label(f'L_spin_{tag}')
    a('s_sleep 1')
    a.label(f'L_spin1_{tag}')
    a(f'ds_read_b32 v{kt}, v{vCn} offset:{off}')
    a('s_waitcnt lgkmcnt(0)')
    a(f'v_readfirstlane_b32 s64, v{kt}')
    a(f's_cmp_ge_u32 s64, {n}')
    a(f's_cbranch_scc0 L_spin_{tag}')


def lds_inc(off):
    a('s_mov_b64 exec, 1')
    a(f'ds_add_u32 v{vCn}, v{vCn+1} offset:{off}')
    a('s_mov_b64 exec, -1')


def w_reads(ks):
    ch, kb = ks >> 2, ks & 3
    ad, base = (vWa + 1, WCH[ch] - WCH[1]) if ch in (1, 2) else (vWa, WCH[ch])
    return [f'ds_read_b64_tr_b16 {v(bF[ks%NR][T]+2*bs,2)}, v{ad} offset:{base+kb*5120+bs*1280+32*T}'
            for T in range(5) for bs in range(2)]


def preflag():
    a('s_cmp_lg_u32 s3, 3')
    a('s_cbranch_scc1 L_nopre')
    a(f'v_mov_b32 v{kt}, s{sNon}')
    a('s_mov_b64 exec, 15')
    a(f'buffer_store_dword v{kt}, v{vFl}, {s(SRD_WS,4)}, 0 offen sc0 sc1')
    a('s_mov_b64 exec, -1')
    a.label('L_nopre')


a.label('L_ql_main')
toks = [('I', 0), ('S', 0), ('I', 1), ('W', 0)]
for i in range(1, 9):
    toks += [('I', i + 1)] + ([('P', 0)] if i == 8 else []) + [('W', i)]
toks += [('C', 0), ('C', 1), ('W', 9)]
seqv = []
for tk, k in toks:
    if tk == 'I':
        a('s_call_b64 s[60:61], L_issue')
        seqv += [('I', k)] * ((0 if DBG & 2 else 4) + (0 if DBG & 4 else 8))
        if k == 9:
            stamp(3)
    elif tk == 'C':
        wo_chunk(k)
        seqv += [('C', k)] * 5
    elif tk == 'P':
        a(f'buffer_load_dwordx4 {v(vPd,4)}, v{vPa}, {s(SRD_WS,4)}, s79 offen sc1')
        seqv += [('P', 0)]
    elif tk == 'S':
        nonce_load()
        a('s_call_b64 s[60:61], L_p2setup')
        a('s_mul_i32 s64, s5, 20')
        a('s_add_u32 s64, s64, s6')
        a('s_lshr_b32 s65, s64, 2')
        a('s_lshl_b32 s65, s65, 7')
        a('s_and_b32 s64, s64, 3')
        a('s_lshl_b32 s64, s64, 2')
        a('s_add_u32 s64, s64, s65')
        a('s_lshl_b32 s65, s4, 13')
        a('s_add_u32 s64, s64, s65')
        a(f's_add_u32 s64, s64, {F_OFF+4096}')
        a(f'v_lshl_add_u32 v{vFl}, v0, 14, s64')
        a('s_cmp_eq_u32 s3, 0')
        a(f's_cselect_b32 s64, 0, {hx(OOB)}')
        a(f'v_or_b32 v{vPa}, s64, v{vPa}')
    elif tk == 'W':
        last = max([n for n, t_ in enumerate(seqv) if t_ == ('I', k) or (k == 9 and t_ == ('P', 0))] + [-1])
        if k == 2:
            a('s_waitcnt lgkmcnt(0)')
            my_nonce(sNon)
        a(f's_waitcnt vmcnt({len(seqv)-1-last})')
        if k == 0:
            stamp(2)
        a('s_barrier')
        if k == 9:
            stamp(4)
        if k < 9:
            stamp(k + 1, 3)
stamp(1, 4)
a('s_setprio 3')
a('s_cmp_lg_u32 s3, 0')
a('s_cbranch_scc1 L_post9')
check(vPd, sNon)
a('s_cbranch_vccz L_polled_d')
a.label('L_post9')
a('s_cmp_eq_u32 s3, 0')
a('s_cbranch_scc1 L_post9z')
spin('f', 16, 1)
a('s_branch L_post9b')
a.label('L_post9z')
a(f's_mov_b32 s66, {SPIN}')
poll('d', vPa, vPd, 79, sNon, 66, SLP_D)
a('s_mov_b64 exec, 1')
a(f'ds_add_u32 v{vCn}, v{vCn+1} offset:16')
a(f'ds_add_u32 v{vCn}, v{vCn+1} offset:12')
a('s_mov_b64 exec, -1')
a.label('L_post9b')
stamp(2, 4)
a(f'buffer_load_dword v{vGt}, v{vGa}, {s(SRD_WS,4)}, s{sGo} offen sc1')
a('s_mul_i32 s64, s3, 1008')
a(f's_add_u32 m0, s64, {ZIMG}')
a('s_mov_b32 exec_hi, 0x7fffffff')
for i in range(5):
    a(f'buffer_load_dwordx4 v{vZp}, {s(SRD_WS,4)}, s78 offen sc1 lds')
    a('s_add_u32 m0, m0, 4032')
    a('s_add_u32 s78, s78, 18432')
a('s_cmp_ge_u32 s3, 2')
a('s_cbranch_scc1 L_zret')
a(f'buffer_load_dwordx4 v{vZp}, {s(SRD_WS,4)}, s78 offen sc1 lds')
a.label('L_zret')
a('s_mov_b32 exec_hi, -1')
wo_chunk(2)
a('s_waitcnt vmcnt(11)')
lds_inc(0)
stamp(3, 4)
spin('c', 4, 4)
stamp(4, 4)
wo_chunk(3)
wo_chunk(4)
stamp(5, 4)
a('s_waitcnt vmcnt(15)')
lds_inc(8)
spin('a', 0, 4)
a('s_setprio 0')
stamp(6, 4)
for ks in range(4, 8):
    for x in w_reads(ks):
        a(x)
stamp(7, 4)
spin('z', 8, 4)
stamp(8, 4)
stamp(5, 1)
zr = [[f'ds_read_b32 v{bF[st][T]+jr}, v{vZa+T} offset:{(16*st+jr)*336}' for T in range(5) for jr in range(4)] for st in range(4)]
for x in zr[0] + zr[1]:
    a(x)
for st in range(4):
    a(f's_waitcnt lgkmcnt({15 if st < 3 else 10})')
    Mz = []
    for T in range(5):
        d = v(accD[T], 4)
        Mz.append(f'{mf} {d}, {v(bF[st][T],4)}, {v(WsF+4*st,4)}, {"0" if st == 0 else d}')
    R = zr[st + 2] if st < 2 else w_reads(st - 2)
    for x in interleave(Mz, R, per=4 if st < 2 else 2):
        a(x)
for x in w_reads(2) + w_reads(3):
    a(x)
stamp(9, 4)
if PFP == 1:
    preflag()
a('s_waitcnt vmcnt(0)')
for T in range(5):
    for r_ in range(4):
        a(f'v_mul_f32 v{accD[T]+r_}, v{accD[T]+r_}, v{vGt}')
a(f'v_sub_f32 v{vGt}, 1.0, v{vGt}')
a('s_waitcnt lgkmcnt(0)')
a('s_setprio 3')
stamp(6, 1)
a('s_cmp_lg_u32 s3, 1')
a('s_cbranch_scc1 L_b13')
a(f'buffer_load_dwordx4 {v(vPd,4)}, v{vPq}, {s(SRD_WS,4)}, s79 offen sc1')
a('s_waitcnt vmcnt(0)')
check(vPd, sNon)
a('s_cbranch_vccz L_polled_q')
a(f's_mov_b32 s66, {SPIN}')
poll('q', vPq, vPd, 79, sNon, 66, SLP_Q)
a('s_cmp_ge_u32 s2, 2')
a('s_cbranch_scc1 L_b13')
a('s_lshl_b32 s65, s2, 2')
a(f's_add_u32 s65, s65, {N_OFF}')
a(f'v_mov_b32 v{kt}, s65')
a(f'v_mov_b32 v{kt+1}, s{sNon}')
a('s_mov_b64 exec, 1')
a(f'buffer_store_dword v{kt+1}, v{kt}, {s(SRD_WS,4)}, 0 offen')
a('s_mov_b64 exec, -1')
a.label('L_b13')
stamp(7, 1)
a('s_barrier')
stamp(8, 1)
stamp(1, 5)


def odma(i, first=False):
    hq2, r5 = divmod(i, 5)
    off = hq2 * 655360 + r5 * 1024 + (327680 - 2560 if r5 >= 3 else 0)
    return [f's_add_u32 m0, s{sImg}, {1024*i}', f's_add_u32 s64, s{sOb}, {off}',
            f'buffer_load_dwordx4 v{vO+(r5==2)}, {s(SRD_WS,4)}, s64 offen sc1 lds']


for i in range(NUP):
    for x in odma(i):
        a(x)
nissued = NUP
stamp(2, 5)


def o_read(ks):
    hq2, r5 = divmod(ks, 5)
    off = hq2 * 5120 + r5 * 64 + (2400 if r5 >= 3 else 0)
    return f'ds_read_b128 {v(oF[ks%NO],4)}, v{vOr+(r5==2)} offset:{off}'


def o_need(ks):
    hq2, r5 = divmod(ks, 5)
    return hq2 * 5 + (3 if r5 < 2 else 5)


def o_check(f):
    o = oF[f % NO]
    if CHK1:
        return [f'v_cmp_eq_u32 vcc, -1, v{o+3}']
    return [f'v_max3_u32 v{kt}, v{o}, v{o+1}, v{o+2}', f'v_max_u32 v{kt}, v{kt}, v{o+3}', f'v_cmp_eq_u32 vcc, -1, v{kt}']


OD = 3
lds_seq = []
vm_have = -1


def emit_o(ks):
    global vm_have
    n = o_need(ks)
    assert n <= nissued
    if n > vm_have:
        a(f's_waitcnt vmcnt({nissued-n})')
        vm_have = n
    a(o_read(ks))
    lds_seq.append(('o', ks))


for ks in range(OD):
    emit_o(ks)
a(f's_waitcnt lgkmcnt({OD-1})')
for x in o_check(0):
    a(x)
a('s_cbranch_vccnz L_retry0')
a.label('L_back0')
stamp(3, 5)
wq = [(ks, n, x) for ks in range(NR, 20) for n, x in enumerate(w_reads(ks))]
for ks in range(20):
    if ks + OD < 20:
        emit_o(ks + OD)
    need_ = [n for n, t_ in enumerate(lds_seq) if t_ in (('o', ks), ('o', ks + 1), ('w', ks))]
    assert not any(q[0] == ks for q in wq)
    a(f's_waitcnt lgkmcnt({min(15, len(lds_seq)-1-max(need_))})')
    C = o_check(ks + 1) if ks < 19 else []
    quota = 7
    for T in range(5):
        d = v(accO[T], 4)
        a(f'{mf} {d}, {v(bF[ks%NR][T],4)}, {v(oF[ks%NO],4)}, {"0" if ks == 0 else d}')
        k_here = 2 if T in (1, 3) else 1
        while k_here and quota and wq and (wq[0][0] - NR < ks or (wq[0][0] - NR == ks and wq[0][1] // 2 <= T)):
            q = wq.pop(0)
            a(q[2])
            lds_seq.append(('w', q[0]))
            k_here -= 1
            quota -= 1
        for x in C[T:T+1]:
            a(x)
        if T in (2, 4) and nissued < 20:
            for x in odma(nissued):
                a(x)
            nissued += 1
    if ks < 19:
        a(f's_cbranch_vccnz L_retry{ks+1}')
        a.label(f'L_back{ks+1}')
    if ks in (1, 4, 9, 14, 19):
        stamp({1:4, 4:5, 9:6, 14:7, 19:8}[ks], 5)
stamp(9, 1)
P = bF[0][0]
F = []
for T in range(5):
    for r_ in range(4):
        F.append(f'v_fma_f32 v{accD[T]+r_}, v{accO[T]+r_}, v{vGt}, v{accD[T]+r_}')
    F.append(f'{cvt} v{P+2*T}, v{accD[T]}, v{accD[T]+1}')
    F.append(f'{cvt} v{P+2*T+1}, v{accD[T]+2}, v{accD[T]+3}')
    if T in (1, 3):
        F.append(f'v_permlane16_swap_b32 v{P+2*T-2}, v{P+2*T}')
        F.append(f'v_permlane16_swap_b32 v{P+2*T-1}, v{P+2*T+1}')
        F.append(f'buffer_store_dwordx4 {v(P+2*T-2,4)}, v{vOut}, {s(SRD_C,4)}, 0 offen offset:{32*(T-1)}')
F.append(f'buffer_store_dwordx2 {v(P+8,2)}, v{vOut+1}, {s(SRD_C,4)}, 0 offen offset:128')
for x in F:
    a(x)
if PROF == 1:
    a(f's_sub_u32 s82, s80, s{sRet}')
    a('s_add_u32 s82, s82, 20000')
endpgm()

for i in range(20):
    hq2, r5 = divmod(i, 5)
    off = hq2 * 655360 + r5 * 1024 + (327680 - 2560 if r5 >= 3 else 0)
    if r5 == 0:
        a.label(f'L_odma{hq2}')
    a(f's_add_u32 s64, s{sOb}, {off}')
    a(f'buffer_load_dwordx4 v{vO+(r5==2)}, {s(SRD_WS,4)}, s64 offen sc1 lds')
    a(f's_add_u32 m0, m0, 1024')
a('s_setpc_b64 s[60:61]')


def retry_stubs():
    for f in range(20):
        hq2 = f // 5
        a.label(f'L_retry{f}')
        a(f's_sub_u32 s{sRet}, s{sRet}, 1')
        a(f's_cbranch_scc1 L_giveup{f}')
        a(f's_sleep {SLP_R}')
        a(f's_add_u32 m0, s{sImg}, {hq2*5120}')
        a(f's_call_b64 s[60:61], L_odma{hq2}')
        a(f's_waitcnt vmcnt({20-o_need(min(19, f+OD-1))})')
        for k in range(f, min(20, f + OD)):
            a(o_read(k))
        a('s_waitcnt lgkmcnt(0)')
        for x in o_check(f):
            a(x)
        a(f's_cbranch_vccnz L_retry{f}')
        a(f's_branch L_back{f}')
        a.label(f'L_giveup{f}')
        a(f's_mov_b32 s{sRet}, 0')
        a(f's_branch L_back{f}')


a.label('L_qc')
a('s_setprio 2')
ra = RA(2, 256)
vXb = ra.get(2); vWb = ra.get(2)
vXc = ra.get(2); vWc = ra.get(2)
biasC = ra.get(4); biasP = ra.get(4); mCur = ra.get(2); mLo = ra.get(1); vOm = ra.get(1); vOr2 = ra.get(1)
Ec = ra.get(4); Cone = ra.get(4)
vOL = ra.get(1); vOG = ra.get(1); vX7 = ra.get(2); vC2 = ra.get(2); vFc = ra.get(2)
accQ = [ra.get(6) for b in range(NB)]
accK = [ra.get(4) for b in range(NB)]
accV = [ra.get(4) for b in range(NB)]
accR = [ra.get(4) for b in range(NB)]
fX = [[ra.get(4) for b in range(NB)] for k in range(2)]
fW = [[ra.get(4) for t in range(4)] for k in range(2)]
Vp = fW[0][0]; VRp = fW[1][0]
tmp = fX[1][0]
m_, g_ = tmp, tmp + 1
a('s_sub_u32 s9, s3, 4')
a('s_mul_i32 s12, s9, 40')
a(f'v_and_b32 v{m_}, 15, v0')
a(f'v_lshrrev_b32 v{g_}, 4, v0')
a(f'v_lshrrev_b32 v{tmp+2}, 1, v{m_}')
a(f'v_xor_b32 v{tmp+2}, v{tmp+2}, v{g_}')
a(f'v_lshlrev_b32 v{tmp+2}, 4, v{tmp+2}')
a(f'v_lshl_add_u32 v{vXb}, v{m_}, 7, v{tmp+2}')
a(f'v_xor_b32 v{vXb+1}, 64, v{vXb}')
a(f'v_lshrrev_b32 v{tmp+2}, 5, v0')
a(f'v_bfe_u32 v{tmp+3}, v0, 2, 3')
a(f'v_lshl_add_u32 v{tmp+2}, v{tmp+2}, 4, v{tmp+3}')
a(f'v_mul_u32_u24 v{tmp+2}, 480, v{tmp+2}')
a(f's_add_u32 s13, s12, {ABYTES}')
a(f'v_add_u32 v{tmp+2}, s13, v{tmp+2}')
a(f'v_and_b32 v{tmp+3}, 3, v0')
a(f'v_lshl_add_u32 v{vWb}, v{tmp+3}, 3, v{tmp+2}')
a(f'v_cmp_eq_u32 vcc, 1, v{tmp+3}')
a(f'v_min_u32 v{tmp+3}, 2, v{tmp+3}')
a(f'v_mul_u32_u24 v{tmp+3}, 160, v{tmp+3}')
a(f'v_add3_u32 v{vWb+1}, v{tmp+2}, v{tmp+3}, 32')
for r_ in range(4):
    a(f'v_cndmask_b32_e64 v{Cone+r_}, 0, 1.0, vcc')
for r_ in range(accQ[0], accR[-1] + 4, 2):
    a(f'v_mov_b64 {v(r_,2)}, 0')
a(f'v_mov_b32 v{vC2}, {CNT}')
a(f'v_mov_b32 v{vC2+1}, 1')
a(f'ds_write_b128 v{vC2}, {v(accK[0],4)}')
a(f'ds_write_b32 v{vC2}, v{accK[0]} offset:16')
NEG = hx(f2u(-1e30))
a(f'v_lshlrev_b32 v{tmp+2}, 2, v{g_}')
a(f'v_sub_u32 v{tmp+2}, v{m_}, v{tmp+2}')
a(f'v_mov_b32 v{tmp+4}, {NEG}')
for r_ in range(4):
    a(f'v_subrev_u32 v{tmp+3}, {r_}, v{tmp+2}')
    a(f'v_cmp_gt_u32 vcc, 8, v{tmp+3}')
    a(f'v_add_u32 v{tmp+3}, {16-r_}, v{tmp+2}')
    a(f'v_cmp_gt_u32 s[64:65], 8, v{tmp+3}')
    a(f'v_cndmask_b32_e64 v{biasC+r_}, v{tmp+4}, 0, vcc')
    a(f'v_cndmask_b32_e64 v{biasP+r_}, v{tmp+4}, 0, s[64:65]')
a(f'v_mov_b32 v{tmp+4}, 0xffff')
a(f'v_mov_b32 v{tmp+5}, 0xffff0000')
for d in range(2):
    a(f'v_cmp_le_i32 vcc, {2*d}, v{tmp+2}')
    a(f'v_cmp_le_i32 s[64:65], {2*d+1}, v{tmp+2}')
    a(f'v_cndmask_b32 v{mCur+d}, 0, v{tmp+4}, vcc')
    a(f'v_cndmask_b32_e64 v{tmp+3}, 0, v{tmp+5}, s[64:65]')
    a(f'v_or_b32 v{mCur+d}, v{mCur+d}, v{tmp+3}')
a(f'v_cmp_gt_u32 vcc, 32, v0')
a(f'v_mul_u32_u24 v{tmp+2}, {OROW}, v{m_}')
a(f's_add_u32 s13, s12, {OST}')
a(f'v_cndmask_b32_e64 v{mLo}, 0, -1, vcc')
a(f'v_add_u32 v{tmp+2}, s13, v{tmp+2}')
a(f'v_lshl_add_u32 v{vOm}, v{g_}, 3, v{tmp+2}')
a(f'v_lshl_add_u32 v{vOr2}, v{g_}, 1, v{tmp+2}')
a(f'v_mov_b64 {v(Ec,2)}, 0')
a(f'v_mov_b64 {v(Ec+2,2)}, 0')
a('s_mov_b32 exec_lo, 0')
a('s_mov_b32 exec_hi, 0x01000001')
a(f'v_mov_b32 v{Ec+2}, 0x3f80')
a('s_mov_b32 exec_hi, 0x10000010')
a(f'v_mov_b32 v{Ec+2}, 0x3f800000')
a('s_mov_b64 exec, -1')
a(f'v_mov_b64 {v(vXc,2)}, {v(vXb,2)}')
a(f'v_mov_b64 {v(vWc,2)}, {v(vWb,2)}')
sOG = 40
OMASK = [44, 46, 48, 50]


def o_store_setup():
    t = tmp
    a(f's_mul_i32 s66, s7, {U}')
    a('s_cmp_eq_u32 s7, 0')
    a('s_cselect_b32 s68, 0, 7')
    a('s_add_u32 s66, s66, s68')
    a('s_sub_u32 s66, s66, s10')
    a('s_lshl_b32 s67, s9, 2')
    a('s_sub_u32 s66, s66, s67')
    a('s_add_u32 s68, s67, s10')
    a('s_lshl_b32 s69, s8, 5')
    a('s_add_u32 s69, s69, s4')
    a('s_mul_i32 s69, s69, 10240')
    a(f'v_mul_u32_u24 v{t}, 205, v0')
    a(f'v_lshrrev_b32 v{t}, 11, v{t}')
    a(f'v_lshlrev_b32 v{vOG}, 4, v0')
    a(f'v_mul_u32_u24 v{t+1}, {OBLK-160}, v{t}')
    a(f's_mul_i32 s67, s67, {OROW}')
    a(f's_add_u32 s67, s67, {OST}')
    a(f'v_add3_u32 v{vOL}, v{t+1}, v{vOG}, s67')
    a(f'v_lshl_add_u32 v{t+1}, v{t}, 4, 16')
    a(f'v_cmp_gt_u32 vcc, 60, v0')
    a(f'v_cndmask_b32 v{t+1}, -16, v{t+1}, vcc')
    for i in range(4):
        a(f's_add_u32 s72, s68, {i}')
        a(f's_and_b32 s73, s72, 15')
        a(f's_mul_i32 s73, s73, 20480')
        a(f's_lshr_b32 s72, s72, 4')
        a(f's_mul_i32 s72, s72, 160')
        a(f's_add_u32 s72, s72, s73')
        a(f's_add_u32 s{sOG+i}, s72, s69')
        a(f's_sub_u32 s72, s66, {i}')
        a(f'v_cmp_le_i32 s[{OMASK[i]}:{OMASK[i]+1}], s72, v{t+1}')
    a(f'v_mul_u32_u24 v{t+1}, {OROW-160}, v{t}')
    a(f'v_add3_u32 v{vX7}, v{t+1}, v{vOG}, s67')
    a(f'v_add_u32 v{t+2}, s68, v{t}')
    a(f'v_and_b32 v{t+3}, 15, v{t+2}')
    a(f'v_mul_u32_u24 v{t+3}, 20480, v{t+3}')
    a(f'v_lshrrev_b32 v{t+2}, 4, v{t+2}')
    a(f'v_sub_u32 v{t+2}, v{t+2}, v{t}')
    a(f'v_mul_i32_i24 v{t+2}, 160, v{t+2}')
    a(f'v_add3_u32 v{t+2}, v{t+2}, v{t+3}, v{vOG}')
    a(f'v_add_u32 v{t+2}, s69, v{t+2}')
    a(f'v_mov_b32 v{t+1}, {hx(OOB)}')
    a(f'v_cmp_le_i32 vcc, s66, v{t}')
    a(f'v_cndmask_b32 v{t+2}, v{t+1}, v{t+2}, vcc')
    a(f'v_cmp_gt_u32 vcc, 40, v0')
    a(f'v_cndmask_b32 v{vX7+1}, v{t+1}, v{t+2}, vcc')


o_store_setup()
a('s_mul_i32 s64, s5, 20')
a('s_add_u32 s64, s64, s6')
a('s_lshr_b32 s65, s64, 2')
a('s_lshl_b32 s65, s65, 7')
a('s_and_b32 s64, s64, 3')
a('s_lshl_b32 s64, s64, 2')
a('s_add_u32 s64, s64, s65')
a('s_lshl_b32 s65, s4, 13')
a('s_add_u32 s64, s64, s65')
a(f's_add_u32 s64, s64, {F_OFF+4096}')
a(f'v_lshl_add_u32 v{vFc}, v0, 14, s64')
a('s_cmp_eq_u32 s3, 7')
a('s_cselect_b32 s64, 4, 0')
a(f'v_mov_b32 v{tmp}, {hx(OOB)}')
a(f'v_cmp_gt_u32 vcc, s64, v0')
a(f'v_cndmask_b32 v{vFc}, v{tmp}, v{vFc}, vcc')
CS = 20 ** -0.5 * math.log2(math.e)
a(f's_mov_b32 s66, {hx(f2u(CS))}')
a(f's_mov_b32 s67, {hx(f2u(CS))}')


def q_reads(kk):
    W = []
    for t in range(4):
        for bs in range(2):
            ad, off = (vWc, kk * 15360 + t * 160 + bs * 3840) if t < 3 else (vWc + 1, kk * 15360 + bs * 3840)
            W.append(f'ds_read_b64_tr_b16 {v(fW[kk][t]+2*bs,2)}, v{ad} offset:{off}')
    X = [f'ds_read_b128 {v(fX[kk][b],4)}, v{vXc+kk} offset:{2048*b}' for b in range(NB)]
    if DBG & 8:
        return X[:1]
    return W + X


def q_mfmas(kk):
    L = []
    for b in range(NB):
        x = v(fX[kk][b], 4)
        for t, acc in ((0, accQ), (1, accK), (2, accV), (3, accR)):
            w = v(fW[kk][t], 4)
            d = v(acc[b], 4)
            L.append(f'{mf} {d}, {x}, {w}, {d}' if t == 2 else f'{mf} {d}, {w}, {x}, {d}')
    if DBG & 1:
        L = L[:1]
    return L


a('s_mov_b32 s14, 0')
a('s_mov_b32 s15, 10')
a('s_waitcnt lgkmcnt(0)')
nonce_load()
srd(SRD_WS, S_WS, WS_SIZE)
stamp(1)
a('s_barrier')
stamp(2)
for x in q_reads(0):
    a(x)
a('.p2align 3')
a.label('L_qc_loop')
a('s_waitcnt lgkmcnt(0)')
a('s_sub_u32 s15, s15, 1')
a(f's_add_u32 s14, s14, {SL}')
a(f's_cmp_eq_u32 s14, {3*SL}')
a('s_cselect_b32 s14, 0, s14')
a('s_cmp_eq_u32 s15, 0')
fill = q_reads(1) + [f'v_add_u32_e64 v{vXc}, s14, v{vXb}', f'v_add_u32_e64 v{vXc+1}, s14, v{vXb+1}',
                     f'v_add_u32_e64 v{vWc}, s14, v{vWb}', f'v_add_u32_e64 v{vWc+1}, s14, v{vWb+1}']
for x in interleave(q_mfmas(0), fill):
    a(x)
a('s_waitcnt lgkmcnt(0)')
a('s_cbranch_scc1 L_qc_last')
a('s_nop 0' if DBG & 16 else 's_barrier')
a('s_nop 0')
for x in interleave(q_mfmas(1), q_reads(0)):
    a(x)
a('s_branch L_qc_loop')
a.check_backedge('L_qc_loop')
a.label('L_qc_last')
stamp(3)
a('s_mov_b64 exec, 1')
a(f'ds_add_u32 v{vC2}, v{vC2+1} offset:4')
a('s_mov_b64 exec, -1')
my_nonce(64)
a(f'v_mov_b32 v{vFc+1}, s64')
FLAG = f'buffer_store_dword v{vFc+1}, v{vFc}, {s(SRD_WS,4)}, 0 offen sc0 sc1'
B = range(NB)
E = list(q_mfmas(1))
e = E.append
SC = fX[0]; SP = fX[1]
for b in B:
    q, k, r, vv = accQ[b], accK[b], accR[b], accV[b]
    e(f'{cvt} v{q+3}, v{q+2}, v{q+3}')
    e(f'{cvt} v{q+2}, v{q}, v{q+1}')
    e(f'{cvt} v{k}, v{k}, v{k+1}')
    e(f'{cvt} v{k+1}, v{k+2}, v{k+3}')
    e(f'{cvt} v{q+4}, v{r}, v{r+1}')
    e(f'{cvt} v{k+3}, v{r+2}, v{r+3}')
    e(f'v_permlane16_swap_b32 v{q+4}, v{k+3}')
    e(f'v_and_b32 v{k+2}, v{mLo}, v{k+3}')
    e(f'{cvt} v{Vp+2+2*b}, v{vv}, v{vv+1}')
    e(f'{cvt} v{Vp+3+2*b}, v{vv+2}, v{vv+3}')
    e(f'{mf} {v(SC[b],4)}, {v(k,4)}, {v(q+2,4)}, {v(biasC,4)}')
    if b:
        e(f'{mf} {v(vv,4)}, {v(accK[b-1],4)}, {v(q+2,4)}, {v(biasP,4)}')
    e(f'{mf} {v(r,4)}, {v(q+2,4)}, {v(Ec,4)}, {v(Cone,4)}')
    e(f'{cvt} v{VRp+2+2*b}, v{r}, v{r+1}')
    e(f'{cvt} v{VRp+3+2*b}, v{r+2}, v{r+3}')
    if b:
        for r_ in range(4):
            e(f'v_max_f32 v{SC[b]+r_}, v{SC[b]+r_}, v{vv+r_}')
    e(f'v_max3_f32 v{q}, v{SC[b]}, v{SC[b]+1}, v{SC[b]+2}')
    e(f'v_max_f32 v{q}, v{q}, v{SC[b]+3}')
M = [accQ[b] for b in B]
for grp in ([0, 1, 2, 3], [4, 5, 6]):
    A_, B_, C_ = M[grp[0]], M[grp[1]], M[grp[2]]
    e(f'v_permlane16_swap_b32 v{A_}, v{B_}')
    e(f'v_max_f32 v{A_}, v{A_}, v{B_}')
    if len(grp) == 4:
        D_ = M[grp[3]]
    else:
        D_ = C_ + 1
        e(f'v_mov_b32 v{D_}, v{C_}')
    e(f'v_permlane16_swap_b32 v{C_}, v{D_}')
    e(f'v_max_f32 v{C_}, v{C_}, v{D_}')
    e(f'v_permlane32_swap_b32 v{A_}, v{C_}')
    e(f'v_max_f32 v{A_}, v{A_}, v{C_}')
    e(f'v_mul_f32 v{C_}, {hx(f2u(-CS))}, v{A_}')
    e(f'v_mul_f32 v{A_}, {hx(f2u(-CS))}, v{A_}')
    e(f'v_permlane32_swap_b32 v{A_}, v{C_}')
    e(f'v_mov_b32 v{B_}, v{A_}')
    e(f'v_permlane16_swap_b32 v{A_}, v{B_}')
    if len(grp) == 4:
        e(f'v_mov_b32 v{D_}, v{C_}')
        e(f'v_permlane16_swap_b32 v{C_}, v{D_}')
E2 = len(E)
for b in B:
    q, k, r, vv = accQ[b], accK[b], accR[b], accV[b]
    c_, p_ = SC[b], SP[b]
    if PK:
        for r_ in (0, 2):
            e(f'v_pk_fma_f32 {v(c_+r_,2)}, {v(c_+r_,2)}, s[66:67], {v(q,2)} op_sel_hi:[1,1,0]')
    else:
        for r_ in range(4):
            e(f'v_fma_f32 v{c_+r_}, v{c_+r_}, s66, v{q}')
    for r_ in range(4):
        e(f'v_exp_f32 v{c_+r_}, v{c_+r_}')
    e(f'{cvt} v{c_}, v{c_}, v{c_+1}')
    e(f'{cvt} v{c_+1}, v{c_+2}, v{c_+3}')
    e(f'v_and_b32 v{p_+2}, v{mCur}, v{c_}')
    e(f'v_and_b32 v{p_+3}, v{mCur+1}, v{c_+1}')
    e(f'v_xor_b32 v{p_}, v{p_+2}, v{c_}')
    e(f'v_xor_b32 v{p_+1}, v{p_+3}, v{c_+1}')
    e(f'{mf} {v(r,4)}, {v(VRp+2*b,4)}, {v(p_,4)}, 0')
    e(f'{mf} {v(vv,4)}, {v(Vp+2*b,4)}, {v(p_,4)}, 0')
    e(f'v_rcp_f32 v{r+1}, v{r+1}')
    if PK:
        for x in (vv, vv + 2):
            e(f'v_pk_mul_f32 {v(x,2)}, {v(x,2)}, {v(r,2)} op_sel:[0,1] op_sel_hi:[1,1]')
    else:
        for x in range(vv, vv + 4):
            e(f'v_mul_f32 v{x}, v{x}, v{r+1}')
    e(f'v_mul_f32 v{r+2}, v{r}, v{r+1}')
    e(f'{cvt} v{vv}, v{vv}, v{vv+1}')
    e(f'{cvt} v{vv+1}, v{vv+2}, v{vv+3}')
    e(f'{cvt} v{r+2}, v{r+2}, v{r+2}')
    e(f'ds_write_b64 v{vOm}, {v(vv,2)} offset:{OBLK*b}')
    e(f'ds_write_b16 v{vOr2}, v{r+2} offset:{OBLK*b+32}')
E, est = schedule(E, by_order_from=E2)
print('epilogue instrs', len(E), 'est cycles', est)
if PFP == 2 and FPOS >= 0:
    E.insert(len(E) - FPOS, FLAG)
for x in E:
    a(x)
stamp(4)
a('s_mov_b64 exec, 1')
a(f'ds_add_u32 v{vC2}, v{vC2+1} offset:12')
a('s_mov_b64 exec, -1')
a.label('L_spin_o')
a(f'ds_read_b32 v{tmp}, v{vC2} offset:12')
a('s_waitcnt lgkmcnt(0)')
a(f'v_readfirstlane_b32 s64, v{tmp}')
a('s_cmp_ge_u32 s64, 5')
a('s_cbranch_scc0 L_spin_o')
stamp(5)
vOD = fX[0][0]
for i in range(4):
    a(f'ds_read_b128 {v(vOD+4*i,4)}, v{vOL} offset:{OBLK+OROW*i}')
a(f'ds_read_b128 {v(vOD+16,4)}, v{vX7}')
for i in range(4):
    a(f's_mov_b64 exec, s[{OMASK[i]}:{OMASK[i]+1}]')
    a(f's_waitcnt lgkmcnt({4-i})')
    a(f'buffer_store_dwordx4 {v(vOD+4*i,4)}, v{vOG}, {s(SRD_WS,4)}, s{sOG+i} offen offset:160 sc1')
a('s_mov_b64 exec, -1')
a('s_waitcnt lgkmcnt(0)')
a(f'buffer_store_dwordx4 {v(vOD+16,4)}, v{vX7+1}, {s(SRD_WS,4)}, 0 offen sc1')
if PFP == 2 and FPOS < 0:
    a(FLAG)
stamp(6)
a('s_barrier')
endpgm()

a.label('L_dftx')
a('s_sub_u32 s7, s6, 20')
a('s_mov_b32 s8, 2')
a('s_sub_u32 s6, s2, 160')
a('s_branch L_dft2')
a.label('L_dft')
a('s_lshr_b32 s7, s6, 1')
a('s_and_b32 s8, s6, 1')
a('s_mov_b32 s6, s2')
a.label('L_dft2')
a('s_lshl_b32 s9, s5, 2')
a('s_add_u32 s7, s7, s9')
dX = 2; dWr = 3
dD = 96
a(f'v_lshrrev_b32 v8, 3, v0')
a(f'v_mul_u32_u24 v9, 81920, v8')
a(f'v_and_b32 v10, 7, v0')
a(f'v_lshl_add_u32 v{dX}, v10, 4, v9')
a('s_lshr_b32 s14, s3, 2')
a('s_xor_b32 s14, s14, s8')
a('s_and_b32 s14, s14, 1')
a('s_lshl_b32 s10, s7, 1')
a('s_add_u32 s9, s14, s10')
a('s_lshl_b32 s9, s9, 1')
a('s_add_u32 s62, s9, s4')
a('s_and_b32 s63, s3, 3')
a('s_lshl_b32 s10, s63, 9')
a('s_add_u32 s9, s62, s10')
a('s_mul_i32 s9, s9, 1280')
a('s_lshl_b32 s15, s14, 2')
a('s_add_u32 s15, s15, s63')
a('s_mul_i32 s15, s15, 5120')
a('v_lshlrev_b32 v13, 4, v0')
a('s_mov_b32 m0, s15')
a('s_waitcnt lgkmcnt(0)')
stamp(1)
srd(SRD_X, S_X, 2621440)
srd(SRD_G, S_GW, 1280)
a(f'buffer_load_dwordx4 v13, {s(SRD_G,4)}, 0 offen lds')
a(f'buffer_load_dwordx4 v13, {s(SRD_G,4)}, 0 offen offset:1024 lds')
for l in range(5):
    a(f'buffer_load_dwordx4 {v(dD+8*l,4)}, v{dX}, {s(SRD_X,4)}, s9 offen offset:{128*l}')
    a(f'buffer_load_dwordx4 {v(dD+8*l+4,4)}, v{dX}, {s(SRD_X,4)}, s9 offen offset:{128*l+640}')
if PFE:
    srd(SRD_B, S_WO, 819200)
    a('s_and_b32 s9, s6, 0xf8')
    a('s_add_u32 s9, s9, s3')
    a('s_and_b32 s10, s2, 7')
    a('s_mul_i32 s10, s10, 12')
    a('s_add_u32 s9, s9, s10')
    a('s_cmp_ge_u32 s9, 96')
    a('s_cselect_b32 s10, 96, 0')
    a('s_sub_u32 s9, s9, s10')
    a('s_lshl_b32 s9, s9, 13')
    a('v_lshlrev_b32 v12, 7, v0')
    a(f'buffer_load_dword v1, v12, {s(SRD_B,4)}, s9 offen')
nonce_load()
srd(SRD_WS, S_WS, WS_SIZE)
a(f'v_lshrrev_b32 v11, 4, v0')
a(f'v_xor_b32 v11, v11, v10')
a('s_and_b32 s9, s3, 1')
a('s_lshl_b32 s9, s9, 2')
a('v_xor_b32 v11, s9, v11')
a(f'v_lshlrev_b32 v12, 7, v8')
a(f'v_lshl_add_u32 v12, v11, 4, v12')
a(f'v_add_u32 v{dWr}, s15, v12')
a('s_lshl_b32 s11, s8, 31')
a('s_or_b32 s11, s11, 0x3f803f80')
a('s_mov_b32 s12, 0x05040100')
a('s_mov_b32 s13, 0x07060302')
a('v_mov_b64 v[28:29], -1')
a(f'v_mov_b32 v16, {CNT}')
a('v_mov_b32 v18, 0')
a('v_mov_b32 v19, 4')
a('v_mov_b32 v20, 0')
a('ds_write_b96 v16, v[18:20]')
a('ds_write_b32 v16, v18 offset:16')
a('s_cmp_lt_u32 s3, 4')
a('s_cbranch_scc1 L_fold')
rd = RA(24, 96)
vF = rd.get(4); vZ = rd.get(2); t0 = rd.get(6)
cC = rd.get(8); cP = rd.get(8); cN = rd.get(8)
gc = rd.get(8); gs = rd.get(8); gS = rd.get(2)
hc, hs = 160, 168
pB = [rd.get(8), rd.get(8)]
acc = [[176, 192], [208, 224]]
gu = 240
a(f'v_and_b32 v{t0}, 31, v0')
a(f'v_lshrrev_b32 v{t0+1}, 5, v0')
a(f'v_cvt_f32_u32 v{t0+2}, v{t0}')
a(f'v_cvt_f32_u32 v{t0+4}, v{t0+1}')
a(f'v_mul_f32 v{t0+3}, v{t0+4}, v{t0+2}')
a(f'v_mul_f32 v{t0+3}, {hx(f2u(0.125))}, v{t0+3}')
for i in range(8):
    for e in range(2):
        r_ = 2 * i + e
        kap = 8 * (r_ >> 2) + (r_ & 3)
        a(f'v_fmamk_f32 v{gu+e}, v{t0+2}, {hx(f2u(kap/32.0))}, v{t0+3}')
    for e in range(2):
        a(f'v_cos_f32 v{gu+2+e}, v{gu+e}')
        a(f'v_sin_f32 v{gu+4+e}, v{gu+e}')
    a(f'{cvt} v{cC+i}, v{gu+2}, v{gu+3}')
    a(f'{cvt} v{cN+i}, v{gu+4}, v{gu+5}')
    a(f'v_xor_b32 v{cP+i}, 0x80008000, v{cN+i}')
a('s_cmp_eq_u32 s8, 2')
a('s_cselect_b32 s22, s63, s8')
a('s_cselect_b32 s23, 4, s63')
a('s_cselect_b32 s24, s63, 0')
a('s_mul_i32 s24, s24, 40960')
a('s_lshl_b32 s25, s23, 6')
a('s_add_u32 s25, s25, s22')
a(f'v_lshl_add_u32 v{gu}, v{t0}, 1, s25')
a(f'v_cmp_eq_u32 vcc, 0, v{gu}')
a(f'v_cvt_f32_u32 v{gu}, v{gu}')
a(f'v_mul_f32 v{gu}, {hx(f2u(1/640.0))}, v{gu}')
a(f'v_mul_f32 v{gS+1}, {hx(f2u(16.0))}, v{gu}')
a(f'v_mul_f32 v{gs}, v{t0+4}, v{gu}')
a(f'v_mul_f32 v{gs}, {hx(f2u(8.0))}, v{gs}')
a(f'v_cos_f32 v{gS}, v{gS+1}')
for jj in range(1, 8):
    a(f'v_fmamk_f32 v{gs+jj}, v{gu}, {hx(f2u(float(jj)))}, v{gs}')
for jj in range(8):
    a(f'v_sub_f32 v{hs+jj}, v{gs+jj}, v{gS+1}')
a(f'v_add_f32 v{gS}, v{gS}, v{gS}')
for c_, s_ in ((gc, gs), (hc, hs)):
    for jj in range(8):
        a(f'v_cos_f32 v{c_+jj}, v{s_+jj}')
    for jj in range(8):
        a(f'v_sin_f32_e64 v{s_+jj}, -v{s_+jj}')
    for jj in range(8):
        a(f'v_cndmask_b32_e64 v{s_+jj}, v{s_+jj}, {"1.0" if jj % 2 == 0 else "-1.0"}, vcc')
for jj in range(4):
    a(f'{cvt} v{pB[0]+jj}, v{gc+2*jj}, v{gc+2*jj+1}')
    a(f'{cvt} v{pB[0]+4+jj}, v{gs+2*jj}, v{gs+2*jj+1}')
for r_ in range(176, 240, 2):
    a(f'v_mov_b64 {v(r_,2)}, 0')
a(f'v_lshrrev_b32 v{t0+2}, 3, v{t0}')
a(f'v_mul_u32_u24 v{t0+2}, 5120, v{t0+2}')
a(f'v_lshl_add_u32 v{t0+2}, v10, 7, v{t0+2}')
a(f'v_bfe_u32 v{t0+3}, v0, 1, 3')
a(f'v_xor_b32 v{t0+3}, v{t0+3}, v{t0+1}')
a(f'v_lshl_add_u32 v{t0+2}, v{t0+3}, 4, v{t0+2}')
for q in range(4):
    a(f'v_xor_b32 v{vF+q}, {32*q}, v{t0+2}')
    a(f'v_add_u32 v{vF+q}, s24, v{vF+q}')
a(f'v_mul_u32_u24 v{t0+3}, {4*98304}, v{t0+1}')
a(f'v_lshl_add_u32 v{vZ}, v{t0}, 2, v{t0+3}')
a(f'v_add_u32 v{t0+3}, 640, v{t0+3}')
a(f'v_mov_b32 v{t0+4}, {hx(OOB)}')
a(f'v_cndmask_b32 v{vZ+1}, v{t0+4}, v{t0+3}, vcc')
a(f'v_cndmask_b32_e64 v{t0+5}, -1, 0, vcc')
a.label('L_fold')
stamp(2)
gw = 136
a(f'v_mov_b32 v14, {hx(OOB)}')
a('s_cmp_lg_u32 s14, s8')
a('s_cbranch_scc1 L_fold_go')
a(f'v_lshl_add_u32 v14, v10, 4, s15')
a(f's_waitcnt vmcnt({10+PFE})')
for i in range(10):
    a(f'ds_read_b128 {v(gw+4*i,4)}, v14 offset:{128*i}')
ga = 16
for q in range(4):
    a(f'v_mov_b32 v{ga+q}, 0')
a('s_and_b32 s64, s62, 31')
a('s_lshl_b32 s64, s64, 8')
a('s_lshr_b32 s65, s62, 5')
a('s_lshl_b32 s65, s65, 2')
a('s_add_u32 s64, s64, s65')
a('s_lshl_b32 s65, s63, 6')
a('s_add_u32 s64, s64, s65')
a(f's_add_u32 s64, s64, {G_OFF}')
a('v_lshl_add_u32 v14, v8, 3, s64')
a(f'v_mov_b32 v15, {hx(OOB)}')
a('v_cmp_eq_u32 vcc, 0, v10')
a('v_cndmask_b32 v14, v15, v14, vcc')
a('s_waitcnt lgkmcnt(0)')
a.label('L_fold_go')
t = 248
a(f'v_mov_b32 v15, s11')
for l in range(5):
    a(f's_waitcnt vmcnt({8-2*l+PFE})')
    lo, hi = dD + 8 * l, dD + 8 * l + 4
    o_ = 4 if l % 2 == 0 else 20
    for q in range(4):
        a(f'v_perm_b32 v{t+2*q}, v{hi+q}, v{lo+q}, s12')
        a(f'v_perm_b32 v{t+2*q+1}, v{hi+q}, v{lo+q}, s13')
    for q in range(8):
        a(f'v_dot2_f32_bf16 v{t+q}, v{t+q}, v15, 0')
    for q in range(4):
        a(f'{cvt} v{o_+q}, v{t+2*q}, v{t+2*q+1}')
    a(f'ds_write_b128 v{dWr}, {v(o_,4)} offset:{l*1024}')
a('s_cmp_lg_u32 s8, 2')
a('s_cbranch_scc1 L_fold_done')
a('s_mov_b32 s8, 3')
a('s_mov_b32 s11, 0xbf803f80')
a(f'v_add_u32 v{dWr}, 40960, v{dWr}')
a('s_branch L_fold_go')
a.label('L_fold_done')
a('s_waitcnt lgkmcnt(0)')
stamp(3)
a('s_barrier')
a('s_cmp_lg_u32 s14, s8')
a('s_cbranch_scc1 L_nogate')
for l in range(5):
    for h in range(2):
        for q in range(4):
            a(f'v_dot2c_f32_bf16 v{ga+q}, v{dD+8*l+4*h+q}, v{gw+4*(l+5*h)+q}')
a(f'v_add_f32 v{ga}, v{ga}, v{ga+1}')
a(f'v_add_f32 v{ga+2}, v{ga+2}, v{ga+3}')
a(f'v_add_f32 v{ga}, v{ga}, v{ga+2}')
a(f'v_add_f32_dpp v{ga}, v{ga}, v{ga} quad_perm:[1,0,3,2] row_mask:0xf bank_mask:0xf')
a(f'v_add_f32_dpp v{ga}, v{ga}, v{ga} quad_perm:[2,3,0,1] row_mask:0xf bank_mask:0xf')
a(f'v_add_f32_dpp v{ga}, v{ga}, v{ga} row_half_mirror row_mask:0xf bank_mask:0xf')
a(f'v_mul_f32 v{ga}, {hx(f2u(-math.log2(math.e)))}, v{ga}')
a(f'v_exp_f32 v{ga}, v{ga}')
a(f'v_add_f32 v{ga}, 1.0, v{ga}')
a(f'v_rcp_f32 v9, v{ga}')
a(f'buffer_store_dword v9, v14, {s(SRD_WS,4)}, 0 offen sc1')
a.label('L_nogate')
a('s_cmp_ge_u32 s3, 4')
a('s_cbranch_scc1 L_dc')
if PFW:
    srd(SRD_X, S_WO, 819200)
    a('s_lshr_b32 s60, s6, 3')
    a('s_lshl_b32 s60, s60, 2')
    a('s_add_u32 s60, s60, s3')
    a('s_and_b32 s61, s2, 7')
    a('s_mul_i32 s61, s61, 6')
    a('s_add_u32 s60, s60, s61')
    a('s_cmp_ge_u32 s60, 48')
    a('s_cselect_b32 s61, 48, 0')
    a('s_sub_u32 s60, s60, s61')
    a('s_lshl_b32 s60, s60, 14')
    a('v_lshlrev_b32 v12, 7, v0')
    a(f'buffer_load_dword v180, v12, {s(SRD_X,4)}, s60 offen')
    a('s_add_u32 s60, s60, 8192')
    a(f'buffer_load_dword v181, v12, {s(SRD_X,4)}, s60 offen')
srd(SRD_B, S_WS, 2621440)
a('s_lshl_b32 s60, s6, 2')
a('s_add_u32 s60, s60, s3')
a('s_mul_i32 s60, s60, 7168')
a('v_mov_b64 v[4:5], -1')
a('v_mov_b64 v[6:7], -1')
for i in range(7):
    if i == 4:
        a('s_add_u32 s60, s60, 4096')
    a(f'buffer_store_dwordx4 v[4:7], v13, {s(SRD_B,4)}, s60 offen offset:{(i&3)*1024} sc1')
a('s_call_b64 s[60:61], L_p2setup')
a(f'v_mov_b32 v{vFl}, {hx(OOB)}')
a('s_lshr_b32 s64, s6, 2')
a('s_lshl_b32 s64, s64, 7')
a('s_and_b32 s65, s6, 3')
a('s_lshl_b32 s65, s65, 2')
a('s_add_u32 s64, s64, s65')
a(f's_add_u32 s64, s64, {F_OFF}')
a(f'v_lshl_add_u32 v{kt}, v0, 13, s64')
a(f'v_mov_b32 v{kt+1}, s{S_N}')
a(f'v_mov_b32 v{kt+2}, s{S_N+1}')
a(f'v_and_b32 v{kt+3}, 1, v0')
a(f'v_cmp_eq_u32 vcc, 1, v{kt+3}')
a(f'v_cndmask_b32 v{kt+1}, v{kt+1}, v{kt+2}, vcc')
a(f'v_add_u32 v{kt+1}, 1, v{kt+1}')
my_nonce(sNon)
a('s_waitcnt vmcnt(0)')
stamp(3)
a('s_barrier')
stamp(4)
a('s_cmp_lg_u32 s3, 3')
a('s_cbranch_scc1 L_tail2')
a('s_mov_b64 exec, 0xff')
a(f'buffer_store_dword v{kt+1}, v{kt}, {s(SRD_WS,4)}, 0 offen sc0 sc1')
a('s_mov_b64 exec, -1')
a.label('L_tail2')
wo_chunk(0)
wo_chunk(1)
a('s_branch L_post9')

a.label('L_dc')
a('s_setprio 2')
a('s_cmp_ge_u32 s22, 2')
a('s_cbranch_scc1 L_dc_end')
a('s_lshl_b32 s62, s7, 2')
a('s_add_u32 s62, s62, s4')
a('s_lshl_b32 s62, s62, 1')
a('s_add_u32 s62, s62, s22')
a('s_mul_i32 s62, s62, 768')
a('s_lshl_b32 s61, s23, 7')
a('s_add_u32 s62, s62, s61')
aF = [[96 + 8 * q + 4 * w for w in range(2)] for q in range(4)]


def a_reads(q, wrap):
    return [f'ds_read_b128 {v(aF[q][w],4)}, v{vF+q} offset:{w*20480+(1024 if wrap else 0)}' for w in range(2)]


for q in range(2):
    for x in a_reads(q, False):
        a(x)
for r_ in range(16):
    a(f's_add_u32 s{64+r_}, s62, {Z_OFF + (8*(r_>>2)+(r_&3))*98304}')
a('s_mov_b32 s61, 5')
stamp(4)
a('.p2align 3')
a.label('L_dloop')
for q in range(4):
    cur, nxt = pB[q & 1], pB[(q + 1) & 1]
    for x in a_reads((q + 2) & 3, q >= 2):
        a(x)
    a('s_waitcnt lgkmcnt(4)')
    if q == 0:
        a('s_sub_u32 s61, s61, 1')
    elif q == 1:
        a('s_cmp_lg_u32 s61, 0')
    else:
        a('s_nop 0')
    for g4 in range(4):
        w, tb = g4 >> 1, g4 & 1
        d = v(acc[w][tb], 16)
        a(f'{M32} {d}, {v(aF[q][w],4)}, {v(cur+4*tb,4)}, {d}')
        jj = 2 * g4
        (c0, s0), (c1, s1) = ((gc, gs), (hc, hs)) if q % 2 == 0 else ((hc, hs), (gc, gs))
        for x0, x1 in ((c0, c1), (s0, s1)):
            for e_ in range(2):
                a(f'v_fma_f32 v{x1+jj+e_}, v{gS}, v{x0+jj+e_}, -v{x1+jj+e_}')
        a(f'{cvt} v{nxt+g4}, v{c1+jj}, v{c1+jj+1}')
        a(f'{cvt} v{nxt+4+g4}, v{s1+jj}, v{s1+jj+1}')
for q in range(4):
    a(f'v_add_u32 v{vF+q}, 1024, v{vF+q}')
a('s_cbranch_scc1 L_dloop')
a.check_backedge('L_dloop')
stamp(6)
pk = [[128, 136], [144, 152]]
for w in range(2):
    for tb in range(2):
        for i in range(8):
            a(f'{cvt} v{pk[w][tb]+i}, v{acc[w][tb]+2*i}, v{acc[w][tb]+2*i+1}')


def z_out(Zr, Zi, w, va):
    L = []
    for r_ in range(16):
        L.append(f'{cvt} v{Zr+r_}, v{Zr+r_}, v{Zi+r_}')
        L.append(f'buffer_store_dword v{Zr+r_}, v{va}, {s(SRD_WS,4)}, s{64+r_} offen offset:{w*3072} sc1')
    return L


a('s_cmp_lg_u32 s25, 0')
a('s_cbranch_scc1 L_dc_nospec')
T = []
for w in range(2):
    Zr, Zi = acc[w]
    pb = pk[w][1]
    T += [f'{M32} {v(Zr,16)}, {v(cC,4)}, {v(pb,4)}, 0', f'{M32} {v(Zi,16)}, {v(cP,4)}, {v(pb,4)}, 0',
          f'{M32} {v(Zr,16)}, {v(cC+4,4)}, {v(pb+4,4)}, {v(Zr,16)}', f'{M32} {v(Zi,16)}, {v(cP+4,4)}, {v(pb+4,4)}, {v(Zi,16)}']
    T += [f'v_and_b32 v{pb+i}, v{t0+5}, v{pb+i}' for i in range(8)]
    T += z_out(Zr, Zi, w, vZ + 1)
for x in schedule(T)[0]:
    a(x)
a('s_nop 1')
a.label('L_dc_nospec')
a('s_nop 1')
T = []
for w in range(2):
    Zr, Zi = acc[w]
    pa, pb = pk[w]
    T += [
        f'{M32} {v(Zr,16)}, {v(cC,4)}, {v(pa,4)}, 0',
        f'{M32} {v(Zi,16)}, {v(cP,4)}, {v(pa,4)}, 0',
        f'{M32} {v(Zr,16)}, {v(cC+4,4)}, {v(pa+4,4)}, {v(Zr,16)}',
        f'{M32} {v(Zi,16)}, {v(cP+4,4)}, {v(pa+4,4)}, {v(Zi,16)}',
        f'{M32} {v(Zr,16)}, {v(cN,4)}, {v(pb,4)}, {v(Zr,16)}',
        f'{M32} {v(Zi,16)}, {v(cC,4)}, {v(pb,4)}, {v(Zi,16)}',
        f'{M32} {v(Zr,16)}, {v(cN+4,4)}, {v(pb+4,4)}, {v(Zr,16)}',
        f'{M32} {v(Zi,16)}, {v(cC+4,4)}, {v(pb+4,4)}, {v(Zi,16)}',
    ]
M0_, M1_ = T[:8], T[8:]
for x in M0_ + M1_[:3] + interleave(M1_[3:], z_out(acc[0][0], acc[0][1], 0, vZ), per=6) + z_out(acc[1][0], acc[1][1], 1, vZ):
    a(x)
stamp(9)
a.label('L_dc_end')
a('s_waitcnt vmcnt(0) lgkmcnt(0)')
a('s_barrier')
endpgm()

retry_stubs()
a.label('L_exit')
a('s_endpgm')
if PROF:
    a.label('L_prof_end')
    a('s_waitcnt vmcnt(0)')
    a('s_memtime s[76:77]')
    a('s_memrealtime s[78:79]')
    a('s_waitcnt lgkmcnt(0)')
    a(f's_mov_b32 s72, s{S_WS}')
    a(f's_mov_b32 s73, s{S_WS+1}')
    a('s_mov_b32 s74, 0x1000000')
    a('s_mov_b32 s75, 0x20000')
    a('v_mov_b32 v2, s100')
    for i in range(1, NST):
        a(f's_sub_u32 s71, s{80+2*i}, s80')
        a(f's_cmp_eq_u32 s{80+2*i}, 0')
        a(f's_cselect_b32 s71, 0, s71')
        a(f'v_mov_b32 v{2+i}, s71')
    a('s_sub_u32 s76, s76, s80')
    a('v_mov_b32 v12, s76')
    a('v_mov_b32 v13, s78')
    a('s_lshl_b32 s71, s2, 3')
    a('s_add_u32 s71, s71, s3')
    a('s_lshl_b32 s71, s71, 6')
    a(f's_add_u32 s71, s71, {PROF_OFF}')
    a('v_mov_b32 v1, s71')
    a('buffer_store_dwordx4 v[2:5], v1, s[72:75], 0 offen')
    a('buffer_store_dwordx4 v[6:9], v1, s[72:75], 0 offen offset:16')
    a('buffer_store_dwordx4 v[10:13], v1, s[72:75], 0 offen offset:32')
    a('s_endpgm')

hdr = open('cdna_kernels/' + NAME + '.s.ref').read().split('; Override launch')[0]
out = hdr
out += f'; @launch grid=(256,1,1) block=(512,1,1) lds=163840\n'
out += '.amdgcn_target "amdgcn-amd-amdhsa--gfx950"\n.text\n'
if AL8:
    print('align8', a.align8())
out += a.text()
out += f'''.section .rodata,"a"
.p2align 6
.amdhsa_kernel {KN}
  .amdhsa_next_free_vgpr 256
  .amdhsa_next_free_sgpr 102
  .amdhsa_accum_offset 256
  .amdhsa_group_segment_fixed_size 0
  .amdhsa_kernarg_size 96
  .amdhsa_user_sgpr_count 2
  .amdhsa_user_sgpr_kernarg_segment_ptr 1
  .amdhsa_system_sgpr_workgroup_id_x 1
.end_amdhsa_kernel
'''
open(sys.argv[1], 'w').write(out)
print('wrote', sys.argv[1], 'lines', out.count('\n'), 'nops', a.nnop, 'qc vgpr', ra.hi, 'p2 vgpr', rk.hi)
```

```python
import sys, struct, math
from asmlib import *

NAME = 'gated_mix__spectral_fnet__sliding_local_dilated__prompt'
PROF = 0
PFW = 1
SLP_D = 3
SLP_Q = 2
DBG = 0
PK = 1
PFP = 2
FPOS = 100
PFE = 0
CHK1 = 1
AL8 = 1
PFC = 1
SPLIT = 1
NUP = 13
SLP_R = 4
for arg in sys.argv[2:]:
    k_, v_ = arg.split('=')
    globals()[k_] = int(v_)
NB = 7
U = 16 * NB - 7
JMAX = 1024 - 16 * NB
ABYTES = 16 * NB * 128
SL = ABYTES + 64 * 480
O_OFF = 0
Z_OFF = 2621440
G_OFF = Z_OFF + 3145728
F_OFF = G_OFF + 8192
N_OFF = F_OFF + 65536
WS_SIZE = N_OFF + 128
OOB = 0x80000000
WCH = [45056, 65536, 90112, 0, 20480]
ZIMG = 135168
OST = 110592
OROW, OBLK = 176, 2976
OIMG = [135168, 110592, 45056, 65536]
CNT = 163008
SPIN = 400000


def f2u(x):
    return struct.unpack('<I', struct.pack('<f', x))[0]


def hx(x):
    return hex(x & 0xffffffff)


def swap23(k):
    return (k & ~12) | ((k & 4) << 1) | ((k & 8) >> 1)


a = Asm()
S_X, S_WDR, S_WDI, S_WQKV, S_WO = 16, 22, 24, 28, 30
S_GW, S_OUT, S_DBG, S_WS = 32, 34, 36, 38
SRD_X, SRD_B, SRD_C, SRD_WS, SRD_G = 40, 44, 48, 52, 56
S_N = 18
cvt = 'v_cvt_pk_bf16_f32'
mf = 'v_mfma_f32_16x16x32_bf16'
M32 = 'v_mfma_f32_32x32x16_bf16'
KN = NAME + '_kernel'


def srd(d, ptr, size):
    a(f's_mov_b64 s[{d}:{d+1}], s[{ptr}:{ptr+1}]')
    a(f's_mov_b32 s{d+2}, {hx(size)}')
    a(f's_mov_b32 s{d+3}, 0x20000')


PROF_OFF = 0x800000
NST = 10


def stamp(i, mode=None):
    if PROF and ((mode is None and (PROF < 3 or i == 0)) or mode == PROF):
        a(f's_memtime s[{80+2*i}:{81+2*i}]')


def stamps(i, mode):
    return [f's_memtime s[{80+2*i}:{81+2*i}]'] if PROF == mode else []


def endpgm():
    a('s_branch L_prof_end' if PROF else 's_endpgm')


def nonce_load():
    a(f's_add_u32 s20, s{S_WS}, {N_OFF}')
    a(f's_addc_u32 s21, s{S_WS+1}, 0')
    a(f's_load_dwordx2 s[{S_N}:{S_N+1}], s[20:21], 0')


def my_nonce(d):
    a('s_bitcmp0_b32 s2, 0')
    a(f's_cselect_b32 s{d}, s{S_N}, s{S_N+1}')
    a(f's_add_u32 s{d}, s{d}, 1')


a(f'.globl {KN}')
a('.p2align 8')
a(f'.type {KN},@function')
a.label(KN)
if PROF:
    a('s_memrealtime s[100:101]')
    stamp(0)
a('s_load_dwordx16 s[16:31], s[0:1], 0')
a('s_load_dwordx8 s[32:39], s[0:1], 64')
if PFC:
    a('s_getpc_b64 s[4:5]')
    a.label('L_pc')
    a('s_bfe_u32 s6, s2, 0x20003')
    a('s_lshl_b32 s6, s6, 7')
    a('v_lshl_add_u32 v2, v0, 9, s6')
    a('v_cmp_gt_u32 vcc, L_codeend-L_pc-4, v2')
    a('s_and_saveexec_b64 s[6:7], vcc')
    a('s_cbranch_execz L_nopfc')
    a('global_load_dword v255, v2, s[4:5]')
    a.label('L_nopfc')
    a('s_mov_b64 exec, s[6:7]')
a('v_lshrrev_b32 v1, 6, v0')
a('v_and_b32 v0, 63, v0')
a('v_readfirstlane_b32 s3, v1')
if PROF:
    for i in range(1, NST):
        a(f's_mov_b32 s{80+2*i}, 0')
a('s_cmp_ge_u32 s2, 256')
a('s_cbranch_scc1 L_exit')
a('s_and_b32 s4, s2, 1')
a('s_bfe_u32 s5, s2, 0x20001')
a('s_lshr_b32 s6, s2, 3')
a('s_cmp_lt_u32 s6, 8')
a('s_cbranch_scc1 L_dft')
a('s_sub_u32 s6, s6, 8')
a('s_cmp_ge_u32 s6, 20')
a('s_cbranch_scc1 L_dftx')
a('s_lshr_b32 s12, s6, 2')
a('s_and_b32 s7, s5, 1')
a('s_mul_i32 s7, s7, 5')
a('s_add_u32 s7, s7, s12')
a('s_and_b32 s9, s6, 3')
a('s_and_b32 s8, s2, 4')
a('s_add_u32 s8, s8, s9')
a(f's_mul_i32 s10, s7, {U}')
a(f's_min_u32 s10, s10, {JMAX}')
a('s_cmp_ge_u32 s3, 4')
a('s_cbranch_scc1 L_qc')

rk = RA(2, 256)
vO = rk.get(2); vOr = rk.get(2); vGt = rk.get(2); vZa = rk.get(5); vGa = rk.get(1); vOut = rk.get(2); vWa = rk.get(2); kt = rk.get(8)
accD = [rk.get(4) for t in range(5)]
accO = [rk.get(4) for t in range(5)]
NO = 6
oF = [rk.get(4) for i in range(NO)]
NR = 8
bF = [[rk.get(4) for t in range(5)] for k in range(NR)]
vCn = rk.get(2)
WsF = accO[0]
vT = kt
vPd = oF[0]; vW = oF[2]; vZp = vW + 5; vPa = vW + 6; vFl = vW + 7; vPq = vW + 8
vA = bF[7][0]; vB = vA + 4
sOb, sImg, sGo, sT1, sNon, sZok, sRet, sMir = 22, 23, 24, 25, 26, 27, 28, 29

a(f'v_lshrrev_b32 v{vT}, 3, v0')
a('s_mul_i32 s11, s3, 28')
a(f'v_add_u32 v{vT+1}, s11, v{vT}')
a(f'v_mul_u32_u24 v{vT}, 2560, v{vT}')
for i in range(4):
    if i:
        a(f'v_add_u32 v{vT+1}, 7, v{vT+1}')
        a(f'v_add_u32 v{vT}, {7*2560}, v{vT}')
    a(f'v_lshrrev_b32 v{vT+2}, 1, v{vT+1}')
    a(f'v_xor_b32 v{vT+2}, v{vT+2}, v0')
    a(f'v_and_b32 v{vT+2}, 7, v{vT+2}')
    a(f'v_lshl_add_u32 v{vA+i}, v{vT+2}, 4, v{vT}')
a(f'v_mul_u32_u24 v{vT}, 205, v0')
a(f'v_lshrrev_b32 v{vT}, 11, v{vT}')
a(f'v_mul_u32_u24 v{vT+1}, 1120, v{vT}')
a(f'v_lshl_add_u32 v{vB}, v0, 4, v{vT+1}')
a('s_add_u32 s11, s11, s10')
a('s_lshl_b32 s11, s11, 1')
a('s_add_u32 s11, s11, s4')
a('s_mul_i32 s11, s11, 1280')
a('s_mul_i32 s13, s8, 160')
a(f's_mul_i32 s14, s3, {16*3840}')
a('s_add_u32 s13, s13, s14')
a('s_mul_i32 s14, s9, 5')
a('s_add_u32 s14, s14, 1')
a('s_lshr_b32 s14, s14, 1')
a('s_lshl_b32 s12, s12, 1')
a('s_add_u32 s12, s12, s14')
a('s_cmp_ge_u32 s12, 10')
a('s_cselect_b32 s14, 10, 0')
a('s_sub_u32 s12, s12, s14')
a('s_mul_i32 s14, s3, 3584')
a(f's_mul_i32 s15, s3, {8*960}')
a(f's_add_u32 s15, s15, {ABYTES}')
a('s_mov_b32 s62, 0')
a('s_waitcnt lgkmcnt(0)')
stamp(1)
srd(SRD_X, S_X, 2621440)
srd(SRD_B, S_WQKV, 2457600)
a('s_branch L_ql_main')
a.label('L_issue')
a('s_lshl_b32 s64, s12, 7')
a('s_mov_b32 exec_hi, 0x00ffffff')
a('s_add_u32 m0, s62, s14')
a('s_add_u32 s64, s64, s11')
for i in range(4):
    if i:
        a('s_add_u32 m0, m0, 896')
    if not (DBG & 2):
        a(f'buffer_load_dwordx4 v{vA+i}, {s(SRD_X,4)}, s64 offen lds')
a('s_mul_i32 s65, s12, 245760')
a('s_mov_b32 exec_hi, 0x0fffffff')
a('s_add_u32 m0, s62, s15')
a('s_add_u32 s65, s65, s13')
for i in range(8):
    if i:
        a('s_add_u32 m0, m0, 960')
        a(f's_add_u32 s64, s65, {swap23(2*i)*3840}')
    if not (DBG & 4):
        a(f'buffer_load_dwordx4 v{vB}, {s(SRD_B,4)}, s{64 if i else 65} offen lds')
a('s_mov_b32 exec_hi, -1')
a('s_add_u32 s12, s12, 1')
a('s_cmp_eq_u32 s12, 10')
a('s_cselect_b32 s12, 0, s12')
a(f's_add_u32 s62, s62, {SL}')
a(f's_cmp_eq_u32 s62, {3*SL}')
a('s_cselect_b32 s62, 0, s62')
a('s_setpc_b64 s[60:61]')


def p2_decode(t1, jreg, mir, zt, jj, tmp1, tmp2):
    a(f's_bfe_u32 s{jreg}, s2, 0x30003')
    a(f's_and_b32 s{t1}, s2, 1')
    a(f's_and_b32 s{tmp1}, s2, 6')
    a(f's_lshr_b32 s{tmp2}, s2, 7')
    a(f's_add_u32 s{tmp1}, s{tmp1}, s{tmp2}')
    a(f's_lshl_b32 s{tmp1}, s{tmp1}, 1')
    a(f's_add_u32 s{t1}, s{t1}, s{tmp1}')
    a(f's_sub_u32 s{tmp1}, 32, s{t1}')
    a(f's_cmp_eq_u32 s{t1}, 0')
    a(f's_cselect_b32 s{tmp1}, 16, s{tmp1}')
    a('s_bitcmp1_b32 s2, 6')
    a(f's_cselect_b32 s{t1}, s{tmp1}, s{t1}')
    if zt is None:
        a(f's_cmp_ge_u32 s{jreg}, 4')
        a(f's_cselect_b32 s{mir}, 1, 0')
        return
    a(f's_sub_u32 s{tmp1}, 32, s{t1}')
    a(f's_and_b32 s{tmp1}, s{tmp1}, 31')
    a(f's_sub_u32 s{tmp2}, 7, s{jreg}')
    a(f's_cmp_ge_u32 s{jreg}, 4')
    a(f's_cselect_b32 s{zt}, s{tmp1}, s{t1}')
    a(f's_cselect_b32 s{jj}, s{tmp2}, s{jreg}')


def check(cur, sn):
    for q in range(4):
        a(f'v_xor_b32 v{cur+q}, s{sn}, v{cur+q}')
    a(f'v_or3_b32 v{cur}, v{cur}, v{cur+1}, v{cur+2}')
    a(f'v_or_b32 v{cur}, v{cur}, v{cur+3}')
    a(f'v_cmp_ne_u32 vcc, 0, v{cur}')


def poll(tag, va, vd, soff, sn, scnt, slp):
    a(f'buffer_load_dwordx4 {v(vd,4)}, v{va}, {s(SRD_WS,4)}, s{soff} offen sc1')
    a.label(f'L_poll_{tag}')
    for h in range(2):
        cur, nxt = (vd, vd + 4) if h == 0 else (vd + 4, vd)
        a(f's_sleep {slp}')
        a(f'buffer_load_dwordx4 {v(nxt,4)}, v{va}, {s(SRD_WS,4)}, s{soff} offen sc1')
        a('s_waitcnt vmcnt(1)')
        check(cur, sn)
        a(f's_cbranch_vccz L_polled_{tag}')
    a(f's_sub_u32 s{scnt}, s{scnt}, 1')
    a(f's_cmp_lg_u32 s{scnt}, 0')
    a(f's_cbranch_scc1 L_poll_{tag}')
    a.label(f'L_polled_{tag}')


def wo_addr_body():
    t = vT
    a('s_lshl_b32 s71, s3, 6')
    a(f'v_add_u32 v{t}, s71, v0')
    for i in range(5):
        if i:
            a(f'v_add_u32 v{t}, 256, v{t}')
        a(f'v_mul_u32_u24 v{t+1}, 6554, v{t}')
        a(f'v_lshrrev_b32 v{t+1}, 16, v{t+1}')
        a(f'v_mul_u32_u24 v{t+2}, 10, v{t+1}')
        a(f'v_sub_u32 v{t+2}, v{t}, v{t+2}')
        a(f'v_lshrrev_b32 v{t+3}, 1, v{t+1}')
        a(f'v_xor_b32 v{t+3}, v{t+3}, v{t+1}')
        a(f'v_and_b32 v{t+3}, 4, v{t+3}')
        a(f'v_mul_u32_u24 v{t+3}, 3, v{t+3}')
        a(f'v_xor_b32 v{t+1}, v{t+3}, v{t+1}')
        a(f'v_mul_u32_u24 v{t+1}, 1280, v{t+1}')
        a(f'v_lshl_add_u32 v{vW+i}, v{t+2}, 4, v{t+1}')
    a('s_bfe_u32 s70, s2, 0x30003')
    a('s_mul_i32 s70, s70, 160')
    a('s_lshl_b32 s71, s3, 10')
    srd(SRD_G, S_WO, 819200)


def wo_chunk(ch):
    a(f's_add_u32 s72, s70, {ch*128*1280}')
    for i in range(5):
        a(f's_add_u32 m0, s71, {WCH[ch]+4096*i}')
        a(f'buffer_load_dwordx4 v{vW+i}, {s(SRD_G,4)}, s72 offen lds')


a.label('L_p2setup0')
wo_addr_body()
a('s_setpc_b64 s[60:61]')
a.label('L_p2setup1')
srd(SRD_WS, S_WS, WS_SIZE)
srd(SRD_C, S_OUT, 2621440)
p2_decode(sT1, 65, None, 66, 67, 68, 69)
a(f's_cselect_b32 s{sMir}, 1, 0')
a('s_mul_i32 s78, s66, 98304')
a('s_mul_i32 s67, s67, 160')
a('s_add_u32 s78, s78, s67')
a('s_mul_i32 s67, s3, 4608')
a('s_add_u32 s78, s78, s67')
a(f's_add_u32 s78, s78, {Z_OFF}')
a('s_and_b32 s79, s2, 7')
a('s_lshl_b32 s79, s79, 13')
a(f's_add_u32 s79, s79, {F_OFF}')
a(f'v_mul_u32_u24 v{vT}, 49, v0')
a(f'v_lshrrev_b32 v{vT}, 10, v{vT}')
a(f'v_mul_u32_u24 v{vT+1}, 21, v{vT}')
a(f'v_sub_u32 v{vT+1}, v0, v{vT+1}')
a(f'v_cmp_gt_u32 vcc, 10, v{vT+1}')
a(f'v_mul_u32_u24 v{vT}, 1536, v{vT}')
a(f'v_lshl_add_u32 v{vT}, v{vT+1}, 4, v{vT}')
a(f'v_add_u32 v{vT+1}, 768, v{vT}')
a(f'v_subrev_u32 v{vT}, 160, v{vT}')
a(f'v_cndmask_b32 v{vZp}, v{vT}, v{vT+1}, vcc')
a(f'v_min_u32 v{vPa}, 23, v0')
a(f'v_lshlrev_b32 v{vPa}, 7, v{vPa}')
a(f'v_min_u32 v{vPq}, 19, v0')
a(f'v_lshlrev_b32 v{vPq}, 7, v{vPq}')
a(f'v_add_u32 v{vPq}, 4096, v{vPq}')
a(f'v_mov_b32 v{vCn}, {CNT}')
a(f'v_mov_b32 v{vCn+1}, 1')
a('s_setpc_b64 s[60:61]')
a.label('L_p2setup2')
a(f'v_and_b32 v{kt}, 15, v0')
a(f'v_lshrrev_b32 v{kt+1}, 4, v0')
a(f'v_lshrrev_b32 v{kt+2}, 5, v0')
a(f'v_bfe_u32 v{kt+3}, v0, 2, 3')
a(f'v_lshl_add_u32 v{kt+3}, v{kt+2}, 4, v{kt+3}')
a(f'v_mul_u32_u24 v{kt+3}, 160, v{kt+3}')
a(f'v_and_b32 v{kt+4}, 3, v0')
a(f'v_lshl_add_u32 v{vWa}, v{kt+4}, 3, v{kt+3}')
a(f'v_add_u32 v{vWa+1}, {WCH[1]}, v{vWa}')
a(f'v_lshlrev_b32 v{vO}, 4, v0')
a(f'v_mul_u32_u24 v{kt+3}, {327680-2560}, v{kt+2}')
a(f'v_add_u32 v{vO+1}, v{vO}, v{kt+3}')
a(f's_mov_b32 s{sImg}, {OIMG[0]}')
for i in range(1, 4):
    a(f's_cmp_eq_u32 s3, {i}')
    a(f's_cselect_b32 s{sImg}, {OIMG[i]}, s{sImg}')
a(f'v_mul_u32_u24 v{kt+3}, 160, v{kt}')
a(f'v_lshl_add_u32 v{kt+3}, v{kt+1}, 4, v{kt+3}')
a(f'v_add_u32 v{vOr}, s{sImg}, v{kt+3}')
a(f'v_mul_u32_u24 v{kt+3}, 2400, v{kt+2}')
a(f'v_add_u32 v{vOr+1}, v{vOr}, v{kt+3}')
a(f's_lshl_b32 s{sOb}, s{sT1}, 2')
a(f's_add_u32 s{sOb}, s{sOb}, s3')
a(f's_lshl_b32 s{sGo}, s{sOb}, 6')
a(f's_add_u32 s{sGo}, s{sGo}, {G_OFF}')
a(f's_mul_i32 s{sOb}, s{sOb}, 2560')
a(f'v_lshlrev_b32 v{vGa}, 2, v{kt}')
a('s_lshl_b32 s66, s3, 9')
a(f's_add_u32 s66, s66, s{sT1}')
a(f'v_lshl_add_u32 v{kt+2}, v{kt}, 5, s66')
a(f'v_mul_u32_u24 v{vOut}, 1280, v{kt+2}')
a(f'v_add_u32 v{vOut}, s70, v{vOut}')
a(f'v_lshl_add_u32 v{vOut+1}, v{kt+1}, 3, v{vOut}')
a(f'v_and_b32 v{kt+3}, 1, v{kt+1}')
a(f'v_lshl_add_u32 v{vOut}, v{kt+3}, 5, v{vOut}')
a(f'v_and_b32 v{kt+3}, 2, v{kt+1}')
a(f'v_lshl_add_u32 v{vOut}, v{kt+3}, 3, v{vOut}')
a(f'v_cvt_f32_u32 v{kt+2}, v{kt+2}')
a(f's_lshl_b32 s66, s{sMir}, 31')
a(f'v_xor_b32 v{kt+2}, s66, v{kt+2}')
a(f'v_cvt_f32_u32 v{kt+3}, v{kt+1}')
a(f'v_mul_f32 v{kt+3}, v{kt+3}, v{kt+2}')
a(f'v_mul_f32 v{kt+3}, {hx(f2u(4/2048.0))}, v{kt+3}')
for i in range(4):
    if i in (0, 2):
        a('s_setpc_b64 s[60:61]')
        a.label(f'L_p2setup{3+i//2}')
    for jr in range(0, 4, 2):
        for e in range(2):
            a(f'v_fmamk_f32 v{kt+4+e}, v{kt+2}, {hx(f2u((16*i+jr+e)/2048.0))}, v{kt+3}')
        for e in range(2):
            a(f'v_cos_f32 v{kt+6+e}, v{kt+4+e}')
            a(f'v_sin_f32 v{kt+4+e}, v{kt+4+e}')
        for e in range(2):
            a(f'{cvt} v{WsF+4*i+jr+e}, v{kt+6+e}, v{kt+4+e}')
a(f's_cmp_eq_u32 s{sMir}, 0')
a('s_cselect_b32 s66, 0, 80')
a('s_cselect_b32 s67, 1, -1')
a('s_cselect_b32 s68, 32, -32' if False else 's_cselect_b32 s68, 32, 0xffffffe0')
a(f'v_mul_u32_u24 v{kt+4}, {4*336}, v{kt+1}')
a(f'v_add_u32 v{kt+4}, {ZIMG}, v{kt+4}')
a(f'v_mul_lo_u32 v{kt+2}, v{kt}, s67')
a(f'v_add_u32 v{kt+2}, s66, v{kt+2}')
a(f'v_and_b32 v{kt+3}, 1, v{kt+2}')
a(f'v_xor_b32 v{kt+3}, 1, v{kt+3}')
a(f'v_mul_u32_u24 v{kt+3}, 160, v{kt+3}')
a(f'v_lshrrev_b32 v{kt+2}, 1, v{kt+2}')
a(f'v_lshl_add_u32 v{kt+2}, v{kt+2}, 2, v{kt+3}')
a(f'v_add_u32 v{vZa}, v{kt+2}, v{kt+4}')
for T in range(1, 5):
    a(f'v_add_u32 v{vZa+T}, s68, v{vZa+T-1}')
a(f's_mov_b32 s{sZok}, s3')
a(f's_mov_b32 s{sRet}, 20000')
a('s_setpc_b64 s[60:61]')

def _unused(ch):
    a(f's_add_u32 s72, s70, {ch*128*1280}')
    for i in range(5):
        a(f's_add_u32 m0, s71, {WCH[ch]+4096*i}')
        a(f'buffer_load_dwordx4 v{vW+i}, {s(SRD_G,4)}, s72 offen lds')


def spin(tag, off, n):
    a(f's_branch L_spin1_{tag}')
    a.label(f'L_spin_{tag}')
    a('s_sleep 1')
    a.label(f'L_spin1_{tag}')
    a(f'ds_read_b32 v{kt}, v{vCn} offset:{off}')
    a('s_waitcnt lgkmcnt(0)')
    a(f'v_readfirstlane_b32 s64, v{kt}')
    a(f's_cmp_ge_u32 s64, {n}')
    a(f's_cbranch_scc0 L_spin_{tag}')


def lds_inc(off):
    a('s_mov_b64 exec, 1')
    a(f'ds_add_u32 v{vCn}, v{vCn+1} offset:{off}')
    a('s_mov_b64 exec, -1')


def w_reads(ks):
    ch, kb = ks >> 2, ks & 3
    ad, base = (vWa + 1, WCH[ch] - WCH[1]) if ch in (1, 2) else (vWa, WCH[ch])
    return [f'ds_read_b64_tr_b16 {v(bF[ks%NR][T]+2*bs,2)}, v{ad} offset:{base+kb*5120+bs*1280+32*T}'
            for T in range(5) for bs in range(2)]


def preflag():
    a('s_cmp_lg_u32 s3, 3')
    a('s_cbranch_scc1 L_nopre')
    a(f'v_mov_b32 v{kt}, s{sNon}')
    a('s_mov_b64 exec, 15')
    a(f'buffer_store_dword v{kt}, v{vFl}, {s(SRD_WS,4)}, 0 offen sc0 sc1')
    a('s_mov_b64 exec, -1')
    a.label('L_nopre')


a.label('L_ql_main')
toks = [('I', 0)] + ([] if SPLIT else [('S', 0)]) + [('I', 1), ('W', 0)]
for i in range(1, 9):
    toks += [('J' if SPLIT and i <= 5 else 'I', i + 1)] + ([('P', 0)] if i == 8 else []) + [('W', i)]
toks += [('C', 0), ('C', 1), ('W', 9)]
seqv = []
for tk, k in toks:
    if tk == 'I':
        a('s_call_b64 s[60:61], L_issue')
        seqv += [('I', k)] * ((0 if DBG & 2 else 4) + (0 if DBG & 4 else 8))
        if k == 9:
            stamp(3)
    elif tk == 'J':
        pc = k - 2
        a('s_cmp_lt_u32 s3, 2')
        a(f's_cbranch_scc1 L_j{k}')
        a(f's_call_b64 s[60:61], L_p2setup{pc}')
        a('s_call_b64 s[60:61], L_issue')
        a(f's_branch L_jj{k}')
        a.label(f'L_j{k}')
        a('s_call_b64 s[60:61], L_issue')
        a(f's_call_b64 s[60:61], L_p2setup{pc}')
        a.label(f'L_jj{k}')
        seqv += [('I', k)] * 12
        if pc == 0:
            nonce_load()
        if pc == 1:
            a('s_cmp_eq_u32 s3, 0')
            a(f's_cselect_b32 s64, 0, {hx(OOB)}')
            a(f'v_or_b32 v{vPa}, s64, v{vPa}')
    elif tk == 'C':
        wo_chunk(k)
        seqv += [('C', k)] * 5
    elif tk == 'P':
        a(f'buffer_load_dwordx4 {v(vPd,4)}, v{vPa}, {s(SRD_WS,4)}, s79 offen sc1')
        seqv += [('P', 0)]
    elif tk == 'S':
        nonce_load()
        for pc in range(5):
            a(f's_call_b64 s[60:61], L_p2setup{pc}')
        a('s_cmp_eq_u32 s3, 0')
        a(f's_cselect_b32 s64, 0, {hx(OOB)}')
        a(f'v_or_b32 v{vPa}, s64, v{vPa}')
    elif tk == 'W':
        last = max([n for n, t_ in enumerate(seqv) if t_ == ('I', k) or (k == 9 and t_ == ('P', 0))] + [-1])
        if k == 7:
            a('s_waitcnt lgkmcnt(0)')
            my_nonce(sNon)
        a(f's_waitcnt vmcnt({len(seqv)-1-last})')
        if k == 0:
            stamp(2)
        a('s_barrier')
        if k == 9:
            stamp(4)
        if k < 9:
            stamp(k + 1, 3)
stamp(1, 4)
a('s_setprio 3')
a('s_cmp_lg_u32 s3, 0')
a('s_cbranch_scc1 L_post9')
check(vPd, sNon)
a('s_cbranch_vccz L_polled_d')
a.label('L_post9')
a('s_cmp_eq_u32 s3, 0')
a('s_cbranch_scc1 L_post9z')
spin('f', 16, 1)
a('s_branch L_post9b')
a.label('L_post9z')
a(f's_mov_b32 s66, {SPIN}')
poll('d', vPa, vPd, 79, sNon, 66, SLP_D)
a('s_mov_b64 exec, 1')
a(f'ds_add_u32 v{vCn}, v{vCn+1} offset:16')
a(f'ds_add_u32 v{vCn}, v{vCn+1} offset:12')
a('s_mov_b64 exec, -1')
a.label('L_post9b')
stamp(2, 4)
a(f'buffer_load_dword v{vGt}, v{vGa}, {s(SRD_WS,4)}, s{sGo} offen sc1')
a('s_mul_i32 s64, s3, 1008')
a(f's_add_u32 m0, s64, {ZIMG}')
a('s_mov_b32 exec_hi, 0x7fffffff')
for i in range(5):
    a(f'buffer_load_dwordx4 v{vZp}, {s(SRD_WS,4)}, s78 offen sc1 lds')
    a('s_add_u32 m0, m0, 4032')
    a('s_add_u32 s78, s78, 18432')
a('s_cmp_ge_u32 s3, 2')
a('s_cbranch_scc1 L_zret')
a(f'buffer_load_dwordx4 v{vZp}, {s(SRD_WS,4)}, s78 offen sc1 lds')
a.label('L_zret')
a('s_mov_b32 exec_hi, -1')
wo_chunk(2)
a('s_waitcnt vmcnt(11)')
lds_inc(0)
stamp(3, 4)
spin('c', 4, 4)
stamp(4, 4)
wo_chunk(3)
wo_chunk(4)
stamp(5, 4)
a('s_waitcnt vmcnt(15)')
lds_inc(8)
spin('a', 0, 4)
a('s_setprio 0')
stamp(6, 4)
for ks in range(4, 8):
    for x in w_reads(ks):
        a(x)
stamp(7, 4)
spin('z', 8, 4)
stamp(8, 4)
stamp(5, 1)
zr = [[f'ds_read_b32 v{bF[st][T]+jr}, v{vZa+T} offset:{(16*st+jr)*336}' for T in range(5) for jr in range(4)] for st in range(4)]
for x in zr[0] + zr[1]:
    a(x)
for st in range(4):
    a(f's_waitcnt lgkmcnt({15 if st < 3 else 10})')
    Mz = []
    for T in range(5):
        d = v(accD[T], 4)
        Mz.append(f'{mf} {d}, {v(bF[st][T],4)}, {v(WsF+4*st,4)}, {"0" if st == 0 else d}')
    R = zr[st + 2] if st < 2 else w_reads(st - 2)
    for x in interleave(Mz, R, per=4 if st < 2 else 2):
        a(x)
for x in w_reads(2) + w_reads(3):
    a(x)
stamp(9, 4)
if PFP == 1:
    preflag()
a('s_waitcnt vmcnt(0)')
for T in range(5):
    for r_ in range(4):
        a(f'v_mul_f32 v{accD[T]+r_}, v{accD[T]+r_}, v{vGt}')
a(f'v_sub_f32 v{vGt}, 1.0, v{vGt}')
a('s_waitcnt lgkmcnt(0)')
a('s_setprio 3')
stamp(6, 1)
a('s_cmp_lg_u32 s3, 1')
a('s_cbranch_scc1 L_b13')
a(f'buffer_load_dwordx4 {v(vPd,4)}, v{vPq}, {s(SRD_WS,4)}, s79 offen sc1')
a('s_waitcnt vmcnt(0)')
check(vPd, sNon)
a('s_cbranch_vccz L_polled_q')
a(f's_mov_b32 s66, {SPIN}')
poll('q', vPq, vPd, 79, sNon, 66, SLP_Q)
a('s_cmp_ge_u32 s2, 2')
a('s_cbranch_scc1 L_b13')
a('s_lshl_b32 s65, s2, 2')
a(f's_add_u32 s65, s65, {N_OFF}')
a(f'v_mov_b32 v{kt}, s65')
a(f'v_mov_b32 v{kt+1}, s{sNon}')
a('s_mov_b64 exec, 1')
a(f'buffer_store_dword v{kt+1}, v{kt}, {s(SRD_WS,4)}, 0 offen')
a('s_mov_b64 exec, -1')
a.label('L_b13')
stamp(7, 1)
a('s_barrier')
stamp(8, 1)
stamp(1, 5)


def odma(i, first=False):
    hq2, r5 = divmod(i, 5)
    off = hq2 * 655360 + r5 * 1024 + (327680 - 2560 if r5 >= 3 else 0)
    return [f's_add_u32 m0, s{sImg}, {1024*i}', f's_add_u32 s64, s{sOb}, {off}',
            f'buffer_load_dwordx4 v{vO+(r5==2)}, {s(SRD_WS,4)}, s64 offen sc1 lds']


for i in range(NUP):
    for x in odma(i):
        a(x)
nissued = NUP
stamp(2, 5)


def o_read(ks):
    hq2, r5 = divmod(ks, 5)
    off = hq2 * 5120 + r5 * 64 + (2400 if r5 >= 3 else 0)
    return f'ds_read_b128 {v(oF[ks%NO],4)}, v{vOr+(r5==2)} offset:{off}'


def o_need(ks):
    hq2, r5 = divmod(ks, 5)
    return hq2 * 5 + (3 if r5 < 2 else 5)


def o_check(f):
    o = oF[f % NO]
    if CHK1:
        return [f'v_cmp_eq_u32 vcc, -1, v{o+3}']
    return [f'v_max3_u32 v{kt}, v{o}, v{o+1}, v{o+2}', f'v_max_u32 v{kt}, v{kt}, v{o+3}', f'v_cmp_eq_u32 vcc, -1, v{kt}']


OD = 3
lds_seq = []
vm_have = -1


def emit_o(ks):
    global vm_have
    n = o_need(ks)
    assert n <= nissued
    if n > vm_have:
        a(f's_waitcnt vmcnt({nissued-n})')
        vm_have = n
    a(o_read(ks))
    lds_seq.append(('o', ks))


for ks in range(OD):
    emit_o(ks)
a(f's_waitcnt lgkmcnt({OD-1})')
for x in o_check(0):
    a(x)
a('s_cbranch_vccnz L_retry0')
a.label('L_back0')
stamp(3, 5)
wq = [(ks, n, x) for ks in range(NR, 20) for n, x in enumerate(w_reads(ks))]
for ks in range(20):
    if ks + OD < 20:
        emit_o(ks + OD)
    need_ = [n for n, t_ in enumerate(lds_seq) if t_ in (('o', ks), ('o', ks + 1), ('w', ks))]
    assert not any(q[0] == ks for q in wq)
    a(f's_waitcnt lgkmcnt({min(15, len(lds_seq)-1-max(need_))})')
    C = o_check(ks + 1) if ks < 19 else []
    quota = 7
    for T in range(5):
        d = v(accO[T], 4)
        a(f'{mf} {d}, {v(bF[ks%NR][T],4)}, {v(oF[ks%NO],4)}, {"0" if ks == 0 else d}')
        k_here = 2 if T in (1, 3) else 1
        while k_here and quota and wq and (wq[0][0] - NR < ks or (wq[0][0] - NR == ks and wq[0][1] // 2 <= T)):
            q = wq.pop(0)
            a(q[2])
            lds_seq.append(('w', q[0]))
            k_here -= 1
            quota -= 1
        for x in C[T:T+1]:
            a(x)
        if T in (2, 4) and nissued < 20:
            for x in odma(nissued):
                a(x)
            nissued += 1
    if ks < 19:
        a(f's_cbranch_vccnz L_retry{ks+1}')
        a.label(f'L_back{ks+1}')
    if ks in (1, 4, 9, 14, 19):
        stamp({1:4, 4:5, 9:6, 14:7, 19:8}[ks], 5)
stamp(9, 1)
P = bF[0][0]
F = []
for T in range(5):
    for r_ in range(4):
        F.append(f'v_fma_f32 v{accD[T]+r_}, v{accO[T]+r_}, v{vGt}, v{accD[T]+r_}')
    F.append(f'{cvt} v{P+2*T}, v{accD[T]}, v{accD[T]+1}')
    F.append(f'{cvt} v{P+2*T+1}, v{accD[T]+2}, v{accD[T]+3}')
    if T in (1, 3):
        F.append(f'v_permlane16_swap_b32 v{P+2*T-2}, v{P+2*T}')
        F.append(f'v_permlane16_swap_b32 v{P+2*T-1}, v{P+2*T+1}')
        F.append(f'buffer_store_dwordx4 {v(P+2*T-2,4)}, v{vOut}, {s(SRD_C,4)}, 0 offen offset:{32*(T-1)}')
F.append(f'buffer_store_dwordx2 {v(P+8,2)}, v{vOut+1}, {s(SRD_C,4)}, 0 offen offset:128')
for x in F:
    a(x)
if PROF == 1:
    a(f's_sub_u32 s82, s80, s{sRet}')
    a('s_add_u32 s82, s82, 20000')
endpgm()

for i in range(20):
    hq2, r5 = divmod(i, 5)
    off = hq2 * 655360 + r5 * 1024 + (327680 - 2560 if r5 >= 3 else 0)
    if r5 == 0:
        a.label(f'L_odma{hq2}')
    a(f's_add_u32 s64, s{sOb}, {off}')
    a(f'buffer_load_dwordx4 v{vO+(r5==2)}, {s(SRD_WS,4)}, s64 offen sc1 lds')
    a(f's_add_u32 m0, m0, 1024')
a('s_setpc_b64 s[60:61]')


def retry_stubs():
    for f in range(20):
        hq2 = f // 5
        a.label(f'L_retry{f}')
        a(f's_sub_u32 s{sRet}, s{sRet}, 1')
        a(f's_cbranch_scc1 L_giveup{f}')
        a(f's_sleep {SLP_R}')
        a(f's_add_u32 m0, s{sImg}, {hq2*5120}')
        a(f's_call_b64 s[60:61], L_odma{hq2}')
        a(f's_waitcnt vmcnt({20-o_need(min(19, f+OD-1))})')
        for k in range(f, min(20, f + OD)):
            a(o_read(k))
        a('s_waitcnt lgkmcnt(0)')
        for x in o_check(f):
            a(x)
        a(f's_cbranch_vccnz L_retry{f}')
        a(f's_branch L_back{f}')
        a.label(f'L_giveup{f}')
        a(f's_mov_b32 s{sRet}, 0')
        a(f's_branch L_back{f}')


a.label('L_qc')
a('s_setprio 2')
ra = RA(2, 256)
vXb = ra.get(2); vWb = ra.get(2)
vXc = ra.get(2); vWc = ra.get(2)
biasC = ra.get(4); biasP = ra.get(4); mCur = ra.get(2); mLo = ra.get(1); vOm = ra.get(1); vOr2 = ra.get(1)
Ec = ra.get(4); Cone = ra.get(4)
vOL = ra.get(1); vOG = ra.get(1); vX7 = ra.get(2); vC2 = ra.get(2); vFc = ra.get(2)
accQ = [ra.get(6) for b in range(NB)]
accK = [ra.get(4) for b in range(NB)]
accV = [ra.get(4) for b in range(NB)]
accR = [ra.get(4) for b in range(NB)]
fX = [[ra.get(4) for b in range(NB)] for k in range(2)]
fW = [[ra.get(4) for t in range(4)] for k in range(2)]
Vp = fW[0][0]; VRp = fW[1][0]
tmp = fX[1][0]
m_, g_ = tmp, tmp + 1
a('s_sub_u32 s9, s3, 4')
a('s_mul_i32 s12, s9, 40')
a(f'v_and_b32 v{m_}, 15, v0')
a(f'v_lshrrev_b32 v{g_}, 4, v0')
a(f'v_lshrrev_b32 v{tmp+2}, 1, v{m_}')
a(f'v_xor_b32 v{tmp+2}, v{tmp+2}, v{g_}')
a(f'v_lshlrev_b32 v{tmp+2}, 4, v{tmp+2}')
a(f'v_lshl_add_u32 v{vXb}, v{m_}, 7, v{tmp+2}')
a(f'v_xor_b32 v{vXb+1}, 64, v{vXb}')
a(f'v_lshrrev_b32 v{tmp+2}, 5, v0')
a(f'v_bfe_u32 v{tmp+3}, v0, 2, 3')
a(f'v_lshl_add_u32 v{tmp+2}, v{tmp+2}, 4, v{tmp+3}')
a(f'v_mul_u32_u24 v{tmp+2}, 480, v{tmp+2}')
a(f's_add_u32 s13, s12, {ABYTES}')
a(f'v_add_u32 v{tmp+2}, s13, v{tmp+2}')
a(f'v_and_b32 v{tmp+3}, 3, v0')
a(f'v_lshl_add_u32 v{vWb}, v{tmp+3}, 3, v{tmp+2}')
a(f'v_cmp_eq_u32 vcc, 1, v{tmp+3}')
a(f'v_min_u32 v{tmp+3}, 2, v{tmp+3}')
a(f'v_mul_u32_u24 v{tmp+3}, 160, v{tmp+3}')
a(f'v_add3_u32 v{vWb+1}, v{tmp+2}, v{tmp+3}, 32')
for r_ in range(4):
    a(f'v_cndmask_b32_e64 v{Cone+r_}, 0, 1.0, vcc')
for r_ in range(accQ[0], accR[-1] + 4, 2):
    a(f'v_mov_b64 {v(r_,2)}, 0')
a(f'v_mov_b32 v{vC2}, {CNT}')
a(f'v_mov_b32 v{vC2+1}, 1')
a(f'ds_write_b128 v{vC2}, {v(accK[0],4)}')
a(f'ds_write_b32 v{vC2}, v{accK[0]} offset:16')
NEG = hx(f2u(-1e30))
a(f'v_lshlrev_b32 v{tmp+2}, 2, v{g_}')
a(f'v_sub_u32 v{tmp+2}, v{m_}, v{tmp+2}')
a(f'v_mov_b32 v{tmp+4}, {NEG}')
for r_ in range(4):
    a(f'v_subrev_u32 v{tmp+3}, {r_}, v{tmp+2}')
    a(f'v_cmp_gt_u32 vcc, 8, v{tmp+3}')
    a(f'v_add_u32 v{tmp+3}, {16-r_}, v{tmp+2}')
    a(f'v_cmp_gt_u32 s[64:65], 8, v{tmp+3}')
    a(f'v_cndmask_b32_e64 v{biasC+r_}, v{tmp+4}, 0, vcc')
    a(f'v_cndmask_b32_e64 v{biasP+r_}, v{tmp+4}, 0, s[64:65]')
a(f'v_mov_b32 v{tmp+4}, 0xffff')
a(f'v_mov_b32 v{tmp+5}, 0xffff0000')
for d in range(2):
    a(f'v_cmp_le_i32 vcc, {2*d}, v{tmp+2}')
    a(f'v_cmp_le_i32 s[64:65], {2*d+1}, v{tmp+2}')
    a(f'v_cndmask_b32 v{mCur+d}, 0, v{tmp+4}, vcc')
    a(f'v_cndmask_b32_e64 v{tmp+3}, 0, v{tmp+5}, s[64:65]')
    a(f'v_or_b32 v{mCur+d}, v{mCur+d}, v{tmp+3}')
a(f'v_cmp_gt_u32 vcc, 32, v0')
a(f'v_mul_u32_u24 v{tmp+2}, {OROW}, v{m_}')
a(f's_add_u32 s13, s12, {OST}')
a(f'v_cndmask_b32_e64 v{mLo}, 0, -1, vcc')
a(f'v_add_u32 v{tmp+2}, s13, v{tmp+2}')
a(f'v_lshl_add_u32 v{vOm}, v{g_}, 3, v{tmp+2}')
a(f'v_lshl_add_u32 v{vOr2}, v{g_}, 1, v{tmp+2}')
a(f'v_mov_b64 {v(Ec,2)}, 0')
a(f'v_mov_b64 {v(Ec+2,2)}, 0')
a('s_mov_b32 exec_lo, 0')
a('s_mov_b32 exec_hi, 0x01000001')
a(f'v_mov_b32 v{Ec+2}, 0x3f80')
a('s_mov_b32 exec_hi, 0x10000010')
a(f'v_mov_b32 v{Ec+2}, 0x3f800000')
a('s_mov_b64 exec, -1')
a(f'v_mov_b64 {v(vXc,2)}, {v(vXb,2)}')
a(f'v_mov_b64 {v(vWc,2)}, {v(vWb,2)}')
sOG = 40
OMASK = [44, 46, 48, 50]


def o_store_setup():
    t = tmp
    a(f's_mul_i32 s66, s7, {U}')
    a('s_cmp_eq_u32 s7, 0')
    a('s_cselect_b32 s68, 0, 7')
    a('s_add_u32 s66, s66, s68')
    a('s_sub_u32 s66, s66, s10')
    a('s_lshl_b32 s67, s9, 2')
    a('s_sub_u32 s66, s66, s67')
    a('s_add_u32 s68, s67, s10')
    a('s_lshl_b32 s69, s8, 5')
    a('s_add_u32 s69, s69, s4')
    a('s_mul_i32 s69, s69, 10240')
    a(f'v_mul_u32_u24 v{t}, 205, v0')
    a(f'v_lshrrev_b32 v{t}, 11, v{t}')
    a(f'v_lshlrev_b32 v{vOG}, 4, v0')
    a(f'v_mul_u32_u24 v{t+1}, {OBLK-160}, v{t}')
    a(f's_mul_i32 s67, s67, {OROW}')
    a(f's_add_u32 s67, s67, {OST}')
    a(f'v_add3_u32 v{vOL}, v{t+1}, v{vOG}, s67')
    a(f'v_lshl_add_u32 v{t+1}, v{t}, 4, 16')
    a(f'v_cmp_gt_u32 vcc, 60, v0')
    a(f'v_cndmask_b32 v{t+1}, -16, v{t+1}, vcc')
    for i in range(4):
        a(f's_add_u32 s72, s68, {i}')
        a(f's_and_b32 s73, s72, 15')
        a(f's_mul_i32 s73, s73, 20480')
        a(f's_lshr_b32 s72, s72, 4')
        a(f's_mul_i32 s72, s72, 160')
        a(f's_add_u32 s72, s72, s73')
        a(f's_add_u32 s{sOG+i}, s72, s69')
        a(f's_sub_u32 s72, s66, {i}')
        a(f'v_cmp_le_i32 s[{OMASK[i]}:{OMASK[i]+1}], s72, v{t+1}')
    a(f'v_mul_u32_u24 v{t+1}, {OROW-160}, v{t}')
    a(f'v_add3_u32 v{vX7}, v{t+1}, v{vOG}, s67')
    a(f'v_add_u32 v{t+2}, s68, v{t}')
    a(f'v_and_b32 v{t+3}, 15, v{t+2}')
    a(f'v_mul_u32_u24 v{t+3}, 20480, v{t+3}')
    a(f'v_lshrrev_b32 v{t+2}, 4, v{t+2}')
    a(f'v_sub_u32 v{t+2}, v{t+2}, v{t}')
    a(f'v_mul_i32_i24 v{t+2}, 160, v{t+2}')
    a(f'v_add3_u32 v{t+2}, v{t+2}, v{t+3}, v{vOG}')
    a(f'v_add_u32 v{t+2}, s69, v{t+2}')
    a(f'v_mov_b32 v{t+1}, {hx(OOB)}')
    a(f'v_cmp_le_i32 vcc, s66, v{t}')
    a(f'v_cndmask_b32 v{t+2}, v{t+1}, v{t+2}, vcc')
    a(f'v_cmp_gt_u32 vcc, 40, v0')
    a(f'v_cndmask_b32 v{vX7+1}, v{t+1}, v{t+2}, vcc')


o_store_setup()
a('s_mul_i32 s64, s5, 20')
a('s_add_u32 s64, s64, s6')
a('s_lshr_b32 s65, s64, 2')
a('s_lshl_b32 s65, s65, 7')
a('s_and_b32 s64, s64, 3')
a('s_lshl_b32 s64, s64, 2')
a('s_add_u32 s64, s64, s65')
a('s_lshl_b32 s65, s4, 13')
a('s_add_u32 s64, s64, s65')
a(f's_add_u32 s64, s64, {F_OFF+4096}')
a(f'v_lshl_add_u32 v{vFc}, v0, 14, s64')
a('s_cmp_eq_u32 s3, 7')
a('s_cselect_b32 s64, 4, 0')
a(f'v_mov_b32 v{tmp}, {hx(OOB)}')
a(f'v_cmp_gt_u32 vcc, s64, v0')
a(f'v_cndmask_b32 v{vFc}, v{tmp}, v{vFc}, vcc')
CS = 20 ** -0.5 * math.log2(math.e)
a(f's_mov_b32 s66, {hx(f2u(CS))}')
a(f's_mov_b32 s67, {hx(f2u(CS))}')


def q_reads(kk):
    W = []
    for t in range(4):
        for bs in range(2):
            ad, off = (vWc, kk * 15360 + t * 160 + bs * 3840) if t < 3 else (vWc + 1, kk * 15360 + bs * 3840)
            W.append(f'ds_read_b64_tr_b16 {v(fW[kk][t]+2*bs,2)}, v{ad} offset:{off}')
    X = [f'ds_read_b128 {v(fX[kk][b],4)}, v{vXc+kk} offset:{2048*b}' for b in range(NB)]
    if DBG & 8:
        return X[:1]
    return W + X


def q_mfmas(kk):
    L = []
    for b in range(NB):
        x = v(fX[kk][b], 4)
        for t, acc in ((0, accQ), (1, accK), (2, accV), (3, accR)):
            w = v(fW[kk][t], 4)
            d = v(acc[b], 4)
            L.append(f'{mf} {d}, {x}, {w}, {d}' if t == 2 else f'{mf} {d}, {w}, {x}, {d}')
    if DBG & 1:
        L = L[:1]
    return L


a('s_mov_b32 s14, 0')
a('s_mov_b32 s15, 10')
a('s_waitcnt lgkmcnt(0)')
nonce_load()
srd(SRD_WS, S_WS, WS_SIZE)
stamp(1)
a('s_barrier')
stamp(2)
for x in q_reads(0):
    a(x)
a('.p2align 3')
a.label('L_qc_loop')
a('s_waitcnt lgkmcnt(0)')
a('s_sub_u32 s15, s15, 1')
a(f's_add_u32 s14, s14, {SL}')
a(f's_cmp_eq_u32 s14, {3*SL}')
a('s_cselect_b32 s14, 0, s14')
a('s_cmp_eq_u32 s15, 0')
fill = q_reads(1) + [f'v_add_u32_e64 v{vXc}, s14, v{vXb}', f'v_add_u32_e64 v{vXc+1}, s14, v{vXb+1}',
                     f'v_add_u32_e64 v{vWc}, s14, v{vWb}', f'v_add_u32_e64 v{vWc+1}, s14, v{vWb+1}']
for x in interleave(q_mfmas(0), fill):
    a(x)
a('s_waitcnt lgkmcnt(0)')
a('s_cbranch_scc1 L_qc_last')
a('s_nop 0' if DBG & 16 else 's_barrier')
a('s_nop 0')
for x in interleave(q_mfmas(1), q_reads(0)):
    a(x)
a('s_branch L_qc_loop')
a.check_backedge('L_qc_loop')
a.label('L_qc_last')
stamp(3)
a('s_mov_b64 exec, 1')
a(f'ds_add_u32 v{vC2}, v{vC2+1} offset:4')
a('s_mov_b64 exec, -1')
my_nonce(64)
a(f'v_mov_b32 v{vFc+1}, s64')
FLAG = f'buffer_store_dword v{vFc+1}, v{vFc}, {s(SRD_WS,4)}, 0 offen sc0 sc1'
B = range(NB)
E = list(q_mfmas(1))
e = E.append
SC = fX[0]; SP = fX[1]
for b in B:
    q, k, r, vv = accQ[b], accK[b], accR[b], accV[b]
    e(f'{cvt} v{q+3}, v{q+2}, v{q+3}')
    e(f'{cvt} v{q+2}, v{q}, v{q+1}')
    e(f'{cvt} v{k}, v{k}, v{k+1}')
    e(f'{cvt} v{k+1}, v{k+2}, v{k+3}')
    e(f'{cvt} v{q+4}, v{r}, v{r+1}')
    e(f'{cvt} v{k+3}, v{r+2}, v{r+3}')
    e(f'v_permlane16_swap_b32 v{q+4}, v{k+3}')
    e(f'v_and_b32 v{k+2}, v{mLo}, v{k+3}')
    e(f'{cvt} v{Vp+2+2*b}, v{vv}, v{vv+1}')
    e(f'{cvt} v{Vp+3+2*b}, v{vv+2}, v{vv+3}')
    e(f'{mf} {v(SC[b],4)}, {v(k,4)}, {v(q+2,4)}, {v(biasC,4)}')
    if b:
        e(f'{mf} {v(vv,4)}, {v(accK[b-1],4)}, {v(q+2,4)}, {v(biasP,4)}')
    e(f'{mf} {v(r,4)}, {v(q+2,4)}, {v(Ec,4)}, {v(Cone,4)}')
    e(f'{cvt} v{VRp+2+2*b}, v{r}, v{r+1}')
    e(f'{cvt} v{VRp+3+2*b}, v{r+2}, v{r+3}')
    if b:
        for r_ in range(4):
            e(f'v_max_f32 v{SC[b]+r_}, v{SC[b]+r_}, v{vv+r_}')
    e(f'v_max3_f32 v{q}, v{SC[b]}, v{SC[b]+1}, v{SC[b]+2}')
    e(f'v_max_f32 v{q}, v{q}, v{SC[b]+3}')
M = [accQ[b] for b in B]
for grp in ([0, 1, 2, 3], [4, 5, 6]):
    A_, B_, C_ = M[grp[0]], M[grp[1]], M[grp[2]]
    e(f'v_permlane16_swap_b32 v{A_}, v{B_}')
    e(f'v_max_f32 v{A_}, v{A_}, v{B_}')
    if len(grp) == 4:
        D_ = M[grp[3]]
    else:
        D_ = C_ + 1
        e(f'v_mov_b32 v{D_}, v{C_}')
    e(f'v_permlane16_swap_b32 v{C_}, v{D_}')
    e(f'v_max_f32 v{C_}, v{C_}, v{D_}')
    e(f'v_permlane32_swap_b32 v{A_}, v{C_}')
    e(f'v_max_f32 v{A_}, v{A_}, v{C_}')
    e(f'v_mul_f32 v{C_}, {hx(f2u(-CS))}, v{A_}')
    e(f'v_mul_f32 v{A_}, {hx(f2u(-CS))}, v{A_}')
    e(f'v_permlane32_swap_b32 v{A_}, v{C_}')
    e(f'v_mov_b32 v{B_}, v{A_}')
    e(f'v_permlane16_swap_b32 v{A_}, v{B_}')
    if len(grp) == 4:
        e(f'v_mov_b32 v{D_}, v{C_}')
        e(f'v_permlane16_swap_b32 v{C_}, v{D_}')
E2 = len(E)
for b in B:
    q, k, r, vv = accQ[b], accK[b], accR[b], accV[b]
    c_, p_ = SC[b], SP[b]
    if PK:
        for r_ in (0, 2):
            e(f'v_pk_fma_f32 {v(c_+r_,2)}, {v(c_+r_,2)}, s[66:67], {v(q,2)} op_sel_hi:[1,1,0]')
    else:
        for r_ in range(4):
            e(f'v_fma_f32 v{c_+r_}, v{c_+r_}, s66, v{q}')
    for r_ in range(4):
        e(f'v_exp_f32 v{c_+r_}, v{c_+r_}')
    e(f'{cvt} v{c_}, v{c_}, v{c_+1}')
    e(f'{cvt} v{c_+1}, v{c_+2}, v{c_+3}')
    e(f'v_and_b32 v{p_+2}, v{mCur}, v{c_}')
    e(f'v_and_b32 v{p_+3}, v{mCur+1}, v{c_+1}')
    e(f'v_xor_b32 v{p_}, v{p_+2}, v{c_}')
    e(f'v_xor_b32 v{p_+1}, v{p_+3}, v{c_+1}')
    e(f'{mf} {v(r,4)}, {v(VRp+2*b,4)}, {v(p_,4)}, 0')
    e(f'{mf} {v(vv,4)}, {v(Vp+2*b,4)}, {v(p_,4)}, 0')
    e(f'v_rcp_f32 v{r+1}, v{r+1}')
    if PK:
        for x in (vv, vv + 2):
            e(f'v_pk_mul_f32 {v(x,2)}, {v(x,2)}, {v(r,2)} op_sel:[0,1] op_sel_hi:[1,1]')
    else:
        for x in range(vv, vv + 4):
            e(f'v_mul_f32 v{x}, v{x}, v{r+1}')
    e(f'v_mul_f32 v{r+2}, v{r}, v{r+1}')
    e(f'{cvt} v{vv}, v{vv}, v{vv+1}')
    e(f'{cvt} v{vv+1}, v{vv+2}, v{vv+3}')
    e(f'{cvt} v{r+2}, v{r+2}, v{r+2}')
    e(f'ds_write_b64 v{vOm}, {v(vv,2)} offset:{OBLK*b}')
    e(f'ds_write_b16 v{vOr2}, v{r+2} offset:{OBLK*b+32}')
E, est = schedule(E, by_order_from=E2)
print('epilogue instrs', len(E), 'est cycles', est)
if PFP == 2 and FPOS >= 0:
    E.insert(len(E) - FPOS, FLAG)
for x in E:
    a(x)
stamp(4)
a('s_mov_b64 exec, 1')
a(f'ds_add_u32 v{vC2}, v{vC2+1} offset:12')
a('s_mov_b64 exec, -1')
a.label('L_spin_o')
a(f'ds_read_b32 v{tmp}, v{vC2} offset:12')
a('s_waitcnt lgkmcnt(0)')
a(f'v_readfirstlane_b32 s64, v{tmp}')
a('s_cmp_ge_u32 s64, 5')
a('s_cbranch_scc0 L_spin_o')
stamp(5)
vOD = fX[0][0]
for i in range(4):
    a(f'ds_read_b128 {v(vOD+4*i,4)}, v{vOL} offset:{OBLK+OROW*i}')
a(f'ds_read_b128 {v(vOD+16,4)}, v{vX7}')
for i in range(4):
    a(f's_mov_b64 exec, s[{OMASK[i]}:{OMASK[i]+1}]')
    a(f's_waitcnt lgkmcnt({4-i})')
    a(f'buffer_store_dwordx4 {v(vOD+4*i,4)}, v{vOG}, {s(SRD_WS,4)}, s{sOG+i} offen offset:160 sc1')
a('s_mov_b64 exec, -1')
a('s_waitcnt lgkmcnt(0)')
a(f'buffer_store_dwordx4 {v(vOD+16,4)}, v{vX7+1}, {s(SRD_WS,4)}, 0 offen sc1')
if PFP == 2 and FPOS < 0:
    a(FLAG)
stamp(6)
a('s_barrier')
endpgm()

a.label('L_dftx')
a('s_sub_u32 s7, s6, 20')
a('s_mov_b32 s8, 2')
a('s_sub_u32 s6, s2, 160')
a('s_branch L_dft2')
a.label('L_dft')
a('s_lshr_b32 s7, s6, 1')
a('s_and_b32 s8, s6, 1')
a('s_mov_b32 s6, s2')
a.label('L_dft2')
a('s_lshl_b32 s9, s5, 2')
a('s_add_u32 s7, s7, s9')
dX = 2; dWr = 3
dD = 96
a(f'v_lshrrev_b32 v8, 3, v0')
a(f'v_mul_u32_u24 v9, 81920, v8')
a(f'v_and_b32 v10, 7, v0')
a(f'v_lshl_add_u32 v{dX}, v10, 4, v9')
a('s_lshr_b32 s14, s3, 2')
a('s_xor_b32 s14, s14, s8')
a('s_and_b32 s14, s14, 1')
a('s_lshl_b32 s10, s7, 1')
a('s_add_u32 s9, s14, s10')
a('s_lshl_b32 s9, s9, 1')
a('s_add_u32 s62, s9, s4')
a('s_and_b32 s63, s3, 3')
a('s_lshl_b32 s10, s63, 9')
a('s_add_u32 s9, s62, s10')
a('s_mul_i32 s9, s9, 1280')
a('s_lshl_b32 s15, s14, 2')
a('s_add_u32 s15, s15, s63')
a('s_mul_i32 s15, s15, 5120')
a('v_lshlrev_b32 v13, 4, v0')
a('s_mov_b32 m0, s15')
a('s_waitcnt lgkmcnt(0)')
stamp(1)
srd(SRD_X, S_X, 2621440)
srd(SRD_G, S_GW, 1280)
a(f'buffer_load_dwordx4 v13, {s(SRD_G,4)}, 0 offen lds')
a(f'buffer_load_dwordx4 v13, {s(SRD_G,4)}, 0 offen offset:1024 lds')
for l in range(5):
    a(f'buffer_load_dwordx4 {v(dD+8*l,4)}, v{dX}, {s(SRD_X,4)}, s9 offen offset:{128*l}')
    a(f'buffer_load_dwordx4 {v(dD+8*l+4,4)}, v{dX}, {s(SRD_X,4)}, s9 offen offset:{128*l+640}')
if PFE:
    srd(SRD_B, S_WO, 819200)
    a('s_and_b32 s9, s6, 0xf8')
    a('s_add_u32 s9, s9, s3')
    a('s_and_b32 s10, s2, 7')
    a('s_mul_i32 s10, s10, 12')
    a('s_add_u32 s9, s9, s10')
    a('s_cmp_ge_u32 s9, 96')
    a('s_cselect_b32 s10, 96, 0')
    a('s_sub_u32 s9, s9, s10')
    a('s_lshl_b32 s9, s9, 13')
    a('v_lshlrev_b32 v12, 7, v0')
    a(f'buffer_load_dword v1, v12, {s(SRD_B,4)}, s9 offen')
nonce_load()
srd(SRD_WS, S_WS, WS_SIZE)
a(f'v_lshrrev_b32 v11, 4, v0')
a(f'v_xor_b32 v11, v11, v10')
a('s_and_b32 s9, s3, 1')
a('s_lshl_b32 s9, s9, 2')
a('v_xor_b32 v11, s9, v11')
a(f'v_lshlrev_b32 v12, 7, v8')
a(f'v_lshl_add_u32 v12, v11, 4, v12')
a(f'v_add_u32 v{dWr}, s15, v12')
a('s_lshl_b32 s11, s8, 31')
a('s_or_b32 s11, s11, 0x3f803f80')
a('s_mov_b32 s12, 0x05040100')
a('s_mov_b32 s13, 0x07060302')
a('v_mov_b64 v[28:29], -1')
a(f'v_mov_b32 v16, {CNT}')
a('v_mov_b32 v18, 0')
a('v_mov_b32 v19, 4')
a('v_mov_b32 v20, 0')
a('ds_write_b96 v16, v[18:20]')
a('ds_write_b32 v16, v18 offset:16')
a('s_cmp_lt_u32 s3, 4')
a('s_cbranch_scc1 L_fold')
rd = RA(24, 96)
vF = rd.get(4); vZ = rd.get(2); t0 = rd.get(6)
cC = rd.get(8); cP = rd.get(8); cN = rd.get(8)
gc = rd.get(8); gs = rd.get(8); gS = rd.get(2)
hc, hs = 160, 168
pB = [rd.get(8), rd.get(8)]
acc = [[176, 192], [208, 224]]
gu = 240
a(f'v_and_b32 v{t0}, 31, v0')
a(f'v_lshrrev_b32 v{t0+1}, 5, v0')
a(f'v_cvt_f32_u32 v{t0+2}, v{t0}')
a(f'v_cvt_f32_u32 v{t0+4}, v{t0+1}')
a(f'v_mul_f32 v{t0+3}, v{t0+4}, v{t0+2}')
a(f'v_mul_f32 v{t0+3}, {hx(f2u(0.125))}, v{t0+3}')
for i in range(8):
    for e in range(2):
        r_ = 2 * i + e
        kap = 8 * (r_ >> 2) + (r_ & 3)
        a(f'v_fmamk_f32 v{gu+e}, v{t0+2}, {hx(f2u(kap/32.0))}, v{t0+3}')
    for e in range(2):
        a(f'v_cos_f32 v{gu+2+e}, v{gu+e}')
        a(f'v_sin_f32 v{gu+4+e}, v{gu+e}')
    a(f'{cvt} v{cC+i}, v{gu+2}, v{gu+3}')
    a(f'{cvt} v{cN+i}, v{gu+4}, v{gu+5}')
    a(f'v_xor_b32 v{cP+i}, 0x80008000, v{cN+i}')
a('s_cmp_eq_u32 s8, 2')
a('s_cselect_b32 s22, s63, s8')
a('s_cselect_b32 s23, 4, s63')
a('s_cselect_b32 s24, s63, 0')
a('s_mul_i32 s24, s24, 40960')
a('s_lshl_b32 s25, s23, 6')
a('s_add_u32 s25, s25, s22')
a(f'v_lshl_add_u32 v{gu}, v{t0}, 1, s25')
a(f'v_cmp_eq_u32 vcc, 0, v{gu}')
a(f'v_cvt_f32_u32 v{gu}, v{gu}')
a(f'v_mul_f32 v{gu}, {hx(f2u(1/640.0))}, v{gu}')
a(f'v_mul_f32 v{gS+1}, {hx(f2u(16.0))}, v{gu}')
a(f'v_mul_f32 v{gs}, v{t0+4}, v{gu}')
a(f'v_mul_f32 v{gs}, {hx(f2u(8.0))}, v{gs}')
a(f'v_cos_f32 v{gS}, v{gS+1}')
for jj in range(1, 8):
    a(f'v_fmamk_f32 v{gs+jj}, v{gu}, {hx(f2u(float(jj)))}, v{gs}')
for jj in range(8):
    a(f'v_sub_f32 v{hs+jj}, v{gs+jj}, v{gS+1}')
a(f'v_add_f32 v{gS}, v{gS}, v{gS}')
for c_, s_ in ((gc, gs), (hc, hs)):
    for jj in range(8):
        a(f'v_cos_f32 v{c_+jj}, v{s_+jj}')
    for jj in range(8):
        a(f'v_sin_f32_e64 v{s_+jj}, -v{s_+jj}')
    for jj in range(8):
        a(f'v_cndmask_b32_e64 v{s_+jj}, v{s_+jj}, {"1.0" if jj % 2 == 0 else "-1.0"}, vcc')
for jj in range(4):
    a(f'{cvt} v{pB[0]+jj}, v{gc+2*jj}, v{gc+2*jj+1}')
    a(f'{cvt} v{pB[0]+4+jj}, v{gs+2*jj}, v{gs+2*jj+1}')
for r_ in range(176, 240, 2):
    a(f'v_mov_b64 {v(r_,2)}, 0')
a(f'v_lshrrev_b32 v{t0+2}, 3, v{t0}')
a(f'v_mul_u32_u24 v{t0+2}, 5120, v{t0+2}')
a(f'v_lshl_add_u32 v{t0+2}, v10, 7, v{t0+2}')
a(f'v_bfe_u32 v{t0+3}, v0, 1, 3')
a(f'v_xor_b32 v{t0+3}, v{t0+3}, v{t0+1}')
a(f'v_lshl_add_u32 v{t0+2}, v{t0+3}, 4, v{t0+2}')
for q in range(4):
    a(f'v_xor_b32 v{vF+q}, {32*q}, v{t0+2}')
    a(f'v_add_u32 v{vF+q}, s24, v{vF+q}')
a(f'v_mul_u32_u24 v{t0+3}, {4*98304}, v{t0+1}')
a(f'v_lshl_add_u32 v{vZ}, v{t0}, 2, v{t0+3}')
a(f'v_add_u32 v{t0+3}, 640, v{t0+3}')
a(f'v_mov_b32 v{t0+4}, {hx(OOB)}')
a(f'v_cndmask_b32 v{vZ+1}, v{t0+4}, v{t0+3}, vcc')
a(f'v_cndmask_b32_e64 v{t0+5}, -1, 0, vcc')
a.label('L_fold')
stamp(2)
gw = 136
a(f'v_mov_b32 v14, {hx(OOB)}')
a('s_cmp_lg_u32 s14, s8')
a('s_cbranch_scc1 L_fold_go')
a(f'v_lshl_add_u32 v14, v10, 4, s15')
a(f's_waitcnt vmcnt({10+PFE})')
for i in range(10):
    a(f'ds_read_b128 {v(gw+4*i,4)}, v14 offset:{128*i}')
ga = 16
for q in range(4):
    a(f'v_mov_b32 v{ga+q}, 0')
a('s_and_b32 s64, s62, 31')
a('s_lshl_b32 s64, s64, 8')
a('s_lshr_b32 s65, s62, 5')
a('s_lshl_b32 s65, s65, 2')
a('s_add_u32 s64, s64, s65')
a('s_lshl_b32 s65, s63, 6')
a('s_add_u32 s64, s64, s65')
a(f's_add_u32 s64, s64, {G_OFF}')
a('v_lshl_add_u32 v14, v8, 3, s64')
a(f'v_mov_b32 v15, {hx(OOB)}')
a('v_cmp_eq_u32 vcc, 0, v10')
a('v_cndmask_b32 v14, v15, v14, vcc')
a('s_waitcnt lgkmcnt(0)')
a.label('L_fold_go')
t = 248
a(f'v_mov_b32 v15, s11')
for l in range(5):
    a(f's_waitcnt vmcnt({8-2*l+PFE})')
    lo, hi = dD + 8 * l, dD + 8 * l + 4
    o_ = 4 if l % 2 == 0 else 20
    for q in range(4):
        a(f'v_perm_b32 v{t+2*q}, v{hi+q}, v{lo+q}, s12')
        a(f'v_perm_b32 v{t+2*q+1}, v{hi+q}, v{lo+q}, s13')
    for q in range(8):
        a(f'v_dot2_f32_bf16 v{t+q}, v{t+q}, v15, 0')
    for q in range(4):
        a(f'{cvt} v{o_+q}, v{t+2*q}, v{t+2*q+1}')
    a(f'ds_write_b128 v{dWr}, {v(o_,4)} offset:{l*1024}')
a('s_cmp_lg_u32 s8, 2')
a('s_cbranch_scc1 L_fold_done')
a('s_mov_b32 s8, 3')
a('s_mov_b32 s11, 0xbf803f80')
a(f'v_add_u32 v{dWr}, 40960, v{dWr}')
a('s_branch L_fold_go')
a.label('L_fold_done')
a('s_waitcnt lgkmcnt(0)')
stamp(3)
a('s_barrier')
a('s_cmp_lg_u32 s14, s8')
a('s_cbranch_scc1 L_nogate')
for l in range(5):
    for h in range(2):
        for q in range(4):
            a(f'v_dot2c_f32_bf16 v{ga+q}, v{dD+8*l+4*h+q}, v{gw+4*(l+5*h)+q}')
a(f'v_add_f32 v{ga}, v{ga}, v{ga+1}')
a(f'v_add_f32 v{ga+2}, v{ga+2}, v{ga+3}')
a(f'v_add_f32 v{ga}, v{ga}, v{ga+2}')
a(f'v_add_f32_dpp v{ga}, v{ga}, v{ga} quad_perm:[1,0,3,2] row_mask:0xf bank_mask:0xf')
a(f'v_add_f32_dpp v{ga}, v{ga}, v{ga} quad_perm:[2,3,0,1] row_mask:0xf bank_mask:0xf')
a(f'v_add_f32_dpp v{ga}, v{ga}, v{ga} row_half_mirror row_mask:0xf bank_mask:0xf')
a(f'v_mul_f32 v{ga}, {hx(f2u(-math.log2(math.e)))}, v{ga}')
a(f'v_exp_f32 v{ga}, v{ga}')
a(f'v_add_f32 v{ga}, 1.0, v{ga}')
a(f'v_rcp_f32 v9, v{ga}')
a(f'buffer_store_dword v9, v14, {s(SRD_WS,4)}, 0 offen sc1')
a.label('L_nogate')
a('s_cmp_ge_u32 s3, 4')
a('s_cbranch_scc1 L_dc')
if PFW:
    srd(SRD_X, S_WO, 819200)
    a('s_lshr_b32 s60, s6, 3')
    a('s_lshl_b32 s60, s60, 2')
    a('s_add_u32 s60, s60, s3')
    a('s_and_b32 s61, s2, 7')
    a('s_mul_i32 s61, s61, 6')
    a('s_add_u32 s60, s60, s61')
    a('s_cmp_ge_u32 s60, 48')
    a('s_cselect_b32 s61, 48, 0')
    a('s_sub_u32 s60, s60, s61')
    a('s_lshl_b32 s60, s60, 14')
    a('v_lshlrev_b32 v12, 7, v0')
    a(f'buffer_load_dword v180, v12, {s(SRD_X,4)}, s60 offen')
    a('s_add_u32 s60, s60, 8192')
    a(f'buffer_load_dword v181, v12, {s(SRD_X,4)}, s60 offen')
srd(SRD_B, S_WS, 2621440)
a('s_lshl_b32 s60, s6, 2')
a('s_add_u32 s60, s60, s3')
a('s_mul_i32 s60, s60, 7168')
a('v_mov_b64 v[4:5], -1')
a('v_mov_b64 v[6:7], -1')
for i in range(7):
    if i == 4:
        a('s_add_u32 s60, s60, 4096')
    a(f'buffer_store_dwordx4 v[4:7], v13, {s(SRD_B,4)}, s60 offen offset:{(i&3)*1024} sc1')
for pc in range(5):
    a(f's_call_b64 s[60:61], L_p2setup{pc}')
a('s_lshr_b32 s64, s6, 2')
a('s_lshl_b32 s64, s64, 7')
a('s_and_b32 s65, s6, 3')
a('s_lshl_b32 s65, s65, 2')
a('s_add_u32 s64, s64, s65')
a(f's_add_u32 s64, s64, {F_OFF}')
a(f'v_lshl_add_u32 v{kt}, v0, 13, s64')
a(f'v_mov_b32 v{kt+1}, s{S_N}')
a(f'v_mov_b32 v{kt+2}, s{S_N+1}')
a(f'v_and_b32 v{kt+3}, 1, v0')
a(f'v_cmp_eq_u32 vcc, 1, v{kt+3}')
a(f'v_cndmask_b32 v{kt+1}, v{kt+1}, v{kt+2}, vcc')
a(f'v_add_u32 v{kt+1}, 1, v{kt+1}')
my_nonce(sNon)
a('s_waitcnt vmcnt(0)')
stamp(3)
a('s_barrier')
stamp(4)
a('s_cmp_lg_u32 s3, 3')
a('s_cbranch_scc1 L_tail2')
a('s_mov_b64 exec, 0xff')
a(f'buffer_store_dword v{kt+1}, v{kt}, {s(SRD_WS,4)}, 0 offen sc0 sc1')
a('s_mov_b64 exec, -1')
a.label('L_tail2')
wo_chunk(0)
wo_chunk(1)
a('s_branch L_post9')

a.label('L_dc')
a('s_setprio 2')
a('s_cmp_ge_u32 s22, 2')
a('s_cbranch_scc1 L_dc_end')
a('s_lshl_b32 s62, s7, 2')
a('s_add_u32 s62, s62, s4')
a('s_lshl_b32 s62, s62, 1')
a('s_add_u32 s62, s62, s22')
a('s_mul_i32 s62, s62, 768')
a('s_lshl_b32 s61, s23, 7')
a('s_add_u32 s62, s62, s61')
aF = [[96 + 8 * q + 4 * w for w in range(2)] for q in range(4)]


def a_reads(q, wrap):
    return [f'ds_read_b128 {v(aF[q][w],4)}, v{vF+q} offset:{w*20480+(1024 if wrap else 0)}' for w in range(2)]


for q in range(2):
    for x in a_reads(q, False):
        a(x)
for r_ in range(16):
    a(f's_add_u32 s{64+r_}, s62, {Z_OFF + (8*(r_>>2)+(r_&3))*98304}')
a('s_mov_b32 s61, 5')
stamp(4)
a('.p2align 3')
a.label('L_dloop')
for q in range(4):
    cur, nxt = pB[q & 1], pB[(q + 1) & 1]
    for x in a_reads((q + 2) & 3, q >= 2):
        a(x)
    a('s_waitcnt lgkmcnt(4)')
    if q == 0:
        a('s_sub_u32 s61, s61, 1')
    elif q == 1:
        a('s_cmp_lg_u32 s61, 0')
    else:
        a('s_nop 0')
    for g4 in range(4):
        w, tb = g4 >> 1, g4 & 1
        d = v(acc[w][tb], 16)
        a(f'{M32} {d}, {v(aF[q][w],4)}, {v(cur+4*tb,4)}, {d}')
        jj = 2 * g4
        (c0, s0), (c1, s1) = ((gc, gs), (hc, hs)) if q % 2 == 0 else ((hc, hs), (gc, gs))
        for x0, x1 in ((c0, c1), (s0, s1)):
            for e_ in range(2):
                a(f'v_fma_f32 v{x1+jj+e_}, v{gS}, v{x0+jj+e_}, -v{x1+jj+e_}')
        a(f'{cvt} v{nxt+g4}, v{c1+jj}, v{c1+jj+1}')
        a(f'{cvt} v{nxt+4+g4}, v{s1+jj}, v{s1+jj+1}')
for q in range(4):
    a(f'v_add_u32 v{vF+q}, 1024, v{vF+q}')
a('s_cbranch_scc1 L_dloop')
a.check_backedge('L_dloop')
stamp(6)
pk = [[128, 136], [144, 152]]
for w in range(2):
    for tb in range(2):
        for i in range(8):
            a(f'{cvt} v{pk[w][tb]+i}, v{acc[w][tb]+2*i}, v{acc[w][tb]+2*i+1}')


def z_out(Zr, Zi, w, va):
    L = []
    for r_ in range(16):
        L.append(f'{cvt} v{Zr+r_}, v{Zr+r_}, v{Zi+r_}')
        L.append(f'buffer_store_dword v{Zr+r_}, v{va}, {s(SRD_WS,4)}, s{64+r_} offen offset:{w*3072} sc1')
    return L


a('s_cmp_lg_u32 s25, 0')
a('s_cbranch_scc1 L_dc_nospec')
T = []
for w in range(2):
    Zr, Zi = acc[w]
    pb = pk[w][1]
    T += [f'{M32} {v(Zr,16)}, {v(cC,4)}, {v(pb,4)}, 0', f'{M32} {v(Zi,16)}, {v(cP,4)}, {v(pb,4)}, 0',
          f'{M32} {v(Zr,16)}, {v(cC+4,4)}, {v(pb+4,4)}, {v(Zr,16)}', f'{M32} {v(Zi,16)}, {v(cP+4,4)}, {v(pb+4,4)}, {v(Zi,16)}']
    T += [f'v_and_b32 v{pb+i}, v{t0+5}, v{pb+i}' for i in range(8)]
    T += z_out(Zr, Zi, w, vZ + 1)
for x in schedule(T)[0]:
    a(x)
a('s_nop 1')
a.label('L_dc_nospec')
a('s_nop 1')
T = []
for w in range(2):
    Zr, Zi = acc[w]
    pa, pb = pk[w]
    T += [
        f'{M32} {v(Zr,16)}, {v(cC,4)}, {v(pa,4)}, 0',
        f'{M32} {v(Zi,16)}, {v(cP,4)}, {v(pa,4)}, 0',
        f'{M32} {v(Zr,16)}, {v(cC+4,4)}, {v(pa+4,4)}, {v(Zr,16)}',
        f'{M32} {v(Zi,16)}, {v(cP+4,4)}, {v(pa+4,4)}, {v(Zi,16)}',
        f'{M32} {v(Zr,16)}, {v(cN,4)}, {v(pb,4)}, {v(Zr,16)}',
        f'{M32} {v(Zi,16)}, {v(cC,4)}, {v(pb,4)}, {v(Zi,16)}',
        f'{M32} {v(Zr,16)}, {v(cN+4,4)}, {v(pb+4,4)}, {v(Zr,16)}',
        f'{M32} {v(Zi,16)}, {v(cC+4,4)}, {v(pb+4,4)}, {v(Zi,16)}',
    ]
M0_, M1_ = T[:8], T[8:]
for x in M0_ + M1_[:3] + interleave(M1_[3:], z_out(acc[0][0], acc[0][1], 0, vZ), per=6) + z_out(acc[1][0], acc[1][1], 1, vZ):
    a(x)
stamp(9)
a.label('L_dc_end')
a('s_waitcnt vmcnt(0) lgkmcnt(0)')
a('s_barrier')
endpgm()

retry_stubs()
a.label('L_exit')
a.label('L_codeend')
a('s_endpgm')
if PROF:
    a.label('L_prof_end')
    a('s_waitcnt vmcnt(0)')
    a('s_memtime s[76:77]')
    a('s_memrealtime s[78:79]')
    a('s_waitcnt lgkmcnt(0)')
    a(f's_mov_b32 s72, s{S_WS}')
    a(f's_mov_b32 s73, s{S_WS+1}')
    a('s_mov_b32 s74, 0x1000000')
    a('s_mov_b32 s75, 0x20000')
    a('v_mov_b32 v2, s100')
    for i in range(1, NST):
        a(f's_sub_u32 s71, s{80+2*i}, s80')
        a(f's_cmp_eq_u32 s{80+2*i}, 0')
        a(f's_cselect_b32 s71, 0, s71')
        a(f'v_mov_b32 v{2+i}, s71')
    a('s_sub_u32 s76, s76, s80')
    a('v_mov_b32 v12, s76')
    a('v_mov_b32 v13, s78')
    a('s_lshl_b32 s71, s2, 3')
    a('s_add_u32 s71, s71, s3')
    a('s_lshl_b32 s71, s71, 6')
    a(f's_add_u32 s71, s71, {PROF_OFF}')
    a('v_mov_b32 v1, s71')
    a('buffer_store_dwordx4 v[2:5], v1, s[72:75], 0 offen')
    a('buffer_store_dwordx4 v[6:9], v1, s[72:75], 0 offen offset:16')
    a('buffer_store_dwordx4 v[10:13], v1, s[72:75], 0 offen offset:32')
    a('s_endpgm')

hdr = open('cdna_kernels/' + NAME + '.s.ref').read().split('; Override launch')[0]
out = hdr
out += f'; @launch grid=(256,1,1) block=(512,1,1) lds=163840\n'
out += '.amdgcn_target "amdgcn-amd-amdhsa--gfx950"\n.text\n'
if AL8:
    print('align8', a.align8())
out += a.text()
out += f'''.section .rodata,"a"
.p2align 6
.amdhsa_kernel {KN}
  .amdhsa_next_free_vgpr 256
  .amdhsa_next_free_sgpr 102
  .amdhsa_accum_offset 256
  .amdhsa_group_segment_fixed_size 0
  .amdhsa_kernarg_size 96
  .amdhsa_user_sgpr_count 2
  .amdhsa_user_sgpr_kernarg_segment_ptr 1
  .amdhsa_system_sgpr_workgroup_id_x 1
.end_amdhsa_kernel
'''
open(sys.argv[1], 'w').write(out)
print('wrote', sys.argv[1], 'lines', out.count('\n'), 'nops', a.nnop, 'qc vgpr', ra.hi, 'p2 vgpr', rk.hi)
```

```python
import sys, struct, math
from asmlib import *

NAME = 'gated_mix__spectral_fnet__sliding_local_dilated__prompt'
PROF = 0
PFW = 1
SLP_D = 3
SLP_Q = 2
DBG = 0
PK = 1
PFP = 2
FPOS = 100
PFE = 0
CHK1 = 1
AL8 = 1
PFC = 1
SPLIT = 1
NUP = 13
SLP_R = 4
for arg in sys.argv[2:]:
    k_, v_ = arg.split('=')
    globals()[k_] = int(v_)
NB = 7
U = 16 * NB - 7
JMAX = 1024 - 16 * NB
ABYTES = 16 * NB * 128
SL = ABYTES + 64 * 480
O_OFF = 0
Z_OFF = 2621440
G_OFF = Z_OFF + 3145728
F_OFF = G_OFF + 8192
N_OFF = F_OFF + 65536
WS_SIZE = N_OFF + 128
OOB = 0x80000000
WCH = [45056, 65536, 90112, 0, 20480]
ZIMG = 135168
OST = 110592
OROW, OBLK = 176, 2976
OIMG = [135168, 110592, 45056, 65536]
CNT = 163008
SPIN = 400000


def f2u(x):
    return struct.unpack('<I', struct.pack('<f', x))[0]


def hx(x):
    return hex(x & 0xffffffff)


def swap23(k):
    return (k & ~12) | ((k & 4) << 1) | ((k & 8) >> 1)


a = Asm()
S_X, S_WDR, S_WDI, S_WQKV, S_WO = 16, 22, 24, 28, 30
S_GW, S_OUT, S_DBG, S_WS = 32, 34, 36, 38
SRD_X, SRD_B, SRD_C, SRD_WS, SRD_G = 40, 44, 48, 52, 56
S_N = 18
cvt = 'v_cvt_pk_bf16_f32'
mf = 'v_mfma_f32_16x16x32_bf16'
M32 = 'v_mfma_f32_32x32x16_bf16'
KN = NAME + '_kernel'


def srd(d, ptr, size):
    a(f's_mov_b64 s[{d}:{d+1}], s[{ptr}:{ptr+1}]')
    a(f's_mov_b32 s{d+2}, {hx(size)}')
    a(f's_mov_b32 s{d+3}, 0x20000')


PROF_OFF = 0x800000
NST = 10


def stamp(i, mode=None):
    if PROF and ((mode is None and (PROF < 3 or i == 0)) or mode == PROF):
        a(f's_memtime s[{80+2*i}:{81+2*i}]')


def stamps(i, mode):
    return [f's_memtime s[{80+2*i}:{81+2*i}]'] if PROF == mode else []


def endpgm():
    a('s_branch L_prof_end' if PROF else 's_endpgm')


def nonce_load():
    a(f's_add_u32 s20, s{S_WS}, {N_OFF}')
    a(f's_addc_u32 s21, s{S_WS+1}, 0')
    a(f's_load_dwordx2 s[{S_N}:{S_N+1}], s[20:21], 0')


def my_nonce(d):
    a('s_bitcmp0_b32 s2, 0')
    a(f's_cselect_b32 s{d}, s{S_N}, s{S_N+1}')
    a(f's_add_u32 s{d}, s{d}, 1')


a(f'.globl {KN}')
a('.p2align 8')
a(f'.type {KN},@function')
a.label(KN)
if PROF:
    a('s_memrealtime s[100:101]')
    stamp(0)
a('s_load_dwordx16 s[16:31], s[0:1], 0')
a('s_load_dwordx8 s[32:39], s[0:1], 64')
if PFC:
    a('s_getpc_b64 s[4:5]')
    a.label('L_pc')
    a('s_bfe_u32 s6, s2, 0x20003')
    a('s_lshl_b32 s6, s6, 7')
    a('v_lshl_add_u32 v2, v0, 9, s6')
    a('v_cmp_gt_u32 vcc, L_codeend-L_pc-4, v2')
    a('s_and_saveexec_b64 s[6:7], vcc')
    a('s_cbranch_execz L_nopfc')
    a('global_load_dword v255, v2, s[4:5]')
    a.label('L_nopfc')
    a('s_mov_b64 exec, s[6:7]')
a('v_lshrrev_b32 v1, 6, v0')
a('v_and_b32 v0, 63, v0')
a('v_readfirstlane_b32 s3, v1')
if PROF:
    for i in range(1, NST):
        a(f's_mov_b32 s{80+2*i}, 0')
a('s_cmp_ge_u32 s2, 256')
a('s_cbranch_scc1 L_exit')
a('s_and_b32 s4, s2, 1')
a('s_bfe_u32 s5, s2, 0x20001')
a('s_lshr_b32 s6, s2, 3')
a('s_cmp_lt_u32 s6, 8')
a('s_cbranch_scc1 L_dft')
a('s_sub_u32 s6, s6, 8')
a('s_cmp_ge_u32 s6, 20')
a('s_cbranch_scc1 L_dftx')
a('s_lshr_b32 s12, s6, 2')
a('s_and_b32 s7, s5, 1')
a('s_mul_i32 s7, s7, 5')
a('s_add_u32 s7, s7, s12')
a('s_and_b32 s9, s6, 3')
a('s_and_b32 s8, s2, 4')
a('s_add_u32 s8, s8, s9')
a(f's_mul_i32 s10, s7, {U}')
a(f's_min_u32 s10, s10, {JMAX}')
a('s_cmp_ge_u32 s3, 4')
a('s_cbranch_scc1 L_qc')

rk = RA(2, 256)
vO = rk.get(2); vOr = rk.get(2); vGt = rk.get(2); vZa = rk.get(5); vGa = rk.get(1); vOut = rk.get(2); vWa = rk.get(2); kt = rk.get(8)
accD = [rk.get(4) for t in range(5)]
accO = [rk.get(4) for t in range(5)]
NO = 6
oF = [rk.get(4) for i in range(NO)]
NR = 8
bF = [[rk.get(4) for t in range(5)] for k in range(NR)]
vCn = rk.get(2)
WsF = accO[0]
vT = kt
vPd = oF[0]; vW = oF[2]; vZp = vW + 5; vPa = vW + 6; vFl = vW + 7; vPq = vW + 8
vA = bF[7][0]; vB = vA + 4
sOb, sImg, sGo, sT1, sNon, sZok, sRet, sMir = 22, 23, 24, 25, 26, 27, 28, 29

a(f'v_lshrrev_b32 v{vT}, 3, v0')
a('s_mul_i32 s11, s3, 28')
a(f'v_add_u32 v{vT+1}, s11, v{vT}')
a(f'v_mul_u32_u24 v{vT}, 2560, v{vT}')
for i in range(4):
    if i:
        a(f'v_add_u32 v{vT+1}, 7, v{vT+1}')
        a(f'v_add_u32 v{vT}, {7*2560}, v{vT}')
    a(f'v_lshrrev_b32 v{vT+2}, 1, v{vT+1}')
    a(f'v_xor_b32 v{vT+2}, v{vT+2}, v0')
    a(f'v_and_b32 v{vT+2}, 7, v{vT+2}')
    a(f'v_lshl_add_u32 v{vA+i}, v{vT+2}, 4, v{vT}')
a(f'v_mul_u32_u24 v{vT}, 205, v0')
a(f'v_lshrrev_b32 v{vT}, 11, v{vT}')
a(f'v_mul_u32_u24 v{vT+1}, 1120, v{vT}')
a(f'v_lshl_add_u32 v{vB}, v0, 4, v{vT+1}')
a('s_add_u32 s11, s11, s10')
a('s_lshl_b32 s11, s11, 1')
a('s_add_u32 s11, s11, s4')
a('s_mul_i32 s11, s11, 1280')
a('s_mul_i32 s13, s8, 160')
a(f's_mul_i32 s14, s3, {16*3840}')
a('s_add_u32 s13, s13, s14')
a('s_mul_i32 s14, s9, 5')
a('s_add_u32 s14, s14, 1')
a('s_lshr_b32 s14, s14, 1')
a('s_lshl_b32 s12, s12, 1')
a('s_add_u32 s12, s12, s14')
a('s_cmp_ge_u32 s12, 10')
a('s_cselect_b32 s14, 10, 0')
a('s_sub_u32 s12, s12, s14')
a('s_mul_i32 s14, s3, 3584')
a(f's_mul_i32 s15, s3, {8*960}')
a(f's_add_u32 s15, s15, {ABYTES}')
a('s_mov_b32 s62, 0')
stamp(1, 6)
a('s_waitcnt lgkmcnt(0)')
stamp(1)
stamp(2, 6)
srd(SRD_X, S_X, 2621440)
srd(SRD_B, S_WQKV, 2457600)
a('s_call_b64 s[60:61], L_issue')
stamp(3, 6)
if SPLIT:
    a('s_call_b64 s[60:61], L_issue')
    stamp(4, 6)
a('s_branch L_ql_main')
a.label('L_issue')
a('s_lshl_b32 s64, s12, 7')
a('s_mov_b32 exec_hi, 0x00ffffff')
a('s_add_u32 m0, s62, s14')
a('s_add_u32 s64, s64, s11')
for i in range(4):
    if i:
        a('s_add_u32 m0, m0, 896')
    if not (DBG & 2):
        a(f'buffer_load_dwordx4 v{vA+i}, {s(SRD_X,4)}, s64 offen lds')
    if i == 0 and PROF == 6:
        a('s_cmp_lg_u32 s98, 0')
        a('s_cbranch_scc1 L_st9')
        stamp(9, 6)
        a('s_waitcnt lgkmcnt(0)')
        a.label('L_st9')
a('s_mul_i32 s65, s12, 245760')
a('s_mov_b32 exec_hi, 0x0fffffff')
a('s_add_u32 m0, s62, s15')
a('s_add_u32 s65, s65, s13')
for i in range(8):
    if i:
        a('s_add_u32 m0, m0, 960')
        a(f's_add_u32 s64, s65, {swap23(2*i)*3840}')
    if not (DBG & 4):
        a(f'buffer_load_dwordx4 v{vB}, {s(SRD_B,4)}, s{64 if i else 65} offen lds')
a('s_mov_b32 exec_hi, -1')
a('s_add_u32 s12, s12, 1')
a('s_cmp_eq_u32 s12, 10')
a('s_cselect_b32 s12, 0, s12')
a(f's_add_u32 s62, s62, {SL}')
a(f's_cmp_eq_u32 s62, {3*SL}')
a('s_cselect_b32 s62, 0, s62')
a('s_setpc_b64 s[60:61]')


def p2_decode(t1, jreg, mir, zt, jj, tmp1, tmp2):
    a(f's_bfe_u32 s{jreg}, s2, 0x30003')
    a(f's_and_b32 s{t1}, s2, 1')
    a(f's_and_b32 s{tmp1}, s2, 6')
    a(f's_lshr_b32 s{tmp2}, s2, 7')
    a(f's_add_u32 s{tmp1}, s{tmp1}, s{tmp2}')
    a(f's_lshl_b32 s{tmp1}, s{tmp1}, 1')
    a(f's_add_u32 s{t1}, s{t1}, s{tmp1}')
    a(f's_sub_u32 s{tmp1}, 32, s{t1}')
    a(f's_cmp_eq_u32 s{t1}, 0')
    a(f's_cselect_b32 s{tmp1}, 16, s{tmp1}')
    a('s_bitcmp1_b32 s2, 6')
    a(f's_cselect_b32 s{t1}, s{tmp1}, s{t1}')
    if zt is None:
        a(f's_cmp_ge_u32 s{jreg}, 4')
        a(f's_cselect_b32 s{mir}, 1, 0')
        return
    a(f's_sub_u32 s{tmp1}, 32, s{t1}')
    a(f's_and_b32 s{tmp1}, s{tmp1}, 31')
    a(f's_sub_u32 s{tmp2}, 7, s{jreg}')
    a(f's_cmp_ge_u32 s{jreg}, 4')
    a(f's_cselect_b32 s{zt}, s{tmp1}, s{t1}')
    a(f's_cselect_b32 s{jj}, s{tmp2}, s{jreg}')


def check(cur, sn):
    for q in range(4):
        a(f'v_xor_b32 v{cur+q}, s{sn}, v{cur+q}')
    a(f'v_or3_b32 v{cur}, v{cur}, v{cur+1}, v{cur+2}')
    a(f'v_or_b32 v{cur}, v{cur}, v{cur+3}')
    a(f'v_cmp_ne_u32 vcc, 0, v{cur}')


def poll(tag, va, vd, soff, sn, scnt, slp):
    a(f'buffer_load_dwordx4 {v(vd,4)}, v{va}, {s(SRD_WS,4)}, s{soff} offen sc1')
    a.label(f'L_poll_{tag}')
    for h in range(2):
        cur, nxt = (vd, vd + 4) if h == 0 else (vd + 4, vd)
        a(f's_sleep {slp}')
        a(f'buffer_load_dwordx4 {v(nxt,4)}, v{va}, {s(SRD_WS,4)}, s{soff} offen sc1')
        a('s_waitcnt vmcnt(1)')
        check(cur, sn)
        a(f's_cbranch_vccz L_polled_{tag}')
    a(f's_sub_u32 s{scnt}, s{scnt}, 1')
    a(f's_cmp_lg_u32 s{scnt}, 0')
    a(f's_cbranch_scc1 L_poll_{tag}')
    a.label(f'L_polled_{tag}')


def wo_addr_body():
    t = vT
    a('s_lshl_b32 s71, s3, 6')
    a(f'v_add_u32 v{t}, s71, v0')
    for i in range(5):
        if i:
            a(f'v_add_u32 v{t}, 256, v{t}')
        a(f'v_mul_u32_u24 v{t+1}, 6554, v{t}')
        a(f'v_lshrrev_b32 v{t+1}, 16, v{t+1}')
        a(f'v_mul_u32_u24 v{t+2}, 10, v{t+1}')
        a(f'v_sub_u32 v{t+2}, v{t}, v{t+2}')
        a(f'v_lshrrev_b32 v{t+3}, 1, v{t+1}')
        a(f'v_xor_b32 v{t+3}, v{t+3}, v{t+1}')
        a(f'v_and_b32 v{t+3}, 4, v{t+3}')
        a(f'v_mul_u32_u24 v{t+3}, 3, v{t+3}')
        a(f'v_xor_b32 v{t+1}, v{t+3}, v{t+1}')
        a(f'v_mul_u32_u24 v{t+1}, 1280, v{t+1}')
        a(f'v_lshl_add_u32 v{vW+i}, v{t+2}, 4, v{t+1}')
    a('s_bfe_u32 s70, s2, 0x30003')
    a('s_mul_i32 s70, s70, 160')
    a('s_lshl_b32 s71, s3, 10')
    srd(SRD_G, S_WO, 819200)


def wo_chunk(ch):
    a(f's_add_u32 s72, s70, {ch*128*1280}')
    for i in range(5):
        a(f's_add_u32 m0, s71, {WCH[ch]+4096*i}')
        a(f'buffer_load_dwordx4 v{vW+i}, {s(SRD_G,4)}, s72 offen lds')


a.label('L_p2setup0')
wo_addr_body()
a('s_setpc_b64 s[60:61]')
a.label('L_p2setup1')
srd(SRD_WS, S_WS, WS_SIZE)
srd(SRD_C, S_OUT, 2621440)
p2_decode(sT1, 65, None, 66, 67, 68, 69)
a(f's_cselect_b32 s{sMir}, 1, 0')
a('s_mul_i32 s78, s66, 98304')
a('s_mul_i32 s67, s67, 160')
a('s_add_u32 s78, s78, s67')
a('s_mul_i32 s67, s3, 4608')
a('s_add_u32 s78, s78, s67')
a(f's_add_u32 s78, s78, {Z_OFF}')
a('s_and_b32 s79, s2, 7')
a('s_lshl_b32 s79, s79, 13')
a(f's_add_u32 s79, s79, {F_OFF}')
a(f'v_mul_u32_u24 v{vT}, 49, v0')
a(f'v_lshrrev_b32 v{vT}, 10, v{vT}')
a(f'v_mul_u32_u24 v{vT+1}, 21, v{vT}')
a(f'v_sub_u32 v{vT+1}, v0, v{vT+1}')
a(f'v_cmp_gt_u32 vcc, 10, v{vT+1}')
a(f'v_mul_u32_u24 v{vT}, 1536, v{vT}')
a(f'v_lshl_add_u32 v{vT}, v{vT+1}, 4, v{vT}')
a(f'v_add_u32 v{vT+1}, 768, v{vT}')
a(f'v_subrev_u32 v{vT}, 160, v{vT}')
a(f'v_cndmask_b32 v{vZp}, v{vT}, v{vT+1}, vcc')
a(f'v_min_u32 v{vPa}, 23, v0')
a(f'v_lshlrev_b32 v{vPa}, 7, v{vPa}')
a(f'v_min_u32 v{vPq}, 19, v0')
a(f'v_lshlrev_b32 v{vPq}, 7, v{vPq}')
a(f'v_add_u32 v{vPq}, 4096, v{vPq}')
a(f'v_mov_b32 v{vCn}, {CNT}')
a(f'v_mov_b32 v{vCn+1}, 1')
a('s_setpc_b64 s[60:61]')
a.label('L_p2setup2')
a(f'v_and_b32 v{kt}, 15, v0')
a(f'v_lshrrev_b32 v{kt+1}, 4, v0')
a(f'v_lshrrev_b32 v{kt+2}, 5, v0')
a(f'v_bfe_u32 v{kt+3}, v0, 2, 3')
a(f'v_lshl_add_u32 v{kt+3}, v{kt+2}, 4, v{kt+3}')
a(f'v_mul_u32_u24 v{kt+3}, 160, v{kt+3}')
a(f'v_and_b32 v{kt+4}, 3, v0')
a(f'v_lshl_add_u32 v{vWa}, v{kt+4}, 3, v{kt+3}')
a(f'v_add_u32 v{vWa+1}, {WCH[1]}, v{vWa}')
a(f'v_lshlrev_b32 v{vO}, 4, v0')
a(f'v_mul_u32_u24 v{kt+3}, {327680-2560}, v{kt+2}')
a(f'v_add_u32 v{vO+1}, v{vO}, v{kt+3}')
a(f's_mov_b32 s{sImg}, {OIMG[0]}')
for i in range(1, 4):
    a(f's_cmp_eq_u32 s3, {i}')
    a(f's_cselect_b32 s{sImg}, {OIMG[i]}, s{sImg}')
a(f'v_mul_u32_u24 v{kt+3}, 160, v{kt}')
a(f'v_lshl_add_u32 v{kt+3}, v{kt+1}, 4, v{kt+3}')
a(f'v_add_u32 v{vOr}, s{sImg}, v{kt+3}')
a(f'v_mul_u32_u24 v{kt+3}, 2400, v{kt+2}')
a(f'v_add_u32 v{vOr+1}, v{vOr}, v{kt+3}')
a(f's_lshl_b32 s{sOb}, s{sT1}, 2')
a(f's_add_u32 s{sOb}, s{sOb}, s3')
a(f's_lshl_b32 s{sGo}, s{sOb}, 6')
a(f's_add_u32 s{sGo}, s{sGo}, {G_OFF}')
a(f's_mul_i32 s{sOb}, s{sOb}, 2560')
a(f'v_lshlrev_b32 v{vGa}, 2, v{kt}')
a('s_lshl_b32 s66, s3, 9')
a(f's_add_u32 s66, s66, s{sT1}')
a(f'v_lshl_add_u32 v{kt+2}, v{kt}, 5, s66')
a(f'v_mul_u32_u24 v{vOut}, 1280, v{kt+2}')
a(f'v_add_u32 v{vOut}, s70, v{vOut}')
a(f'v_lshl_add_u32 v{vOut+1}, v{kt+1}, 3, v{vOut}')
a(f'v_and_b32 v{kt+3}, 1, v{kt+1}')
a(f'v_lshl_add_u32 v{vOut}, v{kt+3}, 5, v{vOut}')
a(f'v_and_b32 v{kt+3}, 2, v{kt+1}')
a(f'v_lshl_add_u32 v{vOut}, v{kt+3}, 3, v{vOut}')
a(f'v_cvt_f32_u32 v{kt+2}, v{kt+2}')
a(f's_lshl_b32 s66, s{sMir}, 31')
a(f'v_xor_b32 v{kt+2}, s66, v{kt+2}')
a(f'v_cvt_f32_u32 v{kt+3}, v{kt+1}')
a(f'v_mul_f32 v{kt+3}, v{kt+3}, v{kt+2}')
a(f'v_mul_f32 v{kt+3}, {hx(f2u(4/2048.0))}, v{kt+3}')
for i in range(4):
    if i in (0, 2):
        a('s_setpc_b64 s[60:61]')
        a.label(f'L_p2setup{3+i//2}')
    for jr in range(0, 4, 2):
        for e in range(2):
            a(f'v_fmamk_f32 v{kt+4+e}, v{kt+2}, {hx(f2u((16*i+jr+e)/2048.0))}, v{kt+3}')
        for e in range(2):
            a(f'v_cos_f32 v{kt+6+e}, v{kt+4+e}')
            a(f'v_sin_f32 v{kt+4+e}, v{kt+4+e}')
        for e in range(2):
            a(f'{cvt} v{WsF+4*i+jr+e}, v{kt+6+e}, v{kt+4+e}')
a(f's_cmp_eq_u32 s{sMir}, 0')
a('s_cselect_b32 s66, 0, 80')
a('s_cselect_b32 s67, 1, -1')
a('s_cselect_b32 s68, 32, -32' if False else 's_cselect_b32 s68, 32, 0xffffffe0')
a(f'v_mul_u32_u24 v{kt+4}, {4*336}, v{kt+1}')
a(f'v_add_u32 v{kt+4}, {ZIMG}, v{kt+4}')
a(f'v_mul_lo_u32 v{kt+2}, v{kt}, s67')
a(f'v_add_u32 v{kt+2}, s66, v{kt+2}')
a(f'v_and_b32 v{kt+3}, 1, v{kt+2}')
a(f'v_xor_b32 v{kt+3}, 1, v{kt+3}')
a(f'v_mul_u32_u24 v{kt+3}, 160, v{kt+3}')
a(f'v_lshrrev_b32 v{kt+2}, 1, v{kt+2}')
a(f'v_lshl_add_u32 v{kt+2}, v{kt+2}, 2, v{kt+3}')
a(f'v_add_u32 v{vZa}, v{kt+2}, v{kt+4}')
for T in range(1, 5):
    a(f'v_add_u32 v{vZa+T}, s68, v{vZa+T-1}')
a(f's_mov_b32 s{sZok}, s3')
a(f's_mov_b32 s{sRet}, 20000')
a('s_setpc_b64 s[60:61]')

def _unused(ch):
    a(f's_add_u32 s72, s70, {ch*128*1280}')
    for i in range(5):
        a(f's_add_u32 m0, s71, {WCH[ch]+4096*i}')
        a(f'buffer_load_dwordx4 v{vW+i}, {s(SRD_G,4)}, s72 offen lds')


def spin(tag, off, n):
    a(f's_branch L_spin1_{tag}')
    a.label(f'L_spin_{tag}')
    a('s_sleep 1')
    a.label(f'L_spin1_{tag}')
    a(f'ds_read_b32 v{kt}, v{vCn} offset:{off}')
    a('s_waitcnt lgkmcnt(0)')
    a(f'v_readfirstlane_b32 s64, v{kt}')
    a(f's_cmp_ge_u32 s64, {n}')
    a(f's_cbranch_scc0 L_spin_{tag}')


def lds_inc(off):
    a('s_mov_b64 exec, 1')
    a(f'ds_add_u32 v{vCn}, v{vCn+1} offset:{off}')
    a('s_mov_b64 exec, -1')


def w_reads(ks):
    ch, kb = ks >> 2, ks & 3
    ad, base = (vWa + 1, WCH[ch] - WCH[1]) if ch in (1, 2) else (vWa, WCH[ch])
    return [f'ds_read_b64_tr_b16 {v(bF[ks%NR][T]+2*bs,2)}, v{ad} offset:{base+kb*5120+bs*1280+32*T}'
            for T in range(5) for bs in range(2)]


def preflag():
    a('s_cmp_lg_u32 s3, 3')
    a('s_cbranch_scc1 L_nopre')
    a(f'v_mov_b32 v{kt}, s{sNon}')
    a('s_mov_b64 exec, 15')
    a(f'buffer_store_dword v{kt}, v{vFl}, {s(SRD_WS,4)}, 0 offen sc0 sc1')
    a('s_mov_b64 exec, -1')
    a.label('L_nopre')


a.label('L_ql_main')
toks = [('I', 0)] + ([] if SPLIT else [('S', 0)]) + [('I', 1), ('W', 0)]
for i in range(1, 9):
    toks += [('J' if SPLIT and i <= 5 else 'I', i + 1)] + ([('P', 0)] if i == 8 else []) + [('W', i)]
toks += [('C', 0), ('C', 1), ('W', 9)]
seqv = []
for tk, k in toks:
    if tk == 'I':
        if k > SPLIT:
            a('s_call_b64 s[60:61], L_issue')
        seqv += [('I', k)] * ((0 if DBG & 2 else 4) + (0 if DBG & 4 else 8))
        if k == 9:
            stamp(3)
    elif tk == 'J':
        pc = k - 2
        a('s_cmp_lt_u32 s3, 2')
        a(f's_cbranch_scc1 L_j{k}')
        a(f's_call_b64 s[60:61], L_p2setup{pc}')
        a('s_call_b64 s[60:61], L_issue')
        a(f's_branch L_jj{k}')
        a.label(f'L_j{k}')
        a('s_call_b64 s[60:61], L_issue')
        a(f's_call_b64 s[60:61], L_p2setup{pc}')
        a.label(f'L_jj{k}')
        seqv += [('I', k)] * 12
        if pc == 0:
            nonce_load()
        if pc == 1:
            a('s_cmp_eq_u32 s3, 0')
            a(f's_cselect_b32 s64, 0, {hx(OOB)}')
            a(f'v_or_b32 v{vPa}, s64, v{vPa}')
    elif tk == 'C':
        wo_chunk(k)
        seqv += [('C', k)] * 5
    elif tk == 'P':
        a(f'buffer_load_dwordx4 {v(vPd,4)}, v{vPa}, {s(SRD_WS,4)}, s79 offen sc1')
        seqv += [('P', 0)]
    elif tk == 'S':
        nonce_load()
        for pc in range(5):
            a(f's_call_b64 s[60:61], L_p2setup{pc}')
        a('s_cmp_eq_u32 s3, 0')
        a(f's_cselect_b32 s64, 0, {hx(OOB)}')
        a(f'v_or_b32 v{vPa}, s64, v{vPa}')
    elif tk == 'W':
        last = max([n for n, t_ in enumerate(seqv) if t_ == ('I', k) or (k == 9 and t_ == ('P', 0))] + [-1])
        if k == 7:
            a('s_waitcnt lgkmcnt(0)')
            my_nonce(sNon)
        a(f's_waitcnt vmcnt({len(seqv)-1-last})')
        if k == 0:
            stamp(2)
            stamp(5, 6)
        a('s_barrier')
        if k < 3:
            stamp(6 + k, 6)
        if k == 9:
            stamp(4)
        if k < 9:
            stamp(k + 1, 3)
stamp(1, 4)
a('s_setprio 3')
a('s_cmp_lg_u32 s3, 0')
a('s_cbranch_scc1 L_post9')
check(vPd, sNon)
a('s_cbranch_vccz L_polled_d')
a.label('L_post9')
a('s_cmp_eq_u32 s3, 0')
a('s_cbranch_scc1 L_post9z')
spin('f', 16, 1)
a('s_branch L_post9b')
a.label('L_post9z')
a(f's_mov_b32 s66, {SPIN}')
poll('d', vPa, vPd, 79, sNon, 66, SLP_D)
a('s_mov_b64 exec, 1')
a(f'ds_add_u32 v{vCn}, v{vCn+1} offset:16')
a(f'ds_add_u32 v{vCn}, v{vCn+1} offset:12')
a('s_mov_b64 exec, -1')
a.label('L_post9b')
stamp(2, 4)
a(f'buffer_load_dword v{vGt}, v{vGa}, {s(SRD_WS,4)}, s{sGo} offen sc1')
a('s_mul_i32 s64, s3, 1008')
a(f's_add_u32 m0, s64, {ZIMG}')
a('s_mov_b32 exec_hi, 0x7fffffff')
for i in range(5):
    a(f'buffer_load_dwordx4 v{vZp}, {s(SRD_WS,4)}, s78 offen sc1 lds')
    a('s_add_u32 m0, m0, 4032')
    a('s_add_u32 s78, s78, 18432')
a('s_cmp_ge_u32 s3, 2')
a('s_cbranch_scc1 L_zret')
a(f'buffer_load_dwordx4 v{vZp}, {s(SRD_WS,4)}, s78 offen sc1 lds')
a.label('L_zret')
a('s_mov_b32 exec_hi, -1')
wo_chunk(2)
a('s_waitcnt vmcnt(11)')
lds_inc(0)
stamp(3, 4)
spin('c', 4, 4)
stamp(4, 4)
wo_chunk(3)
wo_chunk(4)
stamp(5, 4)
a('s_waitcnt vmcnt(15)')
lds_inc(8)
spin('a', 0, 4)
a('s_setprio 0')
stamp(6, 4)
for ks in range(4, 8):
    for x in w_reads(ks):
        a(x)
stamp(7, 4)
spin('z', 8, 4)
stamp(8, 4)
stamp(5, 1)
zr = [[f'ds_read_b32 v{bF[st][T]+jr}, v{vZa+T} offset:{(16*st+jr)*336}' for T in range(5) for jr in range(4)] for st in range(4)]
for x in zr[0] + zr[1]:
    a(x)
for st in range(4):
    a(f's_waitcnt lgkmcnt({15 if st < 3 else 10})')
    Mz = []
    for T in range(5):
        d = v(accD[T], 4)
        Mz.append(f'{mf} {d}, {v(bF[st][T],4)}, {v(WsF+4*st,4)}, {"0" if st == 0 else d}')
    R = zr[st + 2] if st < 2 else w_reads(st - 2)
    for x in interleave(Mz, R, per=4 if st < 2 else 2):
        a(x)
for x in w_reads(2) + w_reads(3):
    a(x)
stamp(9, 4)
if PFP == 1:
    preflag()
a('s_waitcnt vmcnt(0)')
for T in range(5):
    for r_ in range(4):
        a(f'v_mul_f32 v{accD[T]+r_}, v{accD[T]+r_}, v{vGt}')
a(f'v_sub_f32 v{vGt}, 1.0, v{vGt}')
a('s_waitcnt lgkmcnt(0)')
a('s_setprio 3')
stamp(6, 1)
a('s_cmp_lg_u32 s3, 1')
a('s_cbranch_scc1 L_b13')
a(f'buffer_load_dwordx4 {v(vPd,4)}, v{vPq}, {s(SRD_WS,4)}, s79 offen sc1')
a('s_waitcnt vmcnt(0)')
check(vPd, sNon)
a('s_cbranch_vccz L_polled_q')
a(f's_mov_b32 s66, {SPIN}')
poll('q', vPq, vPd, 79, sNon, 66, SLP_Q)
a('s_cmp_ge_u32 s2, 2')
a('s_cbranch_scc1 L_b13')
a('s_lshl_b32 s65, s2, 2')
a(f's_add_u32 s65, s65, {N_OFF}')
a(f'v_mov_b32 v{kt}, s65')
a(f'v_mov_b32 v{kt+1}, s{sNon}')
a('s_mov_b64 exec, 1')
a(f'buffer_store_dword v{kt+1}, v{kt}, {s(SRD_WS,4)}, 0 offen')
a('s_mov_b64 exec, -1')
a.label('L_b13')
stamp(7, 1)
a('s_barrier')
stamp(8, 1)
stamp(1, 5)


def odma(i, first=False):
    hq2, r5 = divmod(i, 5)
    off = hq2 * 655360 + r5 * 1024 + (327680 - 2560 if r5 >= 3 else 0)
    return [f's_add_u32 m0, s{sImg}, {1024*i}', f's_add_u32 s64, s{sOb}, {off}',
            f'buffer_load_dwordx4 v{vO+(r5==2)}, {s(SRD_WS,4)}, s64 offen sc1 lds']


for i in range(NUP):
    for x in odma(i):
        a(x)
nissued = NUP
stamp(2, 5)


def o_read(ks):
    hq2, r5 = divmod(ks, 5)
    off = hq2 * 5120 + r5 * 64 + (2400 if r5 >= 3 else 0)
    return f'ds_read_b128 {v(oF[ks%NO],4)}, v{vOr+(r5==2)} offset:{off}'


def o_need(ks):
    hq2, r5 = divmod(ks, 5)
    return hq2 * 5 + (3 if r5 < 2 else 5)


def o_check(f):
    o = oF[f % NO]
    if CHK1:
        return [f'v_cmp_eq_u32 vcc, -1, v{o+3}']
    return [f'v_max3_u32 v{kt}, v{o}, v{o+1}, v{o+2}', f'v_max_u32 v{kt}, v{kt}, v{o+3}', f'v_cmp_eq_u32 vcc, -1, v{kt}']


OD = 3
lds_seq = []
vm_have = -1


def emit_o(ks):
    global vm_have
    n = o_need(ks)
    assert n <= nissued
    if n > vm_have:
        a(f's_waitcnt vmcnt({nissued-n})')
        vm_have = n
    a(o_read(ks))
    lds_seq.append(('o', ks))


for ks in range(OD):
    emit_o(ks)
a(f's_waitcnt lgkmcnt({OD-1})')
for x in o_check(0):
    a(x)
a('s_cbranch_vccnz L_retry0')
a.label('L_back0')
stamp(3, 5)
wq = [(ks, n, x) for ks in range(NR, 20) for n, x in enumerate(w_reads(ks))]
for ks in range(20):
    if ks + OD < 20:
        emit_o(ks + OD)
    need_ = [n for n, t_ in enumerate(lds_seq) if t_ in (('o', ks), ('o', ks + 1), ('w', ks))]
    assert not any(q[0] == ks for q in wq)
    a(f's_waitcnt lgkmcnt({min(15, len(lds_seq)-1-max(need_))})')
    C = o_check(ks + 1) if ks < 19 else []
    quota = 7
    for T in range(5):
        d = v(accO[T], 4)
        a(f'{mf} {d}, {v(bF[ks%NR][T],4)}, {v(oF[ks%NO],4)}, {"0" if ks == 0 else d}')
        k_here = 2 if T in (1, 3) else 1
        while k_here and quota and wq and (wq[0][0] - NR < ks or (wq[0][0] - NR == ks and wq[0][1] // 2 <= T)):
            q = wq.pop(0)
            a(q[2])
            lds_seq.append(('w', q[0]))
            k_here -= 1
            quota -= 1
        for x in C[T:T+1]:
            a(x)
        if T in (2, 4) and nissued < 20:
            for x in odma(nissued):
                a(x)
            nissued += 1
    if ks < 19:
        a(f's_cbranch_vccnz L_retry{ks+1}')
        a.label(f'L_back{ks+1}')
    if ks in (1, 4, 9, 14, 19):
        stamp({1:4, 4:5, 9:6, 14:7, 19:8}[ks], 5)
stamp(9, 1)
P = bF[0][0]
F = []
for T in range(5):
    for r_ in range(4):
        F.append(f'v_fma_f32 v{accD[T]+r_}, v{accO[T]+r_}, v{vGt}, v{accD[T]+r_}')
    F.append(f'{cvt} v{P+2*T}, v{accD[T]}, v{accD[T]+1}')
    F.append(f'{cvt} v{P+2*T+1}, v{accD[T]+2}, v{accD[T]+3}')
    if T in (1, 3):
        F.append(f'v_permlane16_swap_b32 v{P+2*T-2}, v{P+2*T}')
        F.append(f'v_permlane16_swap_b32 v{P+2*T-1}, v{P+2*T+1}')
        F.append(f'buffer_store_dwordx4 {v(P+2*T-2,4)}, v{vOut}, {s(SRD_C,4)}, 0 offen offset:{32*(T-1)}')
F.append(f'buffer_store_dwordx2 {v(P+8,2)}, v{vOut+1}, {s(SRD_C,4)}, 0 offen offset:128')
for x in F:
    a(x)
if PROF == 1:
    a(f's_sub_u32 s82, s80, s{sRet}')
    a('s_add_u32 s82, s82, 20000')
endpgm()

for i in range(20):
    hq2, r5 = divmod(i, 5)
    off = hq2 * 655360 + r5 * 1024 + (327680 - 2560 if r5 >= 3 else 0)
    if r5 == 0:
        a.label(f'L_odma{hq2}')
    a(f's_add_u32 s64, s{sOb}, {off}')
    a(f'buffer_load_dwordx4 v{vO+(r5==2)}, {s(SRD_WS,4)}, s64 offen sc1 lds')
    a(f's_add_u32 m0, m0, 1024')
a('s_setpc_b64 s[60:61]')


def retry_stubs():
    for f in range(20):
        hq2 = f // 5
        a.label(f'L_retry{f}')
        a(f's_sub_u32 s{sRet}, s{sRet}, 1')
        a(f's_cbranch_scc1 L_giveup{f}')
        a(f's_sleep {SLP_R}')
        a(f's_add_u32 m0, s{sImg}, {hq2*5120}')
        a(f's_call_b64 s[60:61], L_odma{hq2}')
        a(f's_waitcnt vmcnt({20-o_need(min(19, f+OD-1))})')
        for k in range(f, min(20, f + OD)):
            a(o_read(k))
        a('s_waitcnt lgkmcnt(0)')
        for x in o_check(f):
            a(x)
        a(f's_cbranch_vccnz L_retry{f}')
        a(f's_branch L_back{f}')
        a.label(f'L_giveup{f}')
        a(f's_mov_b32 s{sRet}, 0')
        a(f's_branch L_back{f}')


a.label('L_qc')
a('s_setprio 2')
ra = RA(2, 256)
vXb = ra.get(2); vWb = ra.get(2)
vXc = ra.get(2); vWc = ra.get(2)
biasC = ra.get(4); biasP = ra.get(4); mCur = ra.get(2); mLo = ra.get(1); vOm = ra.get(1); vOr2 = ra.get(1)
Ec = ra.get(4); Cone = ra.get(4)
vOL = ra.get(1); vOG = ra.get(1); vX7 = ra.get(2); vC2 = ra.get(2); vFc = ra.get(2)
accQ = [ra.get(6) for b in range(NB)]
accK = [ra.get(4) for b in range(NB)]
accV = [ra.get(4) for b in range(NB)]
accR = [ra.get(4) for b in range(NB)]
fX = [[ra.get(4) for b in range(NB)] for k in range(2)]
fW = [[ra.get(4) for t in range(4)] for k in range(2)]
Vp = fW[0][0]; VRp = fW[1][0]
tmp = fX[1][0]
m_, g_ = tmp, tmp + 1
a('s_sub_u32 s9, s3, 4')
a('s_mul_i32 s12, s9, 40')
a(f'v_and_b32 v{m_}, 15, v0')
a(f'v_lshrrev_b32 v{g_}, 4, v0')
a(f'v_lshrrev_b32 v{tmp+2}, 1, v{m_}')
a(f'v_xor_b32 v{tmp+2}, v{tmp+2}, v{g_}')
a(f'v_lshlrev_b32 v{tmp+2}, 4, v{tmp+2}')
a(f'v_lshl_add_u32 v{vXb}, v{m_}, 7, v{tmp+2}')
a(f'v_xor_b32 v{vXb+1}, 64, v{vXb}')
a(f'v_lshrrev_b32 v{tmp+2}, 5, v0')
a(f'v_bfe_u32 v{tmp+3}, v0, 2, 3')
a(f'v_lshl_add_u32 v{tmp+2}, v{tmp+2}, 4, v{tmp+3}')
a(f'v_mul_u32_u24 v{tmp+2}, 480, v{tmp+2}')
a(f's_add_u32 s13, s12, {ABYTES}')
a(f'v_add_u32 v{tmp+2}, s13, v{tmp+2}')
a(f'v_and_b32 v{tmp+3}, 3, v0')
a(f'v_lshl_add_u32 v{vWb}, v{tmp+3}, 3, v{tmp+2}')
a(f'v_cmp_eq_u32 vcc, 1, v{tmp+3}')
a(f'v_min_u32 v{tmp+3}, 2, v{tmp+3}')
a(f'v_mul_u32_u24 v{tmp+3}, 160, v{tmp+3}')
a(f'v_add3_u32 v{vWb+1}, v{tmp+2}, v{tmp+3}, 32')
for r_ in range(4):
    a(f'v_cndmask_b32_e64 v{Cone+r_}, 0, 1.0, vcc')
for r_ in range(accQ[0], accR[-1] + 4, 2):
    a(f'v_mov_b64 {v(r_,2)}, 0')
a(f'v_mov_b32 v{vC2}, {CNT}')
a(f'v_mov_b32 v{vC2+1}, 1')
a(f'ds_write_b128 v{vC2}, {v(accK[0],4)}')
a(f'ds_write_b32 v{vC2}, v{accK[0]} offset:16')
NEG = hx(f2u(-1e30))
a(f'v_lshlrev_b32 v{tmp+2}, 2, v{g_}')
a(f'v_sub_u32 v{tmp+2}, v{m_}, v{tmp+2}')
a(f'v_mov_b32 v{tmp+4}, {NEG}')
for r_ in range(4):
    a(f'v_subrev_u32 v{tmp+3}, {r_}, v{tmp+2}')
    a(f'v_cmp_gt_u32 vcc, 8, v{tmp+3}')
    a(f'v_add_u32 v{tmp+3}, {16-r_}, v{tmp+2}')
    a(f'v_cmp_gt_u32 s[64:65], 8, v{tmp+3}')
    a(f'v_cndmask_b32_e64 v{biasC+r_}, v{tmp+4}, 0, vcc')
    a(f'v_cndmask_b32_e64 v{biasP+r_}, v{tmp+4}, 0, s[64:65]')
a(f'v_mov_b32 v{tmp+4}, 0xffff')
a(f'v_mov_b32 v{tmp+5}, 0xffff0000')
for d in range(2):
    a(f'v_cmp_le_i32 vcc, {2*d}, v{tmp+2}')
    a(f'v_cmp_le_i32 s[64:65], {2*d+1}, v{tmp+2}')
    a(f'v_cndmask_b32 v{mCur+d}, 0, v{tmp+4}, vcc')
    a(f'v_cndmask_b32_e64 v{tmp+3}, 0, v{tmp+5}, s[64:65]')
    a(f'v_or_b32 v{mCur+d}, v{mCur+d}, v{tmp+3}')
a(f'v_cmp_gt_u32 vcc, 32, v0')
a(f'v_mul_u32_u24 v{tmp+2}, {OROW}, v{m_}')
a(f's_add_u32 s13, s12, {OST}')
a(f'v_cndmask_b32_e64 v{mLo}, 0, -1, vcc')
a(f'v_add_u32 v{tmp+2}, s13, v{tmp+2}')
a(f'v_lshl_add_u32 v{vOm}, v{g_}, 3, v{tmp+2}')
a(f'v_lshl_add_u32 v{vOr2}, v{g_}, 1, v{tmp+2}')
a(f'v_mov_b64 {v(Ec,2)}, 0')
a(f'v_mov_b64 {v(Ec+2,2)}, 0')
a('s_mov_b32 exec_lo, 0')
a('s_mov_b32 exec_hi, 0x01000001')
a(f'v_mov_b32 v{Ec+2}, 0x3f80')
a('s_mov_b32 exec_hi, 0x10000010')
a(f'v_mov_b32 v{Ec+2}, 0x3f800000')
a('s_mov_b64 exec, -1')
a(f'v_mov_b64 {v(vXc,2)}, {v(vXb,2)}')
a(f'v_mov_b64 {v(vWc,2)}, {v(vWb,2)}')
sOG = 40
OMASK = [44, 46, 48, 50]


def o_store_setup():
    t = tmp
    a(f's_mul_i32 s66, s7, {U}')
    a('s_cmp_eq_u32 s7, 0')
    a('s_cselect_b32 s68, 0, 7')
    a('s_add_u32 s66, s66, s68')
    a('s_sub_u32 s66, s66, s10')
    a('s_lshl_b32 s67, s9, 2')
    a('s_sub_u32 s66, s66, s67')
    a('s_add_u32 s68, s67, s10')
    a('s_lshl_b32 s69, s8, 5')
    a('s_add_u32 s69, s69, s4')
    a('s_mul_i32 s69, s69, 10240')
    a(f'v_mul_u32_u24 v{t}, 205, v0')
    a(f'v_lshrrev_b32 v{t}, 11, v{t}')
    a(f'v_lshlrev_b32 v{vOG}, 4, v0')
    a(f'v_mul_u32_u24 v{t+1}, {OBLK-160}, v{t}')
    a(f's_mul_i32 s67, s67, {OROW}')
    a(f's_add_u32 s67, s67, {OST}')
    a(f'v_add3_u32 v{vOL}, v{t+1}, v{vOG}, s67')
    a(f'v_lshl_add_u32 v{t+1}, v{t}, 4, 16')
    a(f'v_cmp_gt_u32 vcc, 60, v0')
    a(f'v_cndmask_b32 v{t+1}, -16, v{t+1}, vcc')
    for i in range(4):
        a(f's_add_u32 s72, s68, {i}')
        a(f's_and_b32 s73, s72, 15')
        a(f's_mul_i32 s73, s73, 20480')
        a(f's_lshr_b32 s72, s72, 4')
        a(f's_mul_i32 s72, s72, 160')
        a(f's_add_u32 s72, s72, s73')
        a(f's_add_u32 s{sOG+i}, s72, s69')
        a(f's_sub_u32 s72, s66, {i}')
        a(f'v_cmp_le_i32 s[{OMASK[i]}:{OMASK[i]+1}], s72, v{t+1}')
    a(f'v_mul_u32_u24 v{t+1}, {OROW-160}, v{t}')
    a(f'v_add3_u32 v{vX7}, v{t+1}, v{vOG}, s67')
    a(f'v_add_u32 v{t+2}, s68, v{t}')
    a(f'v_and_b32 v{t+3}, 15, v{t+2}')
    a(f'v_mul_u32_u24 v{t+3}, 20480, v{t+3}')
    a(f'v_lshrrev_b32 v{t+2}, 4, v{t+2}')
    a(f'v_sub_u32 v{t+2}, v{t+2}, v{t}')
    a(f'v_mul_i32_i24 v{t+2}, 160, v{t+2}')
    a(f'v_add3_u32 v{t+2}, v{t+2}, v{t+3}, v{vOG}')
    a(f'v_add_u32 v{t+2}, s69, v{t+2}')
    a(f'v_mov_b32 v{t+1}, {hx(OOB)}')
    a(f'v_cmp_le_i32 vcc, s66, v{t}')
    a(f'v_cndmask_b32 v{t+2}, v{t+1}, v{t+2}, vcc')
    a(f'v_cmp_gt_u32 vcc, 40, v0')
    a(f'v_cndmask_b32 v{vX7+1}, v{t+1}, v{t+2}, vcc')


o_store_setup()
a('s_mul_i32 s64, s5, 20')
a('s_add_u32 s64, s64, s6')
a('s_lshr_b32 s65, s64, 2')
a('s_lshl_b32 s65, s65, 7')
a('s_and_b32 s64, s64, 3')
a('s_lshl_b32 s64, s64, 2')
a('s_add_u32 s64, s64, s65')
a('s_lshl_b32 s65, s4, 13')
a('s_add_u32 s64, s64, s65')
a(f's_add_u32 s64, s64, {F_OFF+4096}')
a(f'v_lshl_add_u32 v{vFc}, v0, 14, s64')
a('s_cmp_eq_u32 s3, 7')
a('s_cselect_b32 s64, 4, 0')
a(f'v_mov_b32 v{tmp}, {hx(OOB)}')
a(f'v_cmp_gt_u32 vcc, s64, v0')
a(f'v_cndmask_b32 v{vFc}, v{tmp}, v{vFc}, vcc')
CS = 20 ** -0.5 * math.log2(math.e)
a(f's_mov_b32 s66, {hx(f2u(CS))}')
a(f's_mov_b32 s67, {hx(f2u(CS))}')


def q_reads(kk):
    W = []
    for t in range(4):
        for bs in range(2):
            ad, off = (vWc, kk * 15360 + t * 160 + bs * 3840) if t < 3 else (vWc + 1, kk * 15360 + bs * 3840)
            W.append(f'ds_read_b64_tr_b16 {v(fW[kk][t]+2*bs,2)}, v{ad} offset:{off}')
    X = [f'ds_read_b128 {v(fX[kk][b],4)}, v{vXc+kk} offset:{2048*b}' for b in range(NB)]
    if DBG & 8:
        return X[:1]
    return W + X


def q_mfmas(kk):
    L = []
    for b in range(NB):
        x = v(fX[kk][b], 4)
        for t, acc in ((0, accQ), (1, accK), (2, accV), (3, accR)):
            w = v(fW[kk][t], 4)
            d = v(acc[b], 4)
            L.append(f'{mf} {d}, {x}, {w}, {d}' if t == 2 else f'{mf} {d}, {w}, {x}, {d}')
    if DBG & 1:
        L = L[:1]
    return L


a('s_mov_b32 s14, 0')
a('s_mov_b32 s15, 10')
stamp(1, 6)
a('s_waitcnt lgkmcnt(0)')
stamp(2, 6)
nonce_load()
srd(SRD_WS, S_WS, WS_SIZE)
stamp(1)
a('s_barrier')
stamp(2)
for x in q_reads(0):
    a(x)
a('.p2align 3')
a.label('L_qc_loop')
a('s_waitcnt lgkmcnt(0)')
a('s_sub_u32 s15, s15, 1')
a(f's_add_u32 s14, s14, {SL}')
a(f's_cmp_eq_u32 s14, {3*SL}')
a('s_cselect_b32 s14, 0, s14')
a('s_cmp_eq_u32 s15, 0')
fill = q_reads(1) + [f'v_add_u32_e64 v{vXc}, s14, v{vXb}', f'v_add_u32_e64 v{vXc+1}, s14, v{vXb+1}',
                     f'v_add_u32_e64 v{vWc}, s14, v{vWb}', f'v_add_u32_e64 v{vWc+1}, s14, v{vWb+1}']
for x in interleave(q_mfmas(0), fill):
    a(x)
a('s_waitcnt lgkmcnt(0)')
a('s_cbranch_scc1 L_qc_last')
a('s_nop 0' if DBG & 16 else 's_barrier')
a('s_nop 0')
for x in interleave(q_mfmas(1), q_reads(0)):
    a(x)
a('s_branch L_qc_loop')
a.check_backedge('L_qc_loop')
a.label('L_qc_last')
stamp(3)
a('s_mov_b64 exec, 1')
a(f'ds_add_u32 v{vC2}, v{vC2+1} offset:4')
a('s_mov_b64 exec, -1')
my_nonce(64)
a(f'v_mov_b32 v{vFc+1}, s64')
FLAG = f'buffer_store_dword v{vFc+1}, v{vFc}, {s(SRD_WS,4)}, 0 offen sc0 sc1'
B = range(NB)
E = list(q_mfmas(1))
e = E.append
SC = fX[0]; SP = fX[1]
for b in B:
    q, k, r, vv = accQ[b], accK[b], accR[b], accV[b]
    e(f'{cvt} v{q+3}, v{q+2}, v{q+3}')
    e(f'{cvt} v{q+2}, v{q}, v{q+1}')
    e(f'{cvt} v{k}, v{k}, v{k+1}')
    e(f'{cvt} v{k+1}, v{k+2}, v{k+3}')
    e(f'{cvt} v{q+4}, v{r}, v{r+1}')
    e(f'{cvt} v{k+3}, v{r+2}, v{r+3}')
    e(f'v_permlane16_swap_b32 v{q+4}, v{k+3}')
    e(f'v_and_b32 v{k+2}, v{mLo}, v{k+3}')
    e(f'{cvt} v{Vp+2+2*b}, v{vv}, v{vv+1}')
    e(f'{cvt} v{Vp+3+2*b}, v{vv+2}, v{vv+3}')
    e(f'{mf} {v(SC[b],4)}, {v(k,4)}, {v(q+2,4)}, {v(biasC,4)}')
    if b:
        e(f'{mf} {v(vv,4)}, {v(accK[b-1],4)}, {v(q+2,4)}, {v(biasP,4)}')
    e(f'{mf} {v(r,4)}, {v(q+2,4)}, {v(Ec,4)}, {v(Cone,4)}')
    e(f'{cvt} v{VRp+2+2*b}, v{r}, v{r+1}')
    e(f'{cvt} v{VRp+3+2*b}, v{r+2}, v{r+3}')
    if b:
        for r_ in range(4):
            e(f'v_max_f32 v{SC[b]+r_}, v{SC[b]+r_}, v{vv+r_}')
    e(f'v_max3_f32 v{q}, v{SC[b]}, v{SC[b]+1}, v{SC[b]+2}')
    e(f'v_max_f32 v{q}, v{q}, v{SC[b]+3}')
M = [accQ[b] for b in B]
for grp in ([0, 1, 2, 3], [4, 5, 6]):
    A_, B_, C_ = M[grp[0]], M[grp[1]], M[grp[2]]
    e(f'v_permlane16_swap_b32 v{A_}, v{B_}')
    e(f'v_max_f32 v{A_}, v{A_}, v{B_}')
    if len(grp) == 4:
        D_ = M[grp[3]]
    else:
        D_ = C_ + 1
        e(f'v_mov_b32 v{D_}, v{C_}')
    e(f'v_permlane16_swap_b32 v{C_}, v{D_}')
    e(f'v_max_f32 v{C_}, v{C_}, v{D_}')
    e(f'v_permlane32_swap_b32 v{A_}, v{C_}')
    e(f'v_max_f32 v{A_}, v{A_}, v{C_}')
    e(f'v_mul_f32 v{C_}, {hx(f2u(-CS))}, v{A_}')
    e(f'v_mul_f32 v{A_}, {hx(f2u(-CS))}, v{A_}')
    e(f'v_permlane32_swap_b32 v{A_}, v{C_}')
    e(f'v_mov_b32 v{B_}, v{A_}')
    e(f'v_permlane16_swap_b32 v{A_}, v{B_}')
    if len(grp) == 4:
        e(f'v_mov_b32 v{D_}, v{C_}')
        e(f'v_permlane16_swap_b32 v{C_}, v{D_}')
E2 = len(E)
for b in B:
    q, k, r, vv = accQ[b], accK[b], accR[b], accV[b]
    c_, p_ = SC[b], SP[b]
    if PK:
        for r_ in (0, 2):
            e(f'v_pk_fma_f32 {v(c_+r_,2)}, {v(c_+r_,2)}, s[66:67], {v(q,2)} op_sel_hi:[1,1,0]')
    else:
        for r_ in range(4):
            e(f'v_fma_f32 v{c_+r_}, v{c_+r_}, s66, v{q}')
    for r_ in range(4):
        e(f'v_exp_f32 v{c_+r_}, v{c_+r_}')
    e(f'{cvt} v{c_}, v{c_}, v{c_+1}')
    e(f'{cvt} v{c_+1}, v{c_+2}, v{c_+3}')
    e(f'v_and_b32 v{p_+2}, v{mCur}, v{c_}')
    e(f'v_and_b32 v{p_+3}, v{mCur+1}, v{c_+1}')
    e(f'v_xor_b32 v{p_}, v{p_+2}, v{c_}')
    e(f'v_xor_b32 v{p_+1}, v{p_+3}, v{c_+1}')
    e(f'{mf} {v(r,4)}, {v(VRp+2*b,4)}, {v(p_,4)}, 0')
    e(f'{mf} {v(vv,4)}, {v(Vp+2*b,4)}, {v(p_,4)}, 0')
    e(f'v_rcp_f32 v{r+1}, v{r+1}')
    if PK:
        for x in (vv, vv + 2):
            e(f'v_pk_mul_f32 {v(x,2)}, {v(x,2)}, {v(r,2)} op_sel:[0,1] op_sel_hi:[1,1]')
    else:
        for x in range(vv, vv + 4):
            e(f'v_mul_f32 v{x}, v{x}, v{r+1}')
    e(f'v_mul_f32 v{r+2}, v{r}, v{r+1}')
    e(f'{cvt} v{vv}, v{vv}, v{vv+1}')
    e(f'{cvt} v{vv+1}, v{vv+2}, v{vv+3}')
    e(f'{cvt} v{r+2}, v{r+2}, v{r+2}')
    e(f'ds_write_b64 v{vOm}, {v(vv,2)} offset:{OBLK*b}')
    e(f'ds_write_b16 v{vOr2}, v{r+2} offset:{OBLK*b+32}')
E, est = schedule(E, by_order_from=E2)
print('epilogue instrs', len(E), 'est cycles', est)
if PFP == 2 and FPOS >= 0:
    E.insert(len(E) - FPOS, FLAG)
for x in E:
    a(x)
stamp(4)
a('s_mov_b64 exec, 1')
a(f'ds_add_u32 v{vC2}, v{vC2+1} offset:12')
a('s_mov_b64 exec, -1')
a.label('L_spin_o')
a(f'ds_read_b32 v{tmp}, v{vC2} offset:12')
a('s_waitcnt lgkmcnt(0)')
a(f'v_readfirstlane_b32 s64, v{tmp}')
a('s_cmp_ge_u32 s64, 5')
a('s_cbranch_scc0 L_spin_o')
stamp(5)
vOD = fX[0][0]
for i in range(4):
    a(f'ds_read_b128 {v(vOD+4*i,4)}, v{vOL} offset:{OBLK+OROW*i}')
a(f'ds_read_b128 {v(vOD+16,4)}, v{vX7}')
for i in range(4):
    a(f's_mov_b64 exec, s[{OMASK[i]}:{OMASK[i]+1}]')
    a(f's_waitcnt lgkmcnt({4-i})')
    a(f'buffer_store_dwordx4 {v(vOD+4*i,4)}, v{vOG}, {s(SRD_WS,4)}, s{sOG+i} offen offset:160 sc1')
a('s_mov_b64 exec, -1')
a('s_waitcnt lgkmcnt(0)')
a(f'buffer_store_dwordx4 {v(vOD+16,4)}, v{vX7+1}, {s(SRD_WS,4)}, 0 offen sc1')
if PFP == 2 and FPOS < 0:
    a(FLAG)
stamp(6)
a('s_barrier')
endpgm()

a.label('L_dftx')
a('s_sub_u32 s7, s6, 20')
a('s_mov_b32 s8, 2')
a('s_sub_u32 s6, s2, 160')
a('s_branch L_dft2')
a.label('L_dft')
a('s_lshr_b32 s7, s6, 1')
a('s_and_b32 s8, s6, 1')
a('s_mov_b32 s6, s2')
a.label('L_dft2')
a('s_lshl_b32 s9, s5, 2')
a('s_add_u32 s7, s7, s9')
dX = 2; dWr = 3
dD = 96
a(f'v_lshrrev_b32 v8, 3, v0')
a(f'v_mul_u32_u24 v9, 81920, v8')
a(f'v_and_b32 v10, 7, v0')
a(f'v_lshl_add_u32 v{dX}, v10, 4, v9')
a('s_lshr_b32 s14, s3, 2')
a('s_xor_b32 s14, s14, s8')
a('s_and_b32 s14, s14, 1')
a('s_lshl_b32 s10, s7, 1')
a('s_add_u32 s9, s14, s10')
a('s_lshl_b32 s9, s9, 1')
a('s_add_u32 s62, s9, s4')
a('s_and_b32 s63, s3, 3')
a('s_lshl_b32 s10, s63, 9')
a('s_add_u32 s9, s62, s10')
a('s_mul_i32 s9, s9, 1280')
a('s_lshl_b32 s15, s14, 2')
a('s_add_u32 s15, s15, s63')
a('s_mul_i32 s15, s15, 5120')
a('v_lshlrev_b32 v13, 4, v0')
a('s_mov_b32 m0, s15')
a('s_waitcnt lgkmcnt(0)')
stamp(1)
srd(SRD_X, S_X, 2621440)
srd(SRD_G, S_GW, 1280)
a(f'buffer_load_dwordx4 v13, {s(SRD_G,4)}, 0 offen lds')
a(f'buffer_load_dwordx4 v13, {s(SRD_G,4)}, 0 offen offset:1024 lds')
for l in range(5):
    a(f'buffer_load_dwordx4 {v(dD+8*l,4)}, v{dX}, {s(SRD_X,4)}, s9 offen offset:{128*l}')
    a(f'buffer_load_dwordx4 {v(dD+8*l+4,4)}, v{dX}, {s(SRD_X,4)}, s9 offen offset:{128*l+640}')
if PFE:
    srd(SRD_B, S_WO, 819200)
    a('s_and_b32 s9, s6, 0xf8')
    a('s_add_u32 s9, s9, s3')
    a('s_and_b32 s10, s2, 7')
    a('s_mul_i32 s10, s10, 12')
    a('s_add_u32 s9, s9, s10')
    a('s_cmp_ge_u32 s9, 96')
    a('s_cselect_b32 s10, 96, 0')
    a('s_sub_u32 s9, s9, s10')
    a('s_lshl_b32 s9, s9, 13')
    a('v_lshlrev_b32 v12, 7, v0')
    a(f'buffer_load_dword v1, v12, {s(SRD_B,4)}, s9 offen')
nonce_load()
srd(SRD_WS, S_WS, WS_SIZE)
a(f'v_lshrrev_b32 v11, 4, v0')
a(f'v_xor_b32 v11, v11, v10')
a('s_and_b32 s9, s3, 1')
a('s_lshl_b32 s9, s9, 2')
a('v_xor_b32 v11, s9, v11')
a(f'v_lshlrev_b32 v12, 7, v8')
a(f'v_lshl_add_u32 v12, v11, 4, v12')
a(f'v_add_u32 v{dWr}, s15, v12')
a('s_lshl_b32 s11, s8, 31')
a('s_or_b32 s11, s11, 0x3f803f80')
a('s_mov_b32 s12, 0x05040100')
a('s_mov_b32 s13, 0x07060302')
a('v_mov_b64 v[28:29], -1')
a(f'v_mov_b32 v16, {CNT}')
a('v_mov_b32 v18, 0')
a('v_mov_b32 v19, 4')
a('v_mov_b32 v20, 0')
a('ds_write_b96 v16, v[18:20]')
a('ds_write_b32 v16, v18 offset:16')
a('s_cmp_lt_u32 s3, 4')
a('s_cbranch_scc1 L_fold')
rd = RA(24, 96)
vF = rd.get(4); vZ = rd.get(2); t0 = rd.get(6)
cC = rd.get(8); cP = rd.get(8); cN = rd.get(8)
gc = rd.get(8); gs = rd.get(8); gS = rd.get(2)
hc, hs = 160, 168
pB = [rd.get(8), rd.get(8)]
acc = [[176, 192], [208, 224]]
gu = 240
a(f'v_and_b32 v{t0}, 31, v0')
a(f'v_lshrrev_b32 v{t0+1}, 5, v0')
a(f'v_cvt_f32_u32 v{t0+2}, v{t0}')
a(f'v_cvt_f32_u32 v{t0+4}, v{t0+1}')
a(f'v_mul_f32 v{t0+3}, v{t0+4}, v{t0+2}')
a(f'v_mul_f32 v{t0+3}, {hx(f2u(0.125))}, v{t0+3}')
for i in range(8):
    for e in range(2):
        r_ = 2 * i + e
        kap = 8 * (r_ >> 2) + (r_ & 3)
        a(f'v_fmamk_f32 v{gu+e}, v{t0+2}, {hx(f2u(kap/32.0))}, v{t0+3}')
    for e in range(2):
        a(f'v_cos_f32 v{gu+2+e}, v{gu+e}')
        a(f'v_sin_f32 v{gu+4+e}, v{gu+e}')
    a(f'{cvt} v{cC+i}, v{gu+2}, v{gu+3}')
    a(f'{cvt} v{cN+i}, v{gu+4}, v{gu+5}')
    a(f'v_xor_b32 v{cP+i}, 0x80008000, v{cN+i}')
a('s_cmp_eq_u32 s8, 2')
a('s_cselect_b32 s22, s63, s8')
a('s_cselect_b32 s23, 4, s63')
a('s_cselect_b32 s24, s63, 0')
a('s_mul_i32 s24, s24, 40960')
a('s_lshl_b32 s25, s23, 6')
a('s_add_u32 s25, s25, s22')
a(f'v_lshl_add_u32 v{gu}, v{t0}, 1, s25')
a(f'v_cmp_eq_u32 vcc, 0, v{gu}')
a(f'v_cvt_f32_u32 v{gu}, v{gu}')
a(f'v_mul_f32 v{gu}, {hx(f2u(1/640.0))}, v{gu}')
a(f'v_mul_f32 v{gS+1}, {hx(f2u(16.0))}, v{gu}')
a(f'v_mul_f32 v{gs}, v{t0+4}, v{gu}')
a(f'v_mul_f32 v{gs}, {hx(f2u(8.0))}, v{gs}')
a(f'v_cos_f32 v{gS}, v{gS+1}')
for jj in range(1, 8):
    a(f'v_fmamk_f32 v{gs+jj}, v{gu}, {hx(f2u(float(jj)))}, v{gs}')
for jj in range(8):
    a(f'v_sub_f32 v{hs+jj}, v{gs+jj}, v{gS+1}')
a(f'v_add_f32 v{gS}, v{gS}, v{gS}')
for c_, s_ in ((gc, gs), (hc, hs)):
    for jj in range(8):
        a(f'v_cos_f32 v{c_+jj}, v{s_+jj}')
    for jj in range(8):
        a(f'v_sin_f32_e64 v{s_+jj}, -v{s_+jj}')
    for jj in range(8):
        a(f'v_cndmask_b32_e64 v{s_+jj}, v{s_+jj}, {"1.0" if jj % 2 == 0 else "-1.0"}, vcc')
for jj in range(4):
    a(f'{cvt} v{pB[0]+jj}, v{gc+2*jj}, v{gc+2*jj+1}')
    a(f'{cvt} v{pB[0]+4+jj}, v{gs+2*jj}, v{gs+2*jj+1}')
for r_ in range(176, 240, 2):
    a(f'v_mov_b64 {v(r_,2)}, 0')
a(f'v_lshrrev_b32 v{t0+2}, 3, v{t0}')
a(f'v_mul_u32_u24 v{t0+2}, 5120, v{t0+2}')
a(f'v_lshl_add_u32 v{t0+2}, v10, 7, v{t0+2}')
a(f'v_bfe_u32 v{t0+3}, v0, 1, 3')
a(f'v_xor_b32 v{t0+3}, v{t0+3}, v{t0+1}')
a(f'v_lshl_add_u32 v{t0+2}, v{t0+3}, 4, v{t0+2}')
for q in range(4):
    a(f'v_xor_b32 v{vF+q}, {32*q}, v{t0+2}')
    a(f'v_add_u32 v{vF+q}, s24, v{vF+q}')
a(f'v_mul_u32_u24 v{t0+3}, {4*98304}, v{t0+1}')
a(f'v_lshl_add_u32 v{vZ}, v{t0}, 2, v{t0+3}')
a(f'v_add_u32 v{t0+3}, 640, v{t0+3}')
a(f'v_mov_b32 v{t0+4}, {hx(OOB)}')
a(f'v_cndmask_b32 v{vZ+1}, v{t0+4}, v{t0+3}, vcc')
a(f'v_cndmask_b32_e64 v{t0+5}, -1, 0, vcc')
a.label('L_fold')
stamp(2)
gw = 136
a(f'v_mov_b32 v14, {hx(OOB)}')
a('s_cmp_lg_u32 s14, s8')
a('s_cbranch_scc1 L_fold_go')
a(f'v_lshl_add_u32 v14, v10, 4, s15')
a(f's_waitcnt vmcnt({10+PFE})')
for i in range(10):
    a(f'ds_read_b128 {v(gw+4*i,4)}, v14 offset:{128*i}')
ga = 16
for q in range(4):
    a(f'v_mov_b32 v{ga+q}, 0')
a('s_and_b32 s64, s62, 31')
a('s_lshl_b32 s64, s64, 8')
a('s_lshr_b32 s65, s62, 5')
a('s_lshl_b32 s65, s65, 2')
a('s_add_u32 s64, s64, s65')
a('s_lshl_b32 s65, s63, 6')
a('s_add_u32 s64, s64, s65')
a(f's_add_u32 s64, s64, {G_OFF}')
a('v_lshl_add_u32 v14, v8, 3, s64')
a(f'v_mov_b32 v15, {hx(OOB)}')
a('v_cmp_eq_u32 vcc, 0, v10')
a('v_cndmask_b32 v14, v15, v14, vcc')
a('s_waitcnt lgkmcnt(0)')
a.label('L_fold_go')
t = 248
a(f'v_mov_b32 v15, s11')
for l in range(5):
    a(f's_waitcnt vmcnt({8-2*l+PFE})')
    lo, hi = dD + 8 * l, dD + 8 * l + 4
    o_ = 4 if l % 2 == 0 else 20
    for q in range(4):
        a(f'v_perm_b32 v{t+2*q}, v{hi+q}, v{lo+q}, s12')
        a(f'v_perm_b32 v{t+2*q+1}, v{hi+q}, v{lo+q}, s13')
    for q in range(8):
        a(f'v_dot2_f32_bf16 v{t+q}, v{t+q}, v15, 0')
    for q in range(4):
        a(f'{cvt} v{o_+q}, v{t+2*q}, v{t+2*q+1}')
    a(f'ds_write_b128 v{dWr}, {v(o_,4)} offset:{l*1024}')
a('s_cmp_lg_u32 s8, 2')
a('s_cbranch_scc1 L_fold_done')
a('s_mov_b32 s8, 3')
a('s_mov_b32 s11, 0xbf803f80')
a(f'v_add_u32 v{dWr}, 40960, v{dWr}')
a('s_branch L_fold_go')
a.label('L_fold_done')
a('s_waitcnt lgkmcnt(0)')
stamp(3)
a('s_barrier')
a('s_cmp_lg_u32 s14, s8')
a('s_cbranch_scc1 L_nogate')
for l in range(5):
    for h in range(2):
        for q in range(4):
            a(f'v_dot2c_f32_bf16 v{ga+q}, v{dD+8*l+4*h+q}, v{gw+4*(l+5*h)+q}')
a(f'v_add_f32 v{ga}, v{ga}, v{ga+1}')
a(f'v_add_f32 v{ga+2}, v{ga+2}, v{ga+3}')
a(f'v_add_f32 v{ga}, v{ga}, v{ga+2}')
a(f'v_add_f32_dpp v{ga}, v{ga}, v{ga} quad_perm:[1,0,3,2] row_mask:0xf bank_mask:0xf')
a(f'v_add_f32_dpp v{ga}, v{ga}, v{ga} quad_perm:[2,3,0,1] row_mask:0xf bank_mask:0xf')
a(f'v_add_f32_dpp v{ga}, v{ga}, v{ga} row_half_mirror row_mask:0xf bank_mask:0xf')
a(f'v_mul_f32 v{ga}, {hx(f2u(-math.log2(math.e)))}, v{ga}')
a(f'v_exp_f32 v{ga}, v{ga}')
a(f'v_add_f32 v{ga}, 1.0, v{ga}')
a(f'v_rcp_f32 v9, v{ga}')
a(f'buffer_store_dword v9, v14, {s(SRD_WS,4)}, 0 offen sc1')
a.label('L_nogate')
a('s_cmp_ge_u32 s3, 4')
a('s_cbranch_scc1 L_dc')
if PFW:
    srd(SRD_X, S_WO, 819200)
    a('s_lshr_b32 s60, s6, 3')
    a('s_lshl_b32 s60, s60, 2')
    a('s_add_u32 s60, s60, s3')
    a('s_and_b32 s61, s2, 7')
    a('s_mul_i32 s61, s61, 6')
    a('s_add_u32 s60, s60, s61')
    a('s_cmp_ge_u32 s60, 48')
    a('s_cselect_b32 s61, 48, 0')
    a('s_sub_u32 s60, s60, s61')
    a('s_lshl_b32 s60, s60, 14')
    a('v_lshlrev_b32 v12, 7, v0')
    a(f'buffer_load_dword v180, v12, {s(SRD_X,4)}, s60 offen')
    a('s_add_u32 s60, s60, 8192')
    a(f'buffer_load_dword v181, v12, {s(SRD_X,4)}, s60 offen')
srd(SRD_B, S_WS, 2621440)
a('s_lshl_b32 s60, s6, 2')
a('s_add_u32 s60, s60, s3')
a('s_mul_i32 s60, s60, 7168')
a('v_mov_b64 v[4:5], -1')
a('v_mov_b64 v[6:7], -1')
for i in range(7):
    if i == 4:
        a('s_add_u32 s60, s60, 4096')
    a(f'buffer_store_dwordx4 v[4:7], v13, {s(SRD_B,4)}, s60 offen offset:{(i&3)*1024} sc1')
for pc in range(5):
    a(f's_call_b64 s[60:61], L_p2setup{pc}')
a('s_lshr_b32 s64, s6, 2')
a('s_lshl_b32 s64, s64, 7')
a('s_and_b32 s65, s6, 3')
a('s_lshl_b32 s65, s65, 2')
a('s_add_u32 s64, s64, s65')
a(f's_add_u32 s64, s64, {F_OFF}')
a(f'v_lshl_add_u32 v{kt}, v0, 13, s64')
a(f'v_mov_b32 v{kt+1}, s{S_N}')
a(f'v_mov_b32 v{kt+2}, s{S_N+1}')
a(f'v_and_b32 v{kt+3}, 1, v0')
a(f'v_cmp_eq_u32 vcc, 1, v{kt+3}')
a(f'v_cndmask_b32 v{kt+1}, v{kt+1}, v{kt+2}, vcc')
a(f'v_add_u32 v{kt+1}, 1, v{kt+1}')
my_nonce(sNon)
a('s_waitcnt vmcnt(0)')
stamp(3)
a('s_barrier')
stamp(4)
a('s_cmp_lg_u32 s3, 3')
a('s_cbranch_scc1 L_tail2')
a('s_mov_b64 exec, 0xff')
a(f'buffer_store_dword v{kt+1}, v{kt}, {s(SRD_WS,4)}, 0 offen sc0 sc1')
a('s_mov_b64 exec, -1')
a.label('L_tail2')
wo_chunk(0)
wo_chunk(1)
a('s_branch L_post9')

a.label('L_dc')
a('s_setprio 2')
a('s_cmp_ge_u32 s22, 2')
a('s_cbranch_scc1 L_dc_end')
a('s_lshl_b32 s62, s7, 2')
a('s_add_u32 s62, s62, s4')
a('s_lshl_b32 s62, s62, 1')
a('s_add_u32 s62, s62, s22')
a('s_mul_i32 s62, s62, 768')
a('s_lshl_b32 s61, s23, 7')
a('s_add_u32 s62, s62, s61')
aF = [[96 + 8 * q + 4 * w for w in range(2)] for q in range(4)]


def a_reads(q, wrap):
    return [f'ds_read_b128 {v(aF[q][w],4)}, v{vF+q} offset:{w*20480+(1024 if wrap else 0)}' for w in range(2)]


for q in range(2):
    for x in a_reads(q, False):
        a(x)
for r_ in range(16):
    a(f's_add_u32 s{64+r_}, s62, {Z_OFF + (8*(r_>>2)+(r_&3))*98304}')
a('s_mov_b32 s61, 5')
stamp(4)
a('.p2align 3')
a.label('L_dloop')
for q in range(4):
    cur, nxt = pB[q & 1], pB[(q + 1) & 1]
    for x in a_reads((q + 2) & 3, q >= 2):
        a(x)
    a('s_waitcnt lgkmcnt(4)')
    if q == 0:
        a('s_sub_u32 s61, s61, 1')
    elif q == 1:
        a('s_cmp_lg_u32 s61, 0')
    else:
        a('s_nop 0')
    for g4 in range(4):
        w, tb = g4 >> 1, g4 & 1
        d = v(acc[w][tb], 16)
        a(f'{M32} {d}, {v(aF[q][w],4)}, {v(cur+4*tb,4)}, {d}')
        jj = 2 * g4
        (c0, s0), (c1, s1) = ((gc, gs), (hc, hs)) if q % 2 == 0 else ((hc, hs), (gc, gs))
        for x0, x1 in ((c0, c1), (s0, s1)):
            for e_ in range(2):
                a(f'v_fma_f32 v{x1+jj+e_}, v{gS}, v{x0+jj+e_}, -v{x1+jj+e_}')
        a(f'{cvt} v{nxt+g4}, v{c1+jj}, v{c1+jj+1}')
        a(f'{cvt} v{nxt+4+g4}, v{s1+jj}, v{s1+jj+1}')
for q in range(4):
    a(f'v_add_u32 v{vF+q}, 1024, v{vF+q}')
a('s_cbranch_scc1 L_dloop')
a.check_backedge('L_dloop')
stamp(6)
pk = [[128, 136], [144, 152]]
for w in range(2):
    for tb in range(2):
        for i in range(8):
            a(f'{cvt} v{pk[w][tb]+i}, v{acc[w][tb]+2*i}, v{acc[w][tb]+2*i+1}')


def z_out(Zr, Zi, w, va):
    L = []
    for r_ in range(16):
        L.append(f'{cvt} v{Zr+r_}, v{Zr+r_}, v{Zi+r_}')
        L.append(f'buffer_store_dword v{Zr+r_}, v{va}, {s(SRD_WS,4)}, s{64+r_} offen offset:{w*3072} sc1')
    return L


a('s_cmp_lg_u32 s25, 0')
a('s_cbranch_scc1 L_dc_nospec')
T = []
for w in range(2):
    Zr, Zi = acc[w]
    pb = pk[w][1]
    T += [f'{M32} {v(Zr,16)}, {v(cC,4)}, {v(pb,4)}, 0', f'{M32} {v(Zi,16)}, {v(cP,4)}, {v(pb,4)}, 0',
          f'{M32} {v(Zr,16)}, {v(cC+4,4)}, {v(pb+4,4)}, {v(Zr,16)}', f'{M32} {v(Zi,16)}, {v(cP+4,4)}, {v(pb+4,4)}, {v(Zi,16)}']
    T += [f'v_and_b32 v{pb+i}, v{t0+5}, v{pb+i}' for i in range(8)]
    T += z_out(Zr, Zi, w, vZ + 1)
for x in schedule(T)[0]:
    a(x)
a('s_nop 1')
a.label('L_dc_nospec')
a('s_nop 1')
T = []
for w in range(2):
    Zr, Zi = acc[w]
    pa, pb = pk[w]
    T += [
        f'{M32} {v(Zr,16)}, {v(cC,4)}, {v(pa,4)}, 0',
        f'{M32} {v(Zi,16)}, {v(cP,4)}, {v(pa,4)}, 0',
        f'{M32} {v(Zr,16)}, {v(cC+4,4)}, {v(pa+4,4)}, {v(Zr,16)}',
        f'{M32} {v(Zi,16)}, {v(cP+4,4)}, {v(pa+4,4)}, {v(Zi,16)}',
        f'{M32} {v(Zr,16)}, {v(cN,4)}, {v(pb,4)}, {v(Zr,16)}',
        f'{M32} {v(Zi,16)}, {v(cC,4)}, {v(pb,4)}, {v(Zi,16)}',
        f'{M32} {v(Zr,16)}, {v(cN+4,4)}, {v(pb+4,4)}, {v(Zr,16)}',
        f'{M32} {v(Zi,16)}, {v(cC+4,4)}, {v(pb+4,4)}, {v(Zi,16)}',
    ]
M0_, M1_ = T[:8], T[8:]
for x in M0_ + M1_[:3] + interleave(M1_[3:], z_out(acc[0][0], acc[0][1], 0, vZ), per=6) + z_out(acc[1][0], acc[1][1], 1, vZ):
    a(x)
stamp(9)
a.label('L_dc_end')
a('s_waitcnt vmcnt(0) lgkmcnt(0)')
a('s_barrier')
endpgm()

retry_stubs()
a.label('L_exit')
a.label('L_codeend')
a('s_endpgm')
if PROF:
    a.label('L_prof_end')
    a('s_waitcnt vmcnt(0)')
    a('s_memtime s[76:77]')
    a('s_memrealtime s[78:79]')
    a('s_waitcnt lgkmcnt(0)')
    a(f's_mov_b32 s72, s{S_WS}')
    a(f's_mov_b32 s73, s{S_WS+1}')
    a('s_mov_b32 s74, 0x1000000')
    a('s_mov_b32 s75, 0x20000')
    a('v_mov_b32 v2, s100')
    for i in range(1, NST):
        a(f's_sub_u32 s71, s{80+2*i}, s80')
        a(f's_cmp_eq_u32 s{80+2*i}, 0')
        a(f's_cselect_b32 s71, 0, s71')
        a(f'v_mov_b32 v{2+i}, s71')
    a('s_sub_u32 s76, s76, s80')
    a('v_mov_b32 v12, s76')
    a('v_mov_b32 v13, s78')
    a('s_lshl_b32 s71, s2, 3')
    a('s_add_u32 s71, s71, s3')
    a('s_lshl_b32 s71, s71, 6')
    a(f's_add_u32 s71, s71, {PROF_OFF}')
    a('v_mov_b32 v1, s71')
    a('buffer_store_dwordx4 v[2:5], v1, s[72:75], 0 offen')
    a('buffer_store_dwordx4 v[6:9], v1, s[72:75], 0 offen offset:16')
    a('buffer_store_dwordx4 v[10:13], v1, s[72:75], 0 offen offset:32')
    a('s_endpgm')

hdr = open('cdna_kernels/' + NAME + '.s.ref').read().split('; Override launch')[0]
out = hdr
out += f'; @launch grid=(256,1,1) block=(512,1,1) lds=163840\n'
out += '.amdgcn_target "amdgcn-amd-amdhsa--gfx950"\n.text\n'
if AL8:
    print('align8', a.align8())
out += a.text()
out += f'''.section .rodata,"a"
.p2align 6
.amdhsa_kernel {KN}
  .amdhsa_next_free_vgpr 256
  .amdhsa_next_free_sgpr 102
  .amdhsa_accum_offset 256
  .amdhsa_group_segment_fixed_size 0
  .amdhsa_kernarg_size 96
  .amdhsa_user_sgpr_count 2
  .amdhsa_user_sgpr_kernarg_segment_ptr 1
  .amdhsa_system_sgpr_workgroup_id_x 1
.end_amdhsa_kernel
'''
open(sys.argv[1], 'w').write(out)
print('wrote', sys.argv[1], 'lines', out.count('\n'), 'nops', a.nnop, 'qc vgpr', ra.hi, 'p2 vgpr', rk.hi)
```

```python
import sys, struct, math
from asmlib import *

NAME = 'gated_mix__spectral_fnet__sliding_local_dilated__prompt'
PROF = 0
PFW = 1
SLP_D = 3
SLP_Q = 2
DBG = 0
PK = 1
PFP = 2
FPOS = 60
PFE = 0
CHK1 = 1
AL8 = 1
OSC = 0
DEFER = 1
WAITO = 1
ZPRIO = 0
PFC = 1
SPLIT = 1
NUP = 13
SLP_R = 4
for arg in sys.argv[2:]:
    k_, v_ = arg.split('=')
    globals()[k_] = int(v_)
NB = 7
U = 16 * NB - 7
JMAX = 1024 - 16 * NB
ABYTES = 16 * NB * 128
SL = ABYTES + 64 * 480
O_OFF = 0
Z_OFF = 2621440
G_OFF = Z_OFF + 3145728
F_OFF = G_OFF + 8192
N_OFF = F_OFF + 262144
WS_SIZE = N_OFF + 128
OOB = 0x80000000
WCH = [45056, 65536, 90112, 0, 20480]
ZIMG = 135168
OST = 110592
OROW, OBLK = 176, 2976
OIMG = [135168, 110592, 45056, 65536]
CNT = 163008
SPIN = 400000


def f2u(x):
    return struct.unpack('<I', struct.pack('<f', x))[0]


def hx(x):
    return hex(x & 0xffffffff)


def swap23(k):
    return (k & ~12) | ((k & 4) << 1) | ((k & 8) >> 1)


a = Asm()
S_X, S_WDR, S_WDI, S_WQKV, S_WO = 16, 22, 24, 28, 30
S_GW, S_OUT, S_DBG, S_WS = 32, 34, 36, 38
SRD_X, SRD_B, SRD_C, SRD_WS, SRD_G = 40, 44, 48, 52, 56
S_N = 18
cvt = 'v_cvt_pk_bf16_f32'
mf = 'v_mfma_f32_16x16x32_bf16'
M32 = 'v_mfma_f32_32x32x16_bf16'
KN = NAME + '_kernel'


def srd(d, ptr, size):
    a(f's_mov_b64 s[{d}:{d+1}], s[{ptr}:{ptr+1}]')
    a(f's_mov_b32 s{d+2}, {hx(size)}')
    a(f's_mov_b32 s{d+3}, 0x20000')


PROF_OFF = 0x800000
NST = 10


def stamp(i, mode=None):
    if PROF and ((mode is None and (PROF < 3 or i == 0)) or mode == PROF):
        a(f's_memtime s[{80+2*i}:{81+2*i}]')


def stamps(i, mode):
    return [f's_memtime s[{80+2*i}:{81+2*i}]'] if PROF == mode else []


def endpgm():
    a('s_branch L_prof_end' if PROF else 's_endpgm')


def nonce_load():
    a(f's_add_u32 s20, s{S_WS}, {N_OFF}')
    a(f's_addc_u32 s21, s{S_WS+1}, 0')
    a(f's_load_dwordx2 s[{S_N}:{S_N+1}], s[20:21], 0')


def my_nonce(d):
    a('s_bitcmp0_b32 s2, 0')
    a(f's_cselect_b32 s{d}, s{S_N}, s{S_N+1}')
    a(f's_add_u32 s{d}, s{d}, 1')


a(f'.globl {KN}')
a('.p2align 8')
a(f'.type {KN},@function')
a.label(KN)
if PROF:
    a('s_memrealtime s[100:101]')
    stamp(0)
a('s_load_dwordx16 s[16:31], s[0:1], 0')
a('s_load_dwordx8 s[32:39], s[0:1], 64')
if PFC:
    a('s_getpc_b64 s[4:5]')
    a.label('L_pc')
    a('s_bfe_u32 s6, s2, 0x20003')
    a('s_lshl_b32 s6, s6, 7')
    a('v_lshl_add_u32 v2, v0, 9, s6')
    a('v_cmp_gt_u32 vcc, L_codeend-L_pc-4, v2')
    a('s_and_saveexec_b64 s[6:7], vcc')
    a('s_cbranch_execz L_nopfc')
    a('global_load_dword v255, v2, s[4:5]')
    a.label('L_nopfc')
    a('s_mov_b64 exec, s[6:7]')
a('v_lshrrev_b32 v1, 6, v0')
a('v_and_b32 v0, 63, v0')
a('v_readfirstlane_b32 s3, v1')
if PROF:
    for i in range(1, NST):
        a(f's_mov_b32 s{80+2*i}, 0')
a('s_cmp_ge_u32 s2, 256')
a('s_cbranch_scc1 L_exit')
a('s_and_b32 s4, s2, 1')
a('s_bfe_u32 s5, s2, 0x20001')
a('s_lshr_b32 s6, s2, 3')
a('s_cmp_lt_u32 s6, 8')
a('s_cbranch_scc1 L_dft')
a('s_sub_u32 s6, s6, 8')
a('s_cmp_ge_u32 s6, 20')
a('s_cbranch_scc1 L_dftx')
a('s_lshr_b32 s12, s6, 2')
a('s_and_b32 s7, s5, 1')
a('s_mul_i32 s7, s7, 5')
a('s_add_u32 s7, s7, s12')
a('s_and_b32 s9, s6, 3')
a('s_and_b32 s8, s2, 4')
a('s_add_u32 s8, s8, s9')
a(f's_mul_i32 s10, s7, {U}')
a(f's_min_u32 s10, s10, {JMAX}')
a('s_cmp_ge_u32 s3, 4')
a('s_cbranch_scc1 L_qc')

rk = RA(2, 256)
vO = rk.get(2); vOr = rk.get(2); vGt = rk.get(2); vZa = rk.get(5); vGa = rk.get(1); vOut = rk.get(2); vWa = rk.get(2); kt = rk.get(8)
accD = [rk.get(4) for t in range(5)]
accO = [rk.get(4) for t in range(5)]
NO = 6
oF = [rk.get(4) for i in range(NO)]
NR = 8
bF = [[rk.get(4) for t in range(5)] for k in range(NR)]
vCn = rk.get(2)
WsF = accO[0]
vT = kt
vPd = oF[0]; vW = oF[2]; vZp = vW + 5; vPa = vW + 6; vFl = vW + 10; vPq = vW + 8
vA = bF[7][0]; vB = vA + 4
sOb, sImg, sGo, sT1, sNon, sZok, sRet, sMir = 22, 23, 24, 25, 26, 27, 28, 29

a(f'v_lshrrev_b32 v{vT}, 3, v0')
a('s_mul_i32 s11, s3, 28')
a(f'v_add_u32 v{vT+1}, s11, v{vT}')
a(f'v_mul_u32_u24 v{vT}, 2560, v{vT}')
for i in range(4):
    if i:
        a(f'v_add_u32 v{vT+1}, 7, v{vT+1}')
        a(f'v_add_u32 v{vT}, {7*2560}, v{vT}')
    a(f'v_lshrrev_b32 v{vT+2}, 1, v{vT+1}')
    a(f'v_xor_b32 v{vT+2}, v{vT+2}, v0')
    a(f'v_and_b32 v{vT+2}, 7, v{vT+2}')
    a(f'v_lshl_add_u32 v{vA+i}, v{vT+2}, 4, v{vT}')
a(f'v_mul_u32_u24 v{vT}, 205, v0')
a(f'v_lshrrev_b32 v{vT}, 11, v{vT}')
a(f'v_mul_u32_u24 v{vT+1}, 1120, v{vT}')
a(f'v_lshl_add_u32 v{vB}, v0, 4, v{vT+1}')
a('s_add_u32 s11, s11, s10')
a('s_lshl_b32 s11, s11, 1')
a('s_add_u32 s11, s11, s4')
a('s_mul_i32 s11, s11, 1280')
a('s_mul_i32 s13, s8, 160')
a(f's_mul_i32 s14, s3, {16*3840}')
a('s_add_u32 s13, s13, s14')
a('s_mul_i32 s14, s9, 5')
a('s_add_u32 s14, s14, 1')
a('s_lshr_b32 s14, s14, 1')
a('s_lshl_b32 s12, s12, 1')
a('s_add_u32 s12, s12, s14')
a('s_cmp_ge_u32 s12, 10')
a('s_cselect_b32 s14, 10, 0')
a('s_sub_u32 s12, s12, s14')
a('s_mul_i32 s14, s3, 3584')
a(f's_mul_i32 s15, s3, {8*960}')
a(f's_add_u32 s15, s15, {ABYTES}')
a('s_mov_b32 s62, 0')
stamp(1, 6)
a('s_waitcnt lgkmcnt(0)')
stamp(1)
stamp(2, 6)
srd(SRD_X, S_X, 2621440)
srd(SRD_B, S_WQKV, 2457600)
a('s_call_b64 s[60:61], L_issue')
stamp(3, 6)
if SPLIT:
    a('s_call_b64 s[60:61], L_issue')
    stamp(4, 6)
a('s_branch L_ql_main')
a.label('L_issue')
a('s_lshl_b32 s64, s12, 7')
a('s_mov_b32 exec_hi, 0x00ffffff')
a('s_add_u32 m0, s62, s14')
a('s_add_u32 s64, s64, s11')
for i in range(4):
    if i:
        a('s_add_u32 m0, m0, 896')
    if not (DBG & 2):
        a(f'buffer_load_dwordx4 v{vA+i}, {s(SRD_X,4)}, s64 offen lds')
    if i == 0 and PROF == 6:
        a('s_cmp_lg_u32 s98, 0')
        a('s_cbranch_scc1 L_st9')
        stamp(9, 6)
        a('s_waitcnt lgkmcnt(0)')
        a.label('L_st9')
a('s_mul_i32 s65, s12, 245760')
a('s_mov_b32 exec_hi, 0x0fffffff')
a('s_add_u32 m0, s62, s15')
a('s_add_u32 s65, s65, s13')
for i in range(8):
    if i:
        a('s_add_u32 m0, m0, 960')
        a(f's_add_u32 s64, s65, {swap23(2*i)*3840}')
    if not (DBG & 4):
        a(f'buffer_load_dwordx4 v{vB}, {s(SRD_B,4)}, s{64 if i else 65} offen lds')
a('s_mov_b32 exec_hi, -1')
a('s_add_u32 s12, s12, 1')
a('s_cmp_eq_u32 s12, 10')
a('s_cselect_b32 s12, 0, s12')
a(f's_add_u32 s62, s62, {SL}')
a(f's_cmp_eq_u32 s62, {3*SL}')
a('s_cselect_b32 s62, 0, s62')
a('s_setpc_b64 s[60:61]')


def p2_decode(t1, jreg, mir, zt, jj, tmp1, tmp2):
    a(f's_bfe_u32 s{jreg}, s2, 0x30003')
    a(f's_and_b32 s{t1}, s2, 1')
    a(f's_and_b32 s{tmp1}, s2, 6')
    a(f's_lshr_b32 s{tmp2}, s2, 7')
    a(f's_add_u32 s{tmp1}, s{tmp1}, s{tmp2}')
    a(f's_lshl_b32 s{tmp1}, s{tmp1}, 1')
    a(f's_add_u32 s{t1}, s{t1}, s{tmp1}')
    a(f's_sub_u32 s{tmp1}, 32, s{t1}')
    a(f's_cmp_eq_u32 s{t1}, 0')
    a(f's_cselect_b32 s{tmp1}, 16, s{tmp1}')
    a('s_bitcmp1_b32 s2, 6')
    a(f's_cselect_b32 s{t1}, s{tmp1}, s{t1}')
    if zt is None:
        a(f's_cmp_ge_u32 s{jreg}, 4')
        a(f's_cselect_b32 s{mir}, 1, 0')
        return
    a(f's_sub_u32 s{tmp1}, 32, s{t1}')
    a(f's_and_b32 s{tmp1}, s{tmp1}, 31')
    a(f's_sub_u32 s{tmp2}, 7, s{jreg}')
    a(f's_cmp_ge_u32 s{jreg}, 4')
    a(f's_cselect_b32 s{zt}, s{tmp1}, s{t1}')
    a(f's_cselect_b32 s{jj}, s{tmp2}, s{jreg}')


def check(cur, sn):
    a(f'v_xor_b32 v{cur}, s{sn}, v{cur}')
    a(f'v_xor_b32 v{cur+1}, s{sn}, v{cur+1}')
    a(f'v_or_b32 v{cur}, v{cur}, v{cur+1}')
    a(f'v_cmp_ne_u32 vcc, 0, v{cur}')


def pload(vd, va, soff):
    a(f'buffer_load_dword v{vd}, v{va}, {s(SRD_WS,4)}, s{soff} offen sc1')
    a(f'buffer_load_dword v{vd+1}, v{va+1}, {s(SRD_WS,4)}, s{soff} offen sc1')


def poll(tag, va, vd, soff, sn, scnt, slp):
    pload(vd, va, soff)
    a.label(f'L_poll_{tag}')
    for h in range(2):
        cur, nxt = (vd, vd + 2) if h == 0 else (vd + 2, vd)
        a(f's_sleep {slp}')
        pload(nxt, va, soff)
        a('s_waitcnt vmcnt(2)')
        check(cur, sn)
        a(f's_cbranch_vccz L_polled_{tag}')
    a(f's_sub_u32 s{scnt}, s{scnt}, 1')
    a(f's_cmp_lg_u32 s{scnt}, 0')
    a(f's_cbranch_scc1 L_poll_{tag}')
    a.label(f'L_polled_{tag}')


def wo_addr_body():
    t = vT
    a('s_lshl_b32 s71, s3, 6')
    a(f'v_add_u32 v{t}, s71, v0')
    for i in range(5):
        if i:
            a(f'v_add_u32 v{t}, 256, v{t}')
        a(f'v_mul_u32_u24 v{t+1}, 6554, v{t}')
        a(f'v_lshrrev_b32 v{t+1}, 16, v{t+1}')
        a(f'v_mul_u32_u24 v{t+2}, 10, v{t+1}')
        a(f'v_sub_u32 v{t+2}, v{t}, v{t+2}')
        a(f'v_lshrrev_b32 v{t+3}, 1, v{t+1}')
        a(f'v_xor_b32 v{t+3}, v{t+3}, v{t+1}')
        a(f'v_and_b32 v{t+3}, 4, v{t+3}')
        a(f'v_mul_u32_u24 v{t+3}, 3, v{t+3}')
        a(f'v_xor_b32 v{t+1}, v{t+3}, v{t+1}')
        a(f'v_mul_u32_u24 v{t+1}, 1280, v{t+1}')
        a(f'v_lshl_add_u32 v{vW+i}, v{t+2}, 4, v{t+1}')
    a('s_bfe_u32 s70, s2, 0x30003')
    a('s_mul_i32 s70, s70, 160')
    a('s_lshl_b32 s71, s3, 10')
    srd(SRD_G, S_WO, 819200)


def wo_chunk(ch):
    a(f's_add_u32 s72, s70, {ch*128*1280}')
    for i in range(5):
        a(f's_add_u32 m0, s71, {WCH[ch]+4096*i}')
        a(f'buffer_load_dwordx4 v{vW+i}, {s(SRD_G,4)}, s72 offen lds')


a.label('L_p2setup0')
wo_addr_body()
a('s_setpc_b64 s[60:61]')
a.label('L_p2setup1')
srd(SRD_WS, S_WS, WS_SIZE)
srd(SRD_C, S_OUT, 2621440)
p2_decode(sT1, 65, None, 66, 67, 68, 69)
a(f's_cselect_b32 s{sMir}, 1, 0')
a('s_mul_i32 s78, s66, 98304')
a('s_mul_i32 s67, s67, 320')
a('s_add_u32 s78, s78, s67')
a('s_mul_i32 s67, s3, 4608')
a('s_add_u32 s78, s78, s67')
a(f's_add_u32 s78, s78, {Z_OFF}')
a('s_and_b32 s79, s2, 7')
a('s_lshl_b32 s79, s79, 15')
a(f's_add_u32 s79, s79, {F_OFF}')
a(f'v_mul_u32_u24 v{vT}, 49, v0')
a(f'v_lshrrev_b32 v{vT}, 10, v{vT}')
a(f'v_mul_u32_u24 v{vT}, {1536-336}, v{vT}')
a(f'v_lshl_add_u32 v{vZp}, v0, 4, v{vT}')
a(f'v_lshlrev_b32 v{vPa}, 7, v0')
a(f'v_and_b32 v{vPa+1}, {31*128}, v{vPa}')
a(f'v_add_u32 v{vPa+1}, 8192, v{vPa+1}')
a(f'v_add_u32 v{vPq}, 16384, v{vPa}')
a(f'v_and_b32 v{vPq+1}, {15*128}, v{vPa}')
a(f'v_add_u32 v{vPq+1}, {16384+8192}, v{vPq+1}')
a(f'v_mov_b32 v{vCn}, {CNT}')
a(f'v_mov_b32 v{vCn+1}, 1')
a('s_setpc_b64 s[60:61]')
a.label('L_p2setup2')
a(f'v_and_b32 v{kt}, 15, v0')
a(f'v_lshrrev_b32 v{kt+1}, 4, v0')
a(f'v_lshrrev_b32 v{kt+2}, 5, v0')
a(f'v_bfe_u32 v{kt+3}, v0, 2, 3')
a(f'v_lshl_add_u32 v{kt+3}, v{kt+2}, 4, v{kt+3}')
a(f'v_mul_u32_u24 v{kt+3}, 160, v{kt+3}')
a(f'v_and_b32 v{kt+4}, 3, v0')
a(f'v_lshl_add_u32 v{vWa}, v{kt+4}, 3, v{kt+3}')
a(f'v_add_u32 v{vWa+1}, {WCH[1]}, v{vWa}')
a(f'v_lshlrev_b32 v{vO}, 4, v0')
a(f'v_mul_u32_u24 v{kt+3}, {327680-2560}, v{kt+2}')
a(f'v_add_u32 v{vO+1}, v{vO}, v{kt+3}')
a(f's_mov_b32 s{sImg}, {OIMG[0]}')
for i in range(1, 4):
    a(f's_cmp_eq_u32 s3, {i}')
    a(f's_cselect_b32 s{sImg}, {OIMG[i]}, s{sImg}')
a(f'v_mul_u32_u24 v{kt+3}, 160, v{kt}')
a(f'v_lshl_add_u32 v{kt+3}, v{kt+1}, 4, v{kt+3}')
a(f'v_add_u32 v{vOr}, s{sImg}, v{kt+3}')
a(f'v_mul_u32_u24 v{kt+3}, 2400, v{kt+2}')
a(f'v_add_u32 v{vOr+1}, v{vOr}, v{kt+3}')
a(f's_lshl_b32 s{sOb}, s{sT1}, 2')
a(f's_add_u32 s{sOb}, s{sOb}, s3')
a(f's_lshl_b32 s{sGo}, s{sOb}, 6')
a(f's_add_u32 s{sGo}, s{sGo}, {G_OFF}')
a(f's_mul_i32 s{sOb}, s{sOb}, 2560')
a(f'v_lshlrev_b32 v{vGa}, 2, v{kt}')
a('s_lshl_b32 s66, s3, 9')
a(f's_add_u32 s66, s66, s{sT1}')
a(f'v_lshl_add_u32 v{kt+2}, v{kt}, 5, s66')
a(f'v_mul_u32_u24 v{vOut}, 1280, v{kt+2}')
a(f'v_add_u32 v{vOut}, s70, v{vOut}')
a(f'v_lshl_add_u32 v{vOut+1}, v{kt+1}, 3, v{vOut}')
a(f'v_and_b32 v{kt+3}, 1, v{kt+1}')
a(f'v_lshl_add_u32 v{vOut}, v{kt+3}, 5, v{vOut}')
a(f'v_and_b32 v{kt+3}, 2, v{kt+1}')
a(f'v_lshl_add_u32 v{vOut}, v{kt+3}, 3, v{vOut}')
a(f'v_cvt_f32_u32 v{kt+2}, v{kt+2}')
a(f's_lshl_b32 s66, s{sMir}, 31')
a(f'v_xor_b32 v{kt+2}, s66, v{kt+2}')
a(f'v_lshrrev_b32 v{kt+3}, 5, v0')
a(f'v_bfe_u32 v{kt+4}, v0, 4, 1')
a(f'v_lshl_add_u32 v{kt+3}, v{kt+4}, 1, v{kt+3}')
a(f'v_cvt_f32_u32 v{kt+3}, v{kt+3}')
a(f'v_mul_f32 v{kt+3}, v{kt+3}, v{kt+2}')
a(f'v_mul_f32 v{kt+3}, {hx(f2u(4/2048.0))}, v{kt+3}')
for i in range(4):
    if i in (0, 2):
        a('s_setpc_b64 s[60:61]')
        a.label(f'L_p2setup{3+i//2}')
    for jr in range(0, 4, 2):
        for e in range(2):
            a(f'v_fmamk_f32 v{kt+4+e}, v{kt+2}, {hx(f2u((16*i+jr//2+2*e)/2048.0))}, v{kt+3}')
        for e in range(2):
            a(f'v_cos_f32 v{kt+6+e}, v{kt+4+e}')
            a(f'v_sin_f32 v{kt+4+e}, v{kt+4+e}')
        for e in range(2):
            a(f'{cvt} v{WsF+4*i+jr+e}, v{kt+6+e}, v{kt+4+e}')
a(f's_cmp_eq_u32 s{sMir}, 0')
a('s_cselect_b32 s66, 0, 80')
a('s_cselect_b32 s67, 1, -1')
a('s_cselect_b32 s68, 64, 0xffffffc0')
a(f'v_bfe_u32 v{kt+4}, v0, 4, 1')
a(f'v_lshrrev_b32 v{kt+3}, 5, v0')
a(f'v_lshl_add_u32 v{kt+4}, v{kt+4}, 2, v{kt+3}')
a(f'v_mul_u32_u24 v{kt+4}, 672, v{kt+4}')
a(f'v_add_u32 v{kt+4}, {ZIMG}, v{kt+4}')
a(f'v_mul_lo_u32 v{kt+2}, v{kt}, s67')
a(f'v_add_u32 v{kt+2}, s66, v{kt+2}')
a(f'v_and_b32 v{kt+3}, 1, v{kt+2}')
a(f'v_mul_u32_u24 v{kt+3}, 1344, v{kt+3}')
a(f'v_lshrrev_b32 v{kt+2}, 1, v{kt+2}')
a(f'v_lshl_add_u32 v{kt+2}, v{kt+2}, 3, v{kt+3}')
a(f'v_add_u32 v{vZa}, v{kt+2}, v{kt+4}')
for T in range(1, 5):
    a(f'v_add_u32 v{vZa+T}, s68, v{vZa+T-1}')
a(f's_mov_b32 s{sZok}, s3')
a(f's_mov_b32 s{sRet}, 20000')
a('s_setpc_b64 s[60:61]')

def _unused(ch):
    a(f's_add_u32 s72, s70, {ch*128*1280}')
    for i in range(5):
        a(f's_add_u32 m0, s71, {WCH[ch]+4096*i}')
        a(f'buffer_load_dwordx4 v{vW+i}, {s(SRD_G,4)}, s72 offen lds')


def spin(tag, off, n, slp=1):
    a(f's_branch L_spin1_{tag}')
    a.label(f'L_spin_{tag}')
    a(f's_sleep {slp}')
    a.label(f'L_spin1_{tag}')
    a(f'ds_read_b32 v{kt}, v{vCn} offset:{off}')
    a('s_waitcnt lgkmcnt(0)')
    a(f'v_readfirstlane_b32 s64, v{kt}')
    a(f's_cmp_ge_u32 s64, {n}')
    a(f's_cbranch_scc0 L_spin_{tag}')


def lds_inc(off):
    a('s_mov_b64 exec, 1')
    a(f'ds_add_u32 v{vCn}, v{vCn+1} offset:{off}')
    a('s_mov_b64 exec, -1')


def w_reads(ks):
    ch, kb = ks >> 2, ks & 3
    ad, base = (vWa + 1, WCH[ch] - WCH[1]) if ch in (1, 2) else (vWa, WCH[ch])
    return [f'ds_read_b64_tr_b16 {v(bF[ks%NR][T]+2*bs,2)}, v{ad} offset:{base+kb*5120+bs*1280+32*T}'
            for T in range(5) for bs in range(2)]


def preflag():
    a('s_cmp_lg_u32 s3, 3')
    a('s_cbranch_scc1 L_nopre')
    a(f'v_mov_b32 v{kt}, s{sNon}')
    a('s_mov_b64 exec, 15')
    a(f'buffer_store_dword v{kt}, v{vFl}, {s(SRD_WS,4)}, 0 offen sc0 sc1')
    a('s_mov_b64 exec, -1')
    a.label('L_nopre')


a.label('L_ql_main')
toks = [('I', 0)] + ([] if SPLIT else [('S', 0)]) + [('I', 1), ('W', 0)]
for i in range(1, 9):
    toks += [('J' if SPLIT and i <= 5 else 'I', i + 1)] + ([('P', 0)] if i == 8 else []) + [('W', i)]
toks += [('C', 0), ('C', 1), ('W', 9)]
seqv = []
for tk, k in toks:
    if tk == 'I':
        if k > SPLIT:
            a('s_call_b64 s[60:61], L_issue')
        seqv += [('I', k)] * ((0 if DBG & 2 else 4) + (0 if DBG & 4 else 8))
        if k == 9:
            stamp(3)
    elif tk == 'J':
        pc = k - 2
        a('s_cmp_lt_u32 s3, 2')
        a(f's_cbranch_scc1 L_j{k}')
        a(f's_call_b64 s[60:61], L_p2setup{pc}')
        a('s_call_b64 s[60:61], L_issue')
        a(f's_branch L_jj{k}')
        a.label(f'L_j{k}')
        a('s_call_b64 s[60:61], L_issue')
        a(f's_call_b64 s[60:61], L_p2setup{pc}')
        a.label(f'L_jj{k}')
        seqv += [('I', k)] * 12
        if pc == 0:
            nonce_load()
        if pc == 1:
            a('s_cmp_eq_u32 s3, 0')
            a(f's_cselect_b32 s64, 0, {hx(OOB)}')
            a(f'v_or_b32 v{vPa}, s64, v{vPa}'); a(f'v_or_b32 v{vPa+1}, s64, v{vPa+1}')
    elif tk == 'C':
        wo_chunk(k)
        seqv += [('C', k)] * 5
    elif tk == 'P':
        pload(vPd, vPa, 79)
        seqv += [('P', 0)] * 2
    elif tk == 'S':
        nonce_load()
        for pc in range(5):
            a(f's_call_b64 s[60:61], L_p2setup{pc}')
        a('s_cmp_eq_u32 s3, 0')
        a(f's_cselect_b32 s64, 0, {hx(OOB)}')
        a(f'v_or_b32 v{vPa}, s64, v{vPa}'); a(f'v_or_b32 v{vPa+1}, s64, v{vPa+1}')
    elif tk == 'W':
        last = max([n for n, t_ in enumerate(seqv) if t_ == ('I', k) or (k == 9 and t_ == ('P', 0))] + [-1])
        if k == 7:
            a('s_waitcnt lgkmcnt(0)')
            my_nonce(sNon)
        a(f's_waitcnt vmcnt({len(seqv)-1-last})')
        if k == 0:
            stamp(2)
            stamp(5, 6)
        a('s_barrier')
        if k < 3:
            stamp(6 + k, 6)
        if k == 9:
            stamp(4)
        if k < 9:
            stamp(k + 1, 3)
stamp(1, 4)
a('s_setprio 3')
a('s_cmp_lg_u32 s3, 0')
a('s_cbranch_scc1 L_post9')
check(vPd, sNon)
a('s_cbranch_vccz L_polled_d')
a.label('L_post9')
a('s_cmp_eq_u32 s3, 0')
a('s_cbranch_scc1 L_post9z')
spin('f', 16, 1)
a('s_branch L_post9b')
a.label('L_post9z')
a(f's_mov_b32 s66, {SPIN}')
poll('d', vPa, vPd, 79, sNon, 66, SLP_D)
a('s_mov_b64 exec, 1')
a(f'ds_add_u32 v{vCn}, v{vCn+1} offset:16')
a(f'ds_add_u32 v{vCn}, v{vCn+1} offset:12')
a('s_mov_b64 exec, -1')
a.label('L_post9b')
stamp(2, 4)
a(f'buffer_load_dword v{vGt}, v{vGa}, {s(SRD_WS,4)}, s{sGo} offen sc1')
a('s_mul_i32 s64, s3, 1008')
a(f's_add_u32 m0, s64, {ZIMG}')
a('s_mov_b32 exec_hi, 0x7fffffff')
for i in range(5):
    a(f'buffer_load_dwordx4 v{vZp}, {s(SRD_WS,4)}, s78 offen sc1 lds')
    a('s_add_u32 m0, m0, 4032')
    a('s_add_u32 s78, s78, 18432')
a('s_cmp_ge_u32 s3, 2')
a('s_cbranch_scc1 L_zret')
a(f'buffer_load_dwordx4 v{vZp}, {s(SRD_WS,4)}, s78 offen sc1 lds')
a.label('L_zret')
a('s_mov_b32 exec_hi, -1')
wo_chunk(2)
stamp(3, 4)
spin('c', 4, 4, 2)
stamp(4, 4)
wo_chunk(3)
wo_chunk(4)
stamp(5, 4)
a('s_waitcnt vmcnt(0)')
lds_inc(0)
stamp(6, 4)
if DEFER:
    spin('o1', 12, 5, 2)
a('s_setprio 0')
stamp(7, 4)
spin('a', 0, 4)
stamp(8, 4)
stamp(5, 1)
zr = [[f'ds_read_b64 {v(bF[st][T]+2*j2,2)}, v{vZa+T} offset:{(16*st+j2)*336}' for T in range(5) for j2 in range(2)] for st in range(4)]
for x in zr[0] + zr[1] + zr[2] + zr[3] + w_reads(4):
    a(x)
a('s_waitcnt lgkmcnt(10)')
for st in range(4):
    Mz = []
    for T in range(5):
        d = v(accD[T], 4)
        Mz.append(f'{mf} {d}, {v(bF[st][T],4)}, {v(WsF+4*st,4)}, {"0" if st == 0 else d}')
    for x in interleave(Mz, w_reads(st), per=2):
        a(x)
for ks in range(5, 8):
    for x in w_reads(ks):
        a(x)
stamp(9, 4)
if PFP == 1:
    preflag()
a('s_waitcnt vmcnt(0)')
for T in range(5):
    for r_ in range(4):
        a(f'v_mul_f32 v{accD[T]+r_}, v{accD[T]+r_}, v{vGt}')
a(f'v_sub_f32 v{vGt}, 1.0, v{vGt}')
a('s_waitcnt lgkmcnt(0)')
a('s_setprio 3')
stamp(6, 1)
a('s_cmp_lg_u32 s3, 1')
a('s_cbranch_scc1 L_b13')
if WAITO:
    spin('o2', 12, 9)
a(f's_mov_b32 s66, {SPIN}')
poll('q', vPq, vPd, 79, sNon, 66, SLP_Q)
a('s_cmp_ge_u32 s2, 2')
a('s_cbranch_scc1 L_b13')
a('s_lshl_b32 s65, s2, 2')
a(f's_add_u32 s65, s65, {N_OFF}')
a(f'v_mov_b32 v{kt}, s65')
a(f'v_mov_b32 v{kt+1}, s{sNon}')
a('s_mov_b64 exec, 1')
a(f'buffer_store_dword v{kt+1}, v{kt}, {s(SRD_WS,4)}, 0 offen')
a('s_mov_b64 exec, -1')
a.label('L_b13')
stamp(7, 1)
a('s_barrier')
stamp(8, 1)
stamp(1, 5)


def odma(i, first=False):
    hq2, r5 = divmod(i, 5)
    off = hq2 * 655360 + r5 * 1024 + (327680 - 2560 if r5 >= 3 else 0)
    return [f's_add_u32 m0, s{sImg}, {1024*i}', f's_add_u32 s64, s{sOb}, {off}',
            f'buffer_load_dwordx4 v{vO+(r5==2)}, {s(SRD_WS,4)}, s64 offen sc1 lds']


for i in range(NUP):
    for x in odma(i):
        a(x)
nissued = NUP
stamp(2, 5)


def o_read(ks):
    hq2, r5 = divmod(ks, 5)
    off = hq2 * 5120 + r5 * 64 + (2400 if r5 >= 3 else 0)
    return f'ds_read_b128 {v(oF[ks%NO],4)}, v{vOr+(r5==2)} offset:{off}'


def o_need(ks):
    hq2, r5 = divmod(ks, 5)
    return hq2 * 5 + (3 if r5 < 2 else 5)


def o_check(f):
    o = oF[f % NO]
    if CHK1:
        return [f'v_cmp_eq_u32 vcc, -1, v{o+3}']
    return [f'v_max3_u32 v{kt}, v{o}, v{o+1}, v{o+2}', f'v_max_u32 v{kt}, v{kt}, v{o+3}', f'v_cmp_eq_u32 vcc, -1, v{kt}']


OD = 3
lds_seq = []
vm_have = -1


def emit_o(ks):
    global vm_have
    n = o_need(ks)
    assert n <= nissued
    if n > vm_have:
        a(f's_waitcnt vmcnt({nissued-n})')
        vm_have = n
    a(o_read(ks))
    lds_seq.append(('o', ks))


for ks in range(OD):
    emit_o(ks)
a(f's_waitcnt lgkmcnt({OD-1})')
for x in o_check(0):
    a(x)
a('s_cbranch_vccnz L_retry0')
a.label('L_back0')
stamp(3, 5)
wq = [(ks, n, x) for ks in range(NR, 20) for n, x in enumerate(w_reads(ks))]
for ks in range(20):
    if ks + OD < 20:
        emit_o(ks + OD)
    need_ = [n for n, t_ in enumerate(lds_seq) if t_ in (('o', ks), ('o', ks + 1), ('w', ks))]
    assert not any(q[0] == ks for q in wq)
    a(f's_waitcnt lgkmcnt({min(15, len(lds_seq)-1-max(need_))})')
    C = o_check(ks + 1) if ks < 19 else []
    quota = 7
    for T in range(5):
        d = v(accO[T], 4)
        a(f'{mf} {d}, {v(bF[ks%NR][T],4)}, {v(oF[ks%NO],4)}, {"0" if ks == 0 else d}')
        k_here = 2 if T in (1, 3) else 1
        while k_here and quota and wq and (wq[0][0] - NR < ks or (wq[0][0] - NR == ks and wq[0][1] // 2 <= T)):
            q = wq.pop(0)
            a(q[2])
            lds_seq.append(('w', q[0]))
            k_here -= 1
            quota -= 1
        for x in C[T:T+1]:
            a(x)
        if T in (2, 4) and nissued < 20:
            for x in odma(nissued):
                a(x)
            nissued += 1
    if ks < 19:
        a(f's_cbranch_vccnz L_retry{ks+1}')
        a.label(f'L_back{ks+1}')
    if ks in (1, 4, 9, 14, 19):
        stamp({1:4, 4:5, 9:6, 14:7, 19:8}[ks], 5)
stamp(9, 1)
P = bF[0][0]
F = []
for T in range(5):
    for r_ in range(4):
        F.append(f'v_fma_f32 v{accD[T]+r_}, v{accO[T]+r_}, v{vGt}, v{accD[T]+r_}')
    F.append(f'{cvt} v{P+2*T}, v{accD[T]}, v{accD[T]+1}')
    F.append(f'{cvt} v{P+2*T+1}, v{accD[T]+2}, v{accD[T]+3}')
    if T in (1, 3):
        F.append(f'v_permlane16_swap_b32 v{P+2*T-2}, v{P+2*T}')
        F.append(f'v_permlane16_swap_b32 v{P+2*T-1}, v{P+2*T+1}')
        F.append(f'buffer_store_dwordx4 {v(P+2*T-2,4)}, v{vOut}, {s(SRD_C,4)}, 0 offen offset:{32*(T-1)}' + ['', ' sc1', ' nt', ' sc0 sc1'][OSC])
F.append(f'buffer_store_dwordx2 {v(P+8,2)}, v{vOut+1}, {s(SRD_C,4)}, 0 offen offset:128' + ['', ' sc1', ' nt', ' sc0 sc1'][OSC])
for x in F:
    a(x)
if PROF == 1:
    a(f's_sub_u32 s82, s80, s{sRet}')
    a('s_add_u32 s82, s82, 20000')
endpgm()

for i in range(20):
    hq2, r5 = divmod(i, 5)
    off = hq2 * 655360 + r5 * 1024 + (327680 - 2560 if r5 >= 3 else 0)
    if r5 == 0:
        a.label(f'L_odma{hq2}')
    a(f's_add_u32 s64, s{sOb}, {off}')
    a(f'buffer_load_dwordx4 v{vO+(r5==2)}, {s(SRD_WS,4)}, s64 offen sc1 lds')
    a(f's_add_u32 m0, m0, 1024')
a('s_setpc_b64 s[60:61]')


def retry_stubs():
    for f in range(20):
        hq2 = f // 5
        a.label(f'L_retry{f}')
        a(f's_sub_u32 s{sRet}, s{sRet}, 1')
        a(f's_cbranch_scc1 L_giveup{f}')
        a(f's_sleep {SLP_R}')
        a(f's_add_u32 m0, s{sImg}, {hq2*5120}')
        a(f's_call_b64 s[60:61], L_odma{hq2}')
        a(f's_waitcnt vmcnt({20-o_need(min(19, f+OD-1))})')
        for k in range(f, min(20, f + OD)):
            a(o_read(k))
        a('s_waitcnt lgkmcnt(0)')
        for x in o_check(f):
            a(x)
        a(f's_cbranch_vccnz L_retry{f}')
        a(f's_branch L_back{f}')
        a.label(f'L_giveup{f}')
        a(f's_mov_b32 s{sRet}, 0')
        a(f's_branch L_back{f}')


a.label('L_qc')
a('s_setprio 2')
ra = RA(2, 256)
vXb = ra.get(2); vWb = ra.get(2)
vXc = ra.get(2); vWc = ra.get(2)
biasC = ra.get(4); biasP = ra.get(4); mCur = ra.get(2); mLo = ra.get(1); vOm = ra.get(1); vOr2 = ra.get(1)
Ec = ra.get(4); Cone = ra.get(4)
vOL = ra.get(1); vOG = ra.get(1); vX7 = ra.get(2); vC2 = ra.get(2); vFc = ra.get(2)
accQ = [ra.get(6) for b in range(NB)]
accK = [ra.get(4) for b in range(NB)]
accV = [ra.get(4) for b in range(NB)]
accR = [ra.get(4) for b in range(NB)]
fX = [[ra.get(4) for b in range(NB)] for k in range(2)]
fW = [[ra.get(4) for t in range(4)] for k in range(2)]
Vp = fW[0][0]; VRp = fW[1][0]
tmp = fX[1][0]
m_, g_ = tmp, tmp + 1
a('s_sub_u32 s9, s3, 4')
a('s_mul_i32 s12, s9, 40')
a(f'v_and_b32 v{m_}, 15, v0')
a(f'v_lshrrev_b32 v{g_}, 4, v0')
a(f'v_lshrrev_b32 v{tmp+2}, 1, v{m_}')
a(f'v_xor_b32 v{tmp+2}, v{tmp+2}, v{g_}')
a(f'v_lshlrev_b32 v{tmp+2}, 4, v{tmp+2}')
a(f'v_lshl_add_u32 v{vXb}, v{m_}, 7, v{tmp+2}')
a(f'v_xor_b32 v{vXb+1}, 64, v{vXb}')
a(f'v_lshrrev_b32 v{tmp+2}, 5, v0')
a(f'v_bfe_u32 v{tmp+3}, v0, 2, 3')
a(f'v_lshl_add_u32 v{tmp+2}, v{tmp+2}, 4, v{tmp+3}')
a(f'v_mul_u32_u24 v{tmp+2}, 480, v{tmp+2}')
a(f's_add_u32 s13, s12, {ABYTES}')
a(f'v_add_u32 v{tmp+2}, s13, v{tmp+2}')
a(f'v_and_b32 v{tmp+3}, 3, v0')
a(f'v_lshl_add_u32 v{vWb}, v{tmp+3}, 3, v{tmp+2}')
a(f'v_cmp_eq_u32 vcc, 1, v{tmp+3}')
a(f'v_min_u32 v{tmp+3}, 2, v{tmp+3}')
a(f'v_mul_u32_u24 v{tmp+3}, 160, v{tmp+3}')
a(f'v_add3_u32 v{vWb+1}, v{tmp+2}, v{tmp+3}, 32')
for r_ in range(4):
    a(f'v_cndmask_b32_e64 v{Cone+r_}, 0, 1.0, vcc')
for r_ in range(accQ[0], accR[-1] + 4, 2):
    a(f'v_mov_b64 {v(r_,2)}, 0')
a(f'v_mov_b32 v{vC2}, {CNT}')
a(f'v_mov_b32 v{vC2+1}, 1')
a(f'ds_write_b128 v{vC2}, {v(accK[0],4)}')
a(f'ds_write_b32 v{vC2}, v{accK[0]} offset:16')
NEG = hx(f2u(-1e30))
a(f'v_lshlrev_b32 v{tmp+2}, 2, v{g_}')
a(f'v_sub_u32 v{tmp+2}, v{m_}, v{tmp+2}')
a(f'v_mov_b32 v{tmp+4}, {NEG}')
for r_ in range(4):
    a(f'v_subrev_u32 v{tmp+3}, {r_}, v{tmp+2}')
    a(f'v_cmp_gt_u32 vcc, 8, v{tmp+3}')
    a(f'v_add_u32 v{tmp+3}, {16-r_}, v{tmp+2}')
    a(f'v_cmp_gt_u32 s[64:65], 8, v{tmp+3}')
    a(f'v_cndmask_b32_e64 v{biasC+r_}, v{tmp+4}, 0, vcc')
    a(f'v_cndmask_b32_e64 v{biasP+r_}, v{tmp+4}, 0, s[64:65]')
a(f'v_mov_b32 v{tmp+4}, 0xffff')
a(f'v_mov_b32 v{tmp+5}, 0xffff0000')
for d in range(2):
    a(f'v_cmp_le_i32 vcc, {2*d}, v{tmp+2}')
    a(f'v_cmp_le_i32 s[64:65], {2*d+1}, v{tmp+2}')
    a(f'v_cndmask_b32 v{mCur+d}, 0, v{tmp+4}, vcc')
    a(f'v_cndmask_b32_e64 v{tmp+3}, 0, v{tmp+5}, s[64:65]')
    a(f'v_or_b32 v{mCur+d}, v{mCur+d}, v{tmp+3}')
a(f'v_cmp_gt_u32 vcc, 32, v0')
a(f'v_mul_u32_u24 v{tmp+2}, {OROW}, v{m_}')
a(f's_add_u32 s13, s12, {OST}')
a(f'v_cndmask_b32_e64 v{mLo}, 0, -1, vcc')
a(f'v_add_u32 v{tmp+2}, s13, v{tmp+2}')
a(f'v_lshl_add_u32 v{vOm}, v{g_}, 3, v{tmp+2}')
a(f'v_lshl_add_u32 v{vOr2}, v{g_}, 1, v{tmp+2}')
a(f'v_mov_b64 {v(Ec,2)}, 0')
a(f'v_mov_b64 {v(Ec+2,2)}, 0')
a('s_mov_b32 exec_lo, 0')
a('s_mov_b32 exec_hi, 0x01000001')
a(f'v_mov_b32 v{Ec+2}, 0x3f80')
a('s_mov_b32 exec_hi, 0x10000010')
a(f'v_mov_b32 v{Ec+2}, 0x3f800000')
a('s_mov_b64 exec, -1')
a(f'v_mov_b64 {v(vXc,2)}, {v(vXb,2)}')
a(f'v_mov_b64 {v(vWc,2)}, {v(vWb,2)}')
sOG = 40
OMASK = [44, 46, 48, 50]


def o_store_setup():
    t = tmp
    a(f's_mul_i32 s66, s7, {U}')
    a('s_cmp_eq_u32 s7, 0')
    a('s_cselect_b32 s68, 0, 7')
    a('s_add_u32 s66, s66, s68')
    a('s_sub_u32 s66, s66, s10')
    a('s_lshl_b32 s67, s9, 2')
    a('s_sub_u32 s66, s66, s67')
    a('s_add_u32 s68, s67, s10')
    a('s_lshl_b32 s69, s8, 5')
    a('s_add_u32 s69, s69, s4')
    a('s_mul_i32 s69, s69, 10240')
    a(f'v_mul_u32_u24 v{t}, 205, v0')
    a(f'v_lshrrev_b32 v{t}, 11, v{t}')
    a(f'v_lshlrev_b32 v{vOG}, 4, v0')
    a(f'v_mul_u32_u24 v{t+1}, {OBLK-160}, v{t}')
    a(f's_mul_i32 s67, s67, {OROW}')
    a(f's_add_u32 s67, s67, {OST}')
    a(f'v_add3_u32 v{vOL}, v{t+1}, v{vOG}, s67')
    a(f'v_lshl_add_u32 v{t+1}, v{t}, 4, 16')
    a(f'v_cmp_gt_u32 vcc, 60, v0')
    a(f'v_cndmask_b32 v{t+1}, -16, v{t+1}, vcc')
    for i in range(4):
        a(f's_add_u32 s72, s68, {i}')
        a(f's_and_b32 s73, s72, 15')
        a(f's_mul_i32 s73, s73, 20480')
        a(f's_lshr_b32 s72, s72, 4')
        a(f's_mul_i32 s72, s72, 160')
        a(f's_add_u32 s72, s72, s73')
        a(f's_add_u32 s{sOG+i}, s72, s69')
        a(f's_sub_u32 s72, s66, {i}')
        a(f'v_cmp_le_i32 s[{OMASK[i]}:{OMASK[i]+1}], s72, v{t+1}')
    a(f'v_mul_u32_u24 v{t+1}, {OROW-160}, v{t}')
    a(f'v_add3_u32 v{vX7}, v{t+1}, v{vOG}, s67')
    a(f'v_add_u32 v{t+2}, s68, v{t}')
    a(f'v_and_b32 v{t+3}, 15, v{t+2}')
    a(f'v_mul_u32_u24 v{t+3}, 20480, v{t+3}')
    a(f'v_lshrrev_b32 v{t+2}, 4, v{t+2}')
    a(f'v_sub_u32 v{t+2}, v{t+2}, v{t}')
    a(f'v_mul_i32_i24 v{t+2}, 160, v{t+2}')
    a(f'v_add3_u32 v{t+2}, v{t+2}, v{t+3}, v{vOG}')
    a(f'v_add_u32 v{t+2}, s69, v{t+2}')
    a(f'v_mov_b32 v{t+1}, {hx(OOB)}')
    a(f'v_cmp_le_i32 vcc, s66, v{t}')
    a(f'v_cndmask_b32 v{t+2}, v{t+1}, v{t+2}, vcc')
    a(f'v_cmp_gt_u32 vcc, 40, v0')
    a(f'v_cndmask_b32 v{vX7+1}, v{t+1}, v{t+2}, vcc')


o_store_setup()
a('s_mul_i32 s64, s5, 20')
a('s_add_u32 s64, s64, s6')
a('s_lshl_b32 s64, s64, 7')
a('s_lshl_b32 s65, s4, 15')
a('s_add_u32 s64, s64, s65')
a(f's_add_u32 s64, s64, {F_OFF+16384}')
a(f'v_lshl_add_u32 v{vFc}, v0, 16, s64')
a('s_cmp_eq_u32 s3, 7')
a('s_cselect_b32 s64, 4, 0')
a(f'v_mov_b32 v{tmp}, {hx(OOB)}')
a(f'v_cmp_gt_u32 vcc, s64, v0')
a(f'v_cndmask_b32 v{vFc}, v{tmp}, v{vFc}, vcc')
CS = 20 ** -0.5 * math.log2(math.e)
a(f's_mov_b32 s66, {hx(f2u(CS))}')
a(f's_mov_b32 s67, {hx(f2u(CS))}')


def q_reads(kk):
    W = []
    for t in range(4):
        for bs in range(2):
            ad, off = (vWc, kk * 15360 + t * 160 + bs * 3840) if t < 3 else (vWc + 1, kk * 15360 + bs * 3840)
            W.append(f'ds_read_b64_tr_b16 {v(fW[kk][t]+2*bs,2)}, v{ad} offset:{off}')
    X = [f'ds_read_b128 {v(fX[kk][b],4)}, v{vXc+kk} offset:{2048*b}' for b in range(NB)]
    if DBG & 8:
        return X[:1]
    return W + X


def q_mfmas(kk):
    L = []
    for b in range(NB):
        x = v(fX[kk][b], 4)
        for t, acc in ((0, accQ), (1, accK), (2, accV), (3, accR)):
            w = v(fW[kk][t], 4)
            d = v(acc[b], 4)
            L.append(f'{mf} {d}, {x}, {w}, {d}' if t == 2 else f'{mf} {d}, {w}, {x}, {d}')
    if DBG & 1:
        L = L[:1]
    return L


a('s_mov_b32 s14, 0')
a('s_mov_b32 s15, 10')
stamp(1, 6)
a('s_waitcnt lgkmcnt(0)')
stamp(2, 6)
nonce_load()
srd(SRD_WS, S_WS, WS_SIZE)
stamp(1)
a('s_barrier')
stamp(2)
for x in q_reads(0):
    a(x)
a('.p2align 3')
a.label('L_qc_loop')
a('s_waitcnt lgkmcnt(0)')
a('s_sub_u32 s15, s15, 1')
a(f's_add_u32 s14, s14, {SL}')
a(f's_cmp_eq_u32 s14, {3*SL}')
a('s_cselect_b32 s14, 0, s14')
a('s_cmp_eq_u32 s15, 0')
fill = q_reads(1) + [f'v_add_u32_e64 v{vXc}, s14, v{vXb}', f'v_add_u32_e64 v{vXc+1}, s14, v{vXb+1}',
                     f'v_add_u32_e64 v{vWc}, s14, v{vWb}', f'v_add_u32_e64 v{vWc+1}, s14, v{vWb+1}']
for x in interleave(q_mfmas(0), fill):
    a(x)
a('s_waitcnt lgkmcnt(0)')
a('s_cbranch_scc1 L_qc_last')
a('s_nop 0' if DBG & 16 else 's_barrier')
a('s_nop 0')
for x in interleave(q_mfmas(1), q_reads(0)):
    a(x)
a('s_branch L_qc_loop')
a.check_backedge('L_qc_loop')
a.label('L_qc_last')
stamp(3)
a('s_mov_b64 exec, 1')
a(f'ds_add_u32 v{vC2}, v{vC2+1} offset:4')
a('s_mov_b64 exec, -1')
my_nonce(64)
a(f'v_mov_b32 v{vFc+1}, s64')
a('s_cmp_eq_u32 s3, 7')
FLAG = f'buffer_store_dword v{vFc+1}, v{vFc}, {s(SRD_WS,4)}, 0 offen sc0 sc1'
B = range(NB)
E = list(q_mfmas(1))
e = E.append
SC = fX[0]; SP = fX[1]
for b in B:
    q, k, r, vv = accQ[b], accK[b], accR[b], accV[b]
    e(f'{cvt} v{q+3}, v{q+2}, v{q+3}')
    e(f'{cvt} v{q+2}, v{q}, v{q+1}')
    e(f'{cvt} v{k}, v{k}, v{k+1}')
    e(f'{cvt} v{k+1}, v{k+2}, v{k+3}')
    e(f'{cvt} v{q+4}, v{r}, v{r+1}')
    e(f'{cvt} v{k+3}, v{r+2}, v{r+3}')
    e(f'v_permlane16_swap_b32 v{q+4}, v{k+3}')
    e(f'v_and_b32 v{k+2}, v{mLo}, v{k+3}')
    e(f'{cvt} v{Vp+2+2*b}, v{vv}, v{vv+1}')
    e(f'{cvt} v{Vp+3+2*b}, v{vv+2}, v{vv+3}')
    e(f'{mf} {v(SC[b],4)}, {v(k,4)}, {v(q+2,4)}, {v(biasC,4)}')
    if b:
        e(f'{mf} {v(vv,4)}, {v(accK[b-1],4)}, {v(q+2,4)}, {v(biasP,4)}')
    e(f'{mf} {v(r,4)}, {v(q+2,4)}, {v(Ec,4)}, {v(Cone,4)}')
    e(f'{cvt} v{VRp+2+2*b}, v{r}, v{r+1}')
    e(f'{cvt} v{VRp+3+2*b}, v{r+2}, v{r+3}')
    if b:
        for r_ in range(4):
            e(f'v_max_f32 v{SC[b]+r_}, v{SC[b]+r_}, v{vv+r_}')
    e(f'v_max3_f32 v{q}, v{SC[b]}, v{SC[b]+1}, v{SC[b]+2}')
    e(f'v_max_f32 v{q}, v{q}, v{SC[b]+3}')
M = [accQ[b] for b in B]
for grp in ([0, 1, 2, 3], [4, 5, 6]):
    A_, B_, C_ = M[grp[0]], M[grp[1]], M[grp[2]]
    e(f'v_permlane16_swap_b32 v{A_}, v{B_}')
    e(f'v_max_f32 v{A_}, v{A_}, v{B_}')
    if len(grp) == 4:
        D_ = M[grp[3]]
    else:
        D_ = C_ + 1
        e(f'v_mov_b32 v{D_}, v{C_}')
    e(f'v_permlane16_swap_b32 v{C_}, v{D_}')
    e(f'v_max_f32 v{C_}, v{C_}, v{D_}')
    e(f'v_permlane32_swap_b32 v{A_}, v{C_}')
    e(f'v_max_f32 v{A_}, v{A_}, v{C_}')
    e(f'v_mul_f32 v{C_}, {hx(f2u(-CS))}, v{A_}')
    e(f'v_mul_f32 v{A_}, {hx(f2u(-CS))}, v{A_}')
    e(f'v_permlane32_swap_b32 v{A_}, v{C_}')
    e(f'v_mov_b32 v{B_}, v{A_}')
    e(f'v_permlane16_swap_b32 v{A_}, v{B_}')
    if len(grp) == 4:
        e(f'v_mov_b32 v{D_}, v{C_}')
        e(f'v_permlane16_swap_b32 v{C_}, v{D_}')
E2 = len(E)
for b in B:
    q, k, r, vv = accQ[b], accK[b], accR[b], accV[b]
    c_, p_ = SC[b], SP[b]
    if PK:
        for r_ in (0, 2):
            e(f'v_pk_fma_f32 {v(c_+r_,2)}, {v(c_+r_,2)}, s[66:67], {v(q,2)} op_sel_hi:[1,1,0]')
    else:
        for r_ in range(4):
            e(f'v_fma_f32 v{c_+r_}, v{c_+r_}, s66, v{q}')
    for r_ in range(4):
        e(f'v_exp_f32 v{c_+r_}, v{c_+r_}')
    e(f'{cvt} v{c_}, v{c_}, v{c_+1}')
    e(f'{cvt} v{c_+1}, v{c_+2}, v{c_+3}')
    e(f'v_and_b32 v{p_+2}, v{mCur}, v{c_}')
    e(f'v_and_b32 v{p_+3}, v{mCur+1}, v{c_+1}')
    e(f'v_xor_b32 v{p_}, v{p_+2}, v{c_}')
    e(f'v_xor_b32 v{p_+1}, v{p_+3}, v{c_+1}')
    e(f'{mf} {v(r,4)}, {v(VRp+2*b,4)}, {v(p_,4)}, 0')
    e(f'{mf} {v(vv,4)}, {v(Vp+2*b,4)}, {v(p_,4)}, 0')
    e(f'v_rcp_f32 v{r+1}, v{r+1}')
    if PK:
        for x in (vv, vv + 2):
            e(f'v_pk_mul_f32 {v(x,2)}, {v(x,2)}, {v(r,2)} op_sel:[0,1] op_sel_hi:[1,1]')
    else:
        for x in range(vv, vv + 4):
            e(f'v_mul_f32 v{x}, v{x}, v{r+1}')
    e(f'v_mul_f32 v{r+2}, v{r}, v{r+1}')
    e(f'{cvt} v{vv}, v{vv}, v{vv+1}')
    e(f'{cvt} v{vv+1}, v{vv+2}, v{vv+3}')
    e(f'{cvt} v{r+2}, v{r+2}, v{r+2}')
    e(f'ds_write_b64 v{vOm}, {v(vv,2)} offset:{OBLK*b}')
    e(f'ds_write_b16 v{vOr2}, v{r+2} offset:{OBLK*b+32}')
E, est = schedule(E, by_order_from=E2)
print('epilogue instrs', len(E), 'est cycles', est)
if PFP == 2 and FPOS >= 0:
    E[len(E) - FPOS:len(E) - FPOS] = ['s_cbranch_scc0 L_noflg', FLAG, 'L_noflg:']
for x in E:
    a(x)
stamp(4)
a('s_mov_b64 exec, 1')
a(f'ds_add_u32 v{vC2}, v{vC2+1} offset:12')
a('s_mov_b64 exec, -1')
a.label('L_spin_o')
a(f'ds_read_b32 v{tmp}, v{vC2} offset:12')
a('s_waitcnt lgkmcnt(0)')
a(f'v_readfirstlane_b32 s64, v{tmp}')
a('s_cmp_ge_u32 s64, 5')
a('s_cbranch_scc0 L_spin_o')
stamp(5)
vOD = fX[0][0]
for i in range(4):
    a(f'ds_read_b128 {v(vOD+4*i,4)}, v{vOL} offset:{OBLK+OROW*i}')
a(f'ds_read_b128 {v(vOD+16,4)}, v{vX7}')
for i in range(4):
    a(f's_mov_b64 exec, s[{OMASK[i]}:{OMASK[i]+1}]')
    a(f's_waitcnt lgkmcnt({4-i})')
    a(f'buffer_store_dwordx4 {v(vOD+4*i,4)}, v{vOG}, {s(SRD_WS,4)}, s{sOG+i} offen offset:160 sc1')
a('s_mov_b64 exec, -1')
a('s_waitcnt lgkmcnt(0)')
a(f'buffer_store_dwordx4 {v(vOD+16,4)}, v{vX7+1}, {s(SRD_WS,4)}, 0 offen sc1')
if PFP == 2 and FPOS < 0:
    a(FLAG)
if WAITO:
    a('s_mov_b64 exec, 1')
    a(f'ds_add_u32 v{vC2}, v{vC2+1} offset:12')
    a('s_mov_b64 exec, -1')
stamp(6)
a('s_barrier')
endpgm()

a.label('L_dftx')
a('s_sub_u32 s7, s6, 20')
a('s_mov_b32 s8, 2')
a('s_sub_u32 s6, s2, 160')
a('s_branch L_dft2')
a.label('L_dft')
a('s_lshr_b32 s7, s6, 1')
a('s_and_b32 s8, s6, 1')
a('s_mov_b32 s6, s2')
a.label('L_dft2')
a('s_lshl_b32 s9, s5, 2')
a('s_add_u32 s7, s7, s9')
dX = 2; dWr = 3
dD = 96
a(f'v_lshrrev_b32 v8, 3, v0')
a(f'v_mul_u32_u24 v9, 81920, v8')
a(f'v_and_b32 v10, 7, v0')
a(f'v_lshl_add_u32 v{dX}, v10, 4, v9')
a('s_lshr_b32 s14, s3, 2')
a('s_xor_b32 s14, s14, s8')
a('s_and_b32 s14, s14, 1')
a('s_lshl_b32 s10, s7, 1')
a('s_add_u32 s9, s14, s10')
a('s_lshl_b32 s9, s9, 1')
a('s_add_u32 s62, s9, s4')
a('s_and_b32 s63, s3, 3')
a('s_lshl_b32 s10, s63, 9')
a('s_add_u32 s9, s62, s10')
a('s_mul_i32 s9, s9, 1280')
a('s_lshl_b32 s15, s14, 2')
a('s_add_u32 s15, s15, s63')
a('s_mul_i32 s15, s15, 5120')
a('v_lshlrev_b32 v13, 4, v0')
a('s_mov_b32 m0, s15')
a('s_waitcnt lgkmcnt(0)')
stamp(1)
srd(SRD_X, S_X, 2621440)
srd(SRD_G, S_GW, 1280)
a(f'buffer_load_dwordx4 v13, {s(SRD_G,4)}, 0 offen lds')
a(f'buffer_load_dwordx4 v13, {s(SRD_G,4)}, 0 offen offset:1024 lds')
for l in range(5):
    a(f'buffer_load_dwordx4 {v(dD+8*l,4)}, v{dX}, {s(SRD_X,4)}, s9 offen offset:{128*l}')
    a(f'buffer_load_dwordx4 {v(dD+8*l+4,4)}, v{dX}, {s(SRD_X,4)}, s9 offen offset:{128*l+640}')
if PFE:
    srd(SRD_B, S_WO, 819200)
    a('s_and_b32 s9, s6, 0xf8')
    a('s_add_u32 s9, s9, s3')
    a('s_and_b32 s10, s2, 7')
    a('s_mul_i32 s10, s10, 12')
    a('s_add_u32 s9, s9, s10')
    a('s_cmp_ge_u32 s9, 96')
    a('s_cselect_b32 s10, 96, 0')
    a('s_sub_u32 s9, s9, s10')
    a('s_lshl_b32 s9, s9, 13')
    a('v_lshlrev_b32 v12, 7, v0')
    a(f'buffer_load_dword v1, v12, {s(SRD_B,4)}, s9 offen')
nonce_load()
srd(SRD_WS, S_WS, WS_SIZE)
a(f'v_lshrrev_b32 v11, 4, v0')
a(f'v_xor_b32 v11, v11, v10')
a('s_and_b32 s9, s3, 1')
a('s_lshl_b32 s9, s9, 2')
a('v_xor_b32 v11, s9, v11')
a(f'v_lshlrev_b32 v12, 7, v8')
a(f'v_lshl_add_u32 v12, v11, 4, v12')
a(f'v_add_u32 v{dWr}, s15, v12')
a('s_lshl_b32 s11, s8, 31')
a('s_or_b32 s11, s11, 0x3f803f80')
a('s_mov_b32 s12, 0x05040100')
a('s_mov_b32 s13, 0x07060302')
a('v_mov_b64 v[28:29], -1')
a(f'v_mov_b32 v16, {CNT}')
a('v_mov_b32 v18, 0')
a('v_mov_b32 v19, 4')
a('v_mov_b32 v20, 0')
a('v_mov_b32 v21, 8')
a('ds_write_b128 v16, v[18:21]')
a('ds_write_b32 v16, v18 offset:16')
a('s_cmp_lt_u32 s3, 4')
a('s_cbranch_scc1 L_fold')
rd = RA(24, 96)
vF = rd.get(4); vZ = rd.get(2); t0 = rd.get(6)
cC = rd.get(8); cP = rd.get(8); cN = rd.get(8)
gc = rd.get(8); gs = rd.get(8); gS = rd.get(2)
hc, hs = 160, 168
pB = [rd.get(8), rd.get(8)]
acc = [[176, 192], [208, 224]]
gu = 240
a(f'v_and_b32 v{t0}, 31, v0')
a(f'v_lshrrev_b32 v{t0+1}, 5, v0')
a(f'v_cvt_f32_u32 v{t0+2}, v{t0}')
a(f'v_cvt_f32_u32 v{t0+4}, v{t0+1}')
a(f'v_mul_f32 v{t0+3}, v{t0+4}, v{t0+2}')
a(f'v_mul_f32 v{t0+3}, {hx(f2u(0.125))}, v{t0+3}')
for i in range(8):
    for e in range(2):
        r_ = 2 * i + e
        kap = 8 * (r_ >> 2) + (r_ & 3)
        a(f'v_fmamk_f32 v{gu+e}, v{t0+2}, {hx(f2u(kap/32.0))}, v{t0+3}')
    for e in range(2):
        a(f'v_cos_f32 v{gu+2+e}, v{gu+e}')
        a(f'v_sin_f32 v{gu+4+e}, v{gu+e}')
    a(f'{cvt} v{cC+i}, v{gu+2}, v{gu+3}')
    a(f'{cvt} v{cN+i}, v{gu+4}, v{gu+5}')
    a(f'v_xor_b32 v{cP+i}, 0x80008000, v{cN+i}')
a('s_cmp_eq_u32 s8, 2')
a('s_cselect_b32 s22, s63, s8')
a('s_cselect_b32 s23, 4, s63')
a('s_cselect_b32 s24, s63, 0')
a('s_mul_i32 s24, s24, 40960')
a('s_lshl_b32 s25, s23, 6')
a('s_add_u32 s25, s25, s22')
a(f'v_lshl_add_u32 v{gu}, v{t0}, 1, s25')
a(f'v_cmp_eq_u32 vcc, 0, v{gu}')
a(f'v_cvt_f32_u32 v{gu}, v{gu}')
a(f'v_mul_f32 v{gu}, {hx(f2u(1/640.0))}, v{gu}')
a(f'v_mul_f32 v{gS+1}, {hx(f2u(16.0))}, v{gu}')
a(f'v_mul_f32 v{gs}, v{t0+4}, v{gu}')
a(f'v_mul_f32 v{gs}, {hx(f2u(8.0))}, v{gs}')
a(f'v_cos_f32 v{gS}, v{gS+1}')
for jj in range(1, 8):
    a(f'v_fmamk_f32 v{gs+jj}, v{gu}, {hx(f2u(float(jj)))}, v{gs}')
for jj in range(8):
    a(f'v_sub_f32 v{hs+jj}, v{gs+jj}, v{gS+1}')
a(f'v_add_f32 v{gS}, v{gS}, v{gS}')
for c_, s_ in ((gc, gs), (hc, hs)):
    for jj in range(8):
        a(f'v_cos_f32 v{c_+jj}, v{s_+jj}')
    for jj in range(8):
        a(f'v_sin_f32_e64 v{s_+jj}, -v{s_+jj}')
    for jj in range(8):
        a(f'v_cndmask_b32_e64 v{s_+jj}, v{s_+jj}, {"1.0" if jj % 2 == 0 else "-1.0"}, vcc')
for jj in range(4):
    a(f'{cvt} v{pB[0]+jj}, v{gc+2*jj}, v{gc+2*jj+1}')
    a(f'{cvt} v{pB[0]+4+jj}, v{gs+2*jj}, v{gs+2*jj+1}')
for r_ in range(176, 240, 2):
    a(f'v_mov_b64 {v(r_,2)}, 0')
a(f'v_lshrrev_b32 v{t0+2}, 3, v{t0}')
a(f'v_mul_u32_u24 v{t0+2}, 5120, v{t0+2}')
a(f'v_lshl_add_u32 v{t0+2}, v10, 7, v{t0+2}')
a(f'v_bfe_u32 v{t0+3}, v0, 1, 3')
a(f'v_xor_b32 v{t0+3}, v{t0+3}, v{t0+1}')
a(f'v_lshl_add_u32 v{t0+2}, v{t0+3}, 4, v{t0+2}')
for q in range(4):
    a(f'v_xor_b32 v{vF+q}, {32*q}, v{t0+2}')
    a(f'v_add_u32 v{vF+q}, s24, v{vF+q}')
a(f'v_mul_u32_u24 v{t0+3}, {4*98304}, v{t0+1}')
a(f'v_lshl_add_u32 v{vZ}, v{t0}, 3, v{t0+3}')
a(f'v_add_u32 v{t0+3}, 1280, v{t0+3}')
a(f'v_mov_b32 v{t0+4}, {hx(OOB)}')
a(f'v_cndmask_b32 v{vZ+1}, v{t0+4}, v{t0+3}, vcc')
a(f'v_cndmask_b32_e64 v{t0+5}, -1, 0, vcc')
a.label('L_fold')
stamp(2)
gw = 136
a(f'v_mov_b32 v14, {hx(OOB)}')
a('s_cmp_lg_u32 s14, s8')
a('s_cbranch_scc1 L_fold_go')
a(f'v_lshl_add_u32 v14, v10, 4, s15')
a(f's_waitcnt vmcnt({10+PFE})')
for i in range(10):
    a(f'ds_read_b128 {v(gw+4*i,4)}, v14 offset:{128*i}')
ga = 16
for q in range(4):
    a(f'v_mov_b32 v{ga+q}, 0')
a('s_and_b32 s64, s62, 31')
a('s_lshl_b32 s64, s64, 8')
a('s_lshr_b32 s65, s62, 5')
a('s_lshl_b32 s65, s65, 2')
a('s_add_u32 s64, s64, s65')
a('s_lshl_b32 s65, s63, 6')
a('s_add_u32 s64, s64, s65')
a(f's_add_u32 s64, s64, {G_OFF}')
a('v_lshl_add_u32 v14, v8, 3, s64')
a(f'v_mov_b32 v15, {hx(OOB)}')
a('v_cmp_eq_u32 vcc, 0, v10')
a('v_cndmask_b32 v14, v15, v14, vcc')
a('s_waitcnt lgkmcnt(0)')
a.label('L_fold_go')
t = 248
a(f'v_mov_b32 v15, s11')
for l in range(5):
    a(f's_waitcnt vmcnt({8-2*l+PFE})')
    lo, hi = dD + 8 * l, dD + 8 * l + 4
    o_ = 4 if l % 2 == 0 else 20
    for q in range(4):
        a(f'v_perm_b32 v{t+2*q}, v{hi+q}, v{lo+q}, s12')
        a(f'v_perm_b32 v{t+2*q+1}, v{hi+q}, v{lo+q}, s13')
    for q in range(8):
        a(f'v_dot2_f32_bf16 v{t+q}, v{t+q}, v15, 0')
    for q in range(4):
        a(f'{cvt} v{o_+q}, v{t+2*q}, v{t+2*q+1}')
    a(f'ds_write_b128 v{dWr}, {v(o_,4)} offset:{l*1024}')
a('s_cmp_lg_u32 s8, 2')
a('s_cbranch_scc1 L_fold_done')
a('s_mov_b32 s8, 3')
a('s_mov_b32 s11, 0xbf803f80')
a(f'v_add_u32 v{dWr}, 40960, v{dWr}')
a('s_branch L_fold_go')
a.label('L_fold_done')
a('s_waitcnt lgkmcnt(0)')
stamp(3)
a('s_barrier')
a('s_cmp_lg_u32 s14, s8')
a('s_cbranch_scc1 L_nogate')
for l in range(5):
    for h in range(2):
        for q in range(4):
            a(f'v_dot2c_f32_bf16 v{ga+q}, v{dD+8*l+4*h+q}, v{gw+4*(l+5*h)+q}')
a(f'v_add_f32 v{ga}, v{ga}, v{ga+1}')
a(f'v_add_f32 v{ga+2}, v{ga+2}, v{ga+3}')
a(f'v_add_f32 v{ga}, v{ga}, v{ga+2}')
a(f'v_add_f32_dpp v{ga}, v{ga}, v{ga} quad_perm:[1,0,3,2] row_mask:0xf bank_mask:0xf')
a(f'v_add_f32_dpp v{ga}, v{ga}, v{ga} quad_perm:[2,3,0,1] row_mask:0xf bank_mask:0xf')
a(f'v_add_f32_dpp v{ga}, v{ga}, v{ga} row_half_mirror row_mask:0xf bank_mask:0xf')
a(f'v_mul_f32 v{ga}, {hx(f2u(-math.log2(math.e)))}, v{ga}')
a(f'v_exp_f32 v{ga}, v{ga}')
a(f'v_add_f32 v{ga}, 1.0, v{ga}')
a(f'v_rcp_f32 v9, v{ga}')
a(f'buffer_store_dword v9, v14, {s(SRD_WS,4)}, 0 offen sc1')
a.label('L_nogate')
a('s_cmp_ge_u32 s3, 4')
a('s_cbranch_scc1 L_dc')
if PFW:
    srd(SRD_X, S_WO, 819200)
    a('s_lshr_b32 s60, s6, 3')
    a('s_lshl_b32 s60, s60, 2')
    a('s_add_u32 s60, s60, s3')
    a('s_and_b32 s61, s2, 7')
    a('s_mul_i32 s61, s61, 6')
    a('s_add_u32 s60, s60, s61')
    a('s_cmp_ge_u32 s60, 48')
    a('s_cselect_b32 s61, 48, 0')
    a('s_sub_u32 s60, s60, s61')
    a('s_lshl_b32 s60, s60, 14')
    a('v_lshlrev_b32 v12, 7, v0')
    a(f'buffer_load_dword v180, v12, {s(SRD_X,4)}, s60 offen')
    a('s_add_u32 s60, s60, 8192')
    a(f'buffer_load_dword v181, v12, {s(SRD_X,4)}, s60 offen')
srd(SRD_B, S_WS, 2621440)
a('s_lshl_b32 s60, s6, 2')
a('s_add_u32 s60, s60, s3')
a('s_mul_i32 s60, s60, 7168')
a('v_mov_b64 v[4:5], -1')
a('v_mov_b64 v[6:7], -1')
for i in range(7):
    if i == 4:
        a('s_add_u32 s60, s60, 4096')
    a(f'buffer_store_dwordx4 v[4:7], v13, {s(SRD_B,4)}, s60 offen offset:{(i&3)*1024} sc1')
for pc in range(5):
    a(f's_call_b64 s[60:61], L_p2setup{pc}')
a('s_lshl_b32 s64, s6, 7')
a(f's_add_u32 s64, s64, {F_OFF}')
a(f'v_lshl_add_u32 v{kt}, v0, 15, s64')
a(f'v_mov_b32 v{kt+1}, s{S_N}')
a(f'v_mov_b32 v{kt+2}, s{S_N+1}')
a(f'v_and_b32 v{kt+3}, 1, v0')
a(f'v_cmp_eq_u32 vcc, 1, v{kt+3}')
a(f'v_cndmask_b32 v{kt+1}, v{kt+1}, v{kt+2}, vcc')
a(f'v_add_u32 v{kt+1}, 1, v{kt+1}')
my_nonce(sNon)
a('s_waitcnt vmcnt(0)')
stamp(3)
a('s_barrier')
stamp(4)
a('s_cmp_lg_u32 s3, 3')
a('s_cbranch_scc1 L_tail2')
a('s_mov_b64 exec, 0xff')
a(f'buffer_store_dword v{kt+1}, v{kt}, {s(SRD_WS,4)}, 0 offen sc0 sc1')
a('s_mov_b64 exec, -1')
a.label('L_tail2')
wo_chunk(0)
wo_chunk(1)
a('s_branch L_post9')

a.label('L_dc')
a('s_setprio 2')
a('s_cmp_ge_u32 s22, 2')
a('s_cbranch_scc1 L_dc_end')
a('s_lshl_b32 s62, s7, 1')
a('s_add_u32 s62, s62, s4')
a('s_and_b32 s61, s62, 0xfc')
a('s_add_u32 s62, s62, s61')
a('s_lshl_b32 s61, s22, 2')
a('s_add_u32 s62, s62, s61')
a('s_mul_i32 s62, s62, 1536')
a('s_lshl_b32 s61, s23, 8')
a('s_add_u32 s62, s62, s61')
aF = [[96 + 8 * q + 4 * w for w in range(2)] for q in range(4)]


def a_reads(q, wrap):
    return [f'ds_read_b128 {v(aF[q][w],4)}, v{vF+q} offset:{w*20480+(1024 if wrap else 0)}' for w in range(2)]


for q in range(2):
    for x in a_reads(q, False):
        a(x)
for r_ in range(16):
    a(f's_add_u32 s{64+r_}, s62, {Z_OFF + (8*(r_>>2)+(r_&3))*98304}')
a('s_mov_b32 s61, 5')
stamp(4)
a('.p2align 3')
a.label('L_dloop')
for q in range(4):
    cur, nxt = pB[q & 1], pB[(q + 1) & 1]
    for x in a_reads((q + 2) & 3, q >= 2):
        a(x)
    a('s_waitcnt lgkmcnt(4)')
    if q == 0:
        a('s_sub_u32 s61, s61, 1')
    elif q == 1:
        a('s_cmp_lg_u32 s61, 0')
    else:
        a('s_nop 0')
    for g4 in range(4):
        w, tb = g4 >> 1, g4 & 1
        d = v(acc[w][tb], 16)
        a(f'{M32} {d}, {v(aF[q][w],4)}, {v(cur+4*tb,4)}, {d}')
        jj = 2 * g4
        (c0, s0), (c1, s1) = ((gc, gs), (hc, hs)) if q % 2 == 0 else ((hc, hs), (gc, gs))
        for x0, x1 in ((c0, c1), (s0, s1)):
            for e_ in range(2):
                a(f'v_fma_f32 v{x1+jj+e_}, v{gS}, v{x0+jj+e_}, -v{x1+jj+e_}')
        a(f'{cvt} v{nxt+g4}, v{c1+jj}, v{c1+jj+1}')
        a(f'{cvt} v{nxt+4+g4}, v{s1+jj}, v{s1+jj+1}')
for q in range(4):
    a(f'v_add_u32 v{vF+q}, 1024, v{vF+q}')
a('s_cbranch_scc1 L_dloop')
a.check_backedge('L_dloop')
stamp(6)
pk = [[128, 136], [144, 152]]
for w in range(2):
    for tb in range(2):
        for i in range(8):
            a(f'{cvt} v{pk[w][tb]+i}, v{acc[w][tb]+2*i}, v{acc[w][tb]+2*i+1}')


zo = 96


def z_cvt(w):
    return [f'{cvt} v{zo+2*r_+w}, v{acc[w][0]+r_}, v{acc[w][1]+r_}' for r_ in range(16)]


def z_st(va):
    return [f'buffer_store_dwordx2 {v(zo+2*r_,2)}, v{va}, {s(SRD_WS,4)}, s{64+r_} offen sc1' for r_ in range(16)]


a('s_waitcnt lgkmcnt(0)')
a('s_cmp_lg_u32 s25, 0')
a('s_cbranch_scc1 L_dc_nospec')
T = []
for w in range(2):
    Zr, Zi = acc[w]
    pb = pk[w][1]
    T += [f'{M32} {v(Zr,16)}, {v(cC,4)}, {v(pb,4)}, 0', f'{M32} {v(Zi,16)}, {v(cP,4)}, {v(pb,4)}, 0',
          f'{M32} {v(Zr,16)}, {v(cC+4,4)}, {v(pb+4,4)}, {v(Zr,16)}', f'{M32} {v(Zi,16)}, {v(cP+4,4)}, {v(pb+4,4)}, {v(Zi,16)}']
    T += [f'v_and_b32 v{pb+i}, v{t0+5}, v{pb+i}' for i in range(8)]
    T += z_cvt(w)
T += z_st(vZ + 1)
for x in schedule(T)[0]:
    a(x)
a('s_nop 1')
a.label('L_dc_nospec')
a('s_nop 1')
T = []
for w in range(2):
    Zr, Zi = acc[w]
    pa, pb = pk[w]
    T += [
        f'{M32} {v(Zr,16)}, {v(cC,4)}, {v(pa,4)}, 0',
        f'{M32} {v(Zi,16)}, {v(cP,4)}, {v(pa,4)}, 0',
        f'{M32} {v(Zr,16)}, {v(cC+4,4)}, {v(pa+4,4)}, {v(Zr,16)}',
        f'{M32} {v(Zi,16)}, {v(cP+4,4)}, {v(pa+4,4)}, {v(Zi,16)}',
        f'{M32} {v(Zr,16)}, {v(cN,4)}, {v(pb,4)}, {v(Zr,16)}',
        f'{M32} {v(Zi,16)}, {v(cC,4)}, {v(pb,4)}, {v(Zi,16)}',
        f'{M32} {v(Zr,16)}, {v(cN+4,4)}, {v(pb+4,4)}, {v(Zr,16)}',
        f'{M32} {v(Zi,16)}, {v(cC+4,4)}, {v(pb+4,4)}, {v(Zi,16)}',
    ]
M0_, M1_ = T[:8], T[8:]
for x in M0_ + M1_ + z_cvt(0) + interleave(z_cvt(1), z_st(vZ)):
    a(x)
stamp(9)
a.label('L_dc_end')
a('s_waitcnt vmcnt(0) lgkmcnt(0)')
a('s_barrier')
endpgm()

retry_stubs()
a.label('L_exit')
a.label('L_codeend')
a('s_endpgm')
if PROF:
    a.label('L_prof_end')
    a('s_waitcnt vmcnt(0)')
    a('s_memtime s[76:77]')
    a('s_memrealtime s[78:79]')
    a('s_waitcnt lgkmcnt(0)')
    a(f's_mov_b32 s72, s{S_WS}')
    a(f's_mov_b32 s73, s{S_WS+1}')
    a('s_mov_b32 s74, 0x1000000')
    a('s_mov_b32 s75, 0x20000')
    a('v_mov_b32 v2, s100')
    for i in range(1, NST):
        a(f's_sub_u32 s71, s{80+2*i}, s80')
        a(f's_cmp_eq_u32 s{80+2*i}, 0')
        a(f's_cselect_b32 s71, 0, s71')
        a(f'v_mov_b32 v{2+i}, s71')
    a('s_sub_u32 s76, s76, s80')
    a('v_mov_b32 v12, s76')
    a('v_mov_b32 v13, s78')
    a('s_lshl_b32 s71, s2, 3')
    a('s_add_u32 s71, s71, s3')
    a('s_lshl_b32 s71, s71, 6')
    a(f's_add_u32 s71, s71, {PROF_OFF}')
    a('v_mov_b32 v1, s71')
    a('buffer_store_dwordx4 v[2:5], v1, s[72:75], 0 offen')
    a('buffer_store_dwordx4 v[6:9], v1, s[72:75], 0 offen offset:16')
    a('buffer_store_dwordx4 v[10:13], v1, s[72:75], 0 offen offset:32')
    a('s_endpgm')

hdr = open('cdna_kernels/' + NAME + '.s.ref').read().split('; Override launch')[0]
out = hdr
out += f'; @launch grid=(256,1,1) block=(512,1,1) lds=163840\n'
out += '.amdgcn_target "amdgcn-amd-amdhsa--gfx950"\n.text\n'
if AL8:
    print('align8', a.align8())
out += a.text()
out += f'''.section .rodata,"a"
.p2align 6
.amdhsa_kernel {KN}
  .amdhsa_next_free_vgpr 256
  .amdhsa_next_free_sgpr 102
  .amdhsa_accum_offset 256
  .amdhsa_group_segment_fixed_size 0
  .amdhsa_kernarg_size 96
  .amdhsa_user_sgpr_count 2
  .amdhsa_user_sgpr_kernarg_segment_ptr 1
  .amdhsa_system_sgpr_workgroup_id_x 1
.end_amdhsa_kernel
'''
open(sys.argv[1], 'w').write(out)
print('wrote', sys.argv[1], 'lines', out.count('\n'), 'nops', a.nnop, 'qc vgpr', ra.hi, 'p2 vgpr', rk.hi)
```

```python
import sys, struct, math
from asmlib import *

NAME = 'gated_mix__spectral_fnet__sliding_local_dilated__prompt'
PROF = 0
PFW = 1
SLP_D = 3
SLP_Q = 2
DBG = 0
PK = 1
PFP = 2
FPOS = 60
PFE = 0
CHK1 = 1
AL8 = 1
PACE = 1
CLATE = 2
ROT = 0
PH0 = 0
PH1 = 2
PPOS = 1
PFP2 = 0
CWAIT = 1
EWO = 1
LPRIO = 3
OSC = 0
DEFER = 1
WAITO = 1
ZPRIO = 0
PFC = 1
SPLIT = 1
NUP = 13
SLP_R = 4
for arg in sys.argv[2:]:
    k_, v_ = arg.split('=')
    globals()[k_] = int(v_)
NB = 7
U = 16 * NB - 7
JMAX = 1024 - 16 * NB
ABYTES = 16 * NB * 128
SL = ABYTES + 64 * 480
O_OFF = 0
Z_OFF = 2621440
G_OFF = Z_OFF + 3145728
F_OFF = G_OFF + 8192
N_OFF = F_OFF + 262144
P_OFF = N_OFF + 1024
WS_SIZE = P_OFF + 819200
F2 = 12288
OOB = 0x80000000
WCH = [45056, 65536, 90112, 0, 20480]
ZIMG = 135168
OST = 110592
OROW, OBLK = 176, 2976
OIMG = [135168, 110592, 45056, 65536]
CNT = 163008
SPIN = 400000


def f2u(x):
    return struct.unpack('<I', struct.pack('<f', x))[0]


def hx(x):
    return hex(x & 0xffffffff)


def swap23(k):
    return (k & ~12) | ((k & 4) << 1) | ((k & 8) >> 1)


a = Asm()
S_X, S_WDR, S_WDI, S_WQKV, S_WO = 16, 22, 24, 28, 30
S_GW, S_OUT, S_DBG, S_WS = 32, 34, 36, 38
SRD_X, SRD_B, SRD_C, SRD_WS, SRD_G = 40, 44, 48, 52, 56
S_N = 18
cvt = 'v_cvt_pk_bf16_f32'
mf = 'v_mfma_f32_16x16x32_bf16'
M32 = 'v_mfma_f32_32x32x16_bf16'
KN = NAME + '_kernel'


def srd(d, ptr, size):
    a(f's_mov_b64 s[{d}:{d+1}], s[{ptr}:{ptr+1}]')
    a(f's_mov_b32 s{d+2}, {hx(size)}')
    a(f's_mov_b32 s{d+3}, 0x20000')


PROF_OFF = 0x800000
NST = 10


def stamp(i, mode=None):
    if PROF and ((mode is None and (PROF < 3 or i == 0)) or mode == PROF):
        a(f's_memtime s[{80+2*i}:{81+2*i}]')


def stamps(i, mode):
    return [f's_memtime s[{80+2*i}:{81+2*i}]'] if PROF == mode else []


def endpgm():
    a('s_branch L_prof_end' if PROF else 's_endpgm')


def nonce_load():
    a(f's_add_u32 s20, s{S_WS}, {N_OFF}')
    a(f's_addc_u32 s21, s{S_WS+1}, 0')
    a(f's_load_dwordx2 s[{S_N}:{S_N+1}], s[20:21], 0')


def my_nonce(d):
    a('s_bitcmp0_b32 s2, 0')
    a(f's_cselect_b32 s{d}, s{S_N}, s{S_N+1}')
    a(f's_add_u32 s{d}, s{d}, 1')


a(f'.globl {KN}')
a('.p2align 8')
a(f'.type {KN},@function')
a.label(KN)
if PROF:
    a('s_memrealtime s[100:101]')
    stamp(0)
a('s_load_dwordx16 s[16:31], s[0:1], 0')
a('s_load_dwordx8 s[32:39], s[0:1], 64')
if PFC:
    a('s_getpc_b64 s[4:5]')
    a.label('L_pc')
    a('s_bfe_u32 s6, s2, 0x20003')
    a('s_lshl_b32 s6, s6, 7')
    a('v_lshl_add_u32 v2, v0, 9, s6')
    a('v_min_u32 v2, L_codeend-L_pc-4, v2')
    a('global_load_dword v255, v2, s[4:5]')
a('v_lshrrev_b32 v1, 6, v0')
a('v_and_b32 v0, 63, v0')
a('v_readfirstlane_b32 s3, v1')
if PROF:
    for i in range(1, NST):
        a(f's_mov_b32 s{80+2*i}, 0')
a('s_lshr_b32 s6, s2, 3')
a('s_and_b32 s4, s2, 1')
a('s_sub_u32 s6, s6, 8')
a('s_cmp_ge_u32 s6, 20')
a('s_cbranch_scc1 L_other')
a('s_lshr_b32 s12, s6, 2')
a('s_bitcmp1_b32 s2, 1')
a('s_cselect_b32 s7, 5, 0')
a('s_add_u32 s7, s7, s12')
a('s_and_b32 s9, s6, 3')
a('s_and_b32 s8, s2, 4')
a('s_add_u32 s8, s8, s9')
a('s_mov_b32 s10, s7')
a(f's_mulk_i32 s10, {U}')
a(f's_min_u32 s10, s10, {JMAX}')
a('s_cmp_ge_u32 s3, 4')
a('s_cbranch_scc1 L_qc')

rk = RA(2, 256)
vO = rk.get(2); vOr = rk.get(2); vGt = rk.get(2); vZa = rk.get(5); vGa = rk.get(1); vOut = rk.get(2); vWa = rk.get(2); kt = rk.get(8)
accD = [rk.get(4) for t in range(5)]
accO = [rk.get(4) for t in range(5)]
NO = 6
oF = [rk.get(4) for i in range(NO)]
NR = 8
bF = [[rk.get(4) for t in range(5)] for k in range(NR)]
vCn = rk.get(2)
WsF = accO[0]
vT = kt
vPd = oF[0]; vW = oF[2]; vZp = vW + 5; vPa = vW + 6; vFl = vW + 10; vPq = vW + 8
vA = bF[7][0]; vB = vA + 4
sEA, sEB = 76, 77
sOb, sImg, sGo, sT1, sNon, sZok, sRet, sMir = 22, 23, 24, 25, 26, 27, 28, 29

a(f'v_lshrrev_b32 v{vT}, 3, v0')
a(f'v_mul_u32_u24 v{vT}, {16*2560-128}, v{vT}')
a('s_lshl_b32 s11, s3, 1')
a(f'v_xor_b32 v{vT+1}, s11, v0')
a(f'v_lshl_add_u32 v{vA}, v{vT+1}, 4, v{vT}')
a('s_movk_i32 s13, 1664')
a(f'v_add_u32 v{vA+1}, s13, v{vA}')
a(f'v_xor_b32 v{vA+2}, 16, v{vA+1}')
a(f'v_add_u32 v{vA+2}, s13, v{vA+2}')
a(f'v_add_u32 v{vA+3}, s13, v{vA+2}')
a(f'v_mul_u32_u24 v{vT}, 52, v0')
a(f'v_lshrrev_b32 v{vT}, 9, v{vT}')
a(f'v_mul_u32_u24 v{vT}, 35, v{vT}')
a(f'v_lshl_add_u32 v{vT}, v{vT}, 1, v0')
a(f'v_lshlrev_b32 v{vB}, 4, v{vT}')
a(f's_movk_i32 s13, {2*3840-960}')
a(f'v_add_u32 v{vB+1}, s13, v{vB}')
a(f'v_add_u32 v{vB+2}, {8*3840-1920}, v{vB}')
a(f'v_add_u32 v{vB+3}, s13, v{vB+2}')
a('s_lshl1_add_u32 s11, s11, s10')
a('s_lshl1_add_u32 s11, s11, s4')
a('s_mulk_i32 s11, 1280')
a('s_mul_i32 s13, s3, 384')
a('s_add_u32 s13, s13, s8')
a('s_mulk_i32 s13, 160')
if ROT:
    a('s_mul_i32 s14, s9, 5')
    a('s_add_u32 s14, s14, 1')
    a('s_lshr_b32 s14, s14, 1')
    a('s_lshl1_add_u32 s12, s12, s14')
    a('s_cmp_ge_u32 s12, 10')
    a('s_cselect_b32 s14, 10, 0')
    a('s_sub_u32 s12, s12, s14')
else:
    a('s_mov_b32 s12, 0')
a('s_mov_b32 s14, s3')
a('s_mulk_i32 s14, 3584')
a('s_lshl_b32 s15, s3, 12')
a(f's_addk_i32 s15, {ABYTES}')
a(f's_add_u32 s62, s14, {3*SL}')
a(f's_bfm_b32 s{sEA}, 24, 0')
a(f's_bfm_b32 s{sEB}, 28, 0')
a(f's_mov_b32 s{SRD_X+2}, 2621440')
a(f's_mov_b32 s{SRD_X+3}, 0x20000')
a(f's_mov_b32 s{SRD_B+2}, 2457600')
a(f's_mov_b32 s{SRD_B+3}, s{SRD_X+3}')
stamp(1, 6)
a('s_waitcnt lgkmcnt(0)')
stamp(1)
stamp(2, 6)
a(f's_mov_b64 s[{SRD_X}:{SRD_X+1}], s[{S_X}:{S_X+1}]')
a(f's_mov_b64 s[{SRD_B}:{SRD_B+1}], s[{S_WQKV}:{S_WQKV+1}]')
a('s_call_b64 s[60:61], L_issue')
stamp(3, 6)
if SPLIT:
    a('s_call_b64 s[60:61], L_issue')
    stamp(4, 6)
a('s_branch L_ql_main')
a.label('L_issue')
a('s_mov_b32 m0, s14')
a('s_lshl_b32 s64, s12, 7')
a(f's_mov_b32 exec_hi, s{sEA}')
a('s_add_u32 s64, s64, s11')
for i in range(4):
    if not (DBG & 2):
        a(f'buffer_load_dwordx4 v{vA+i}, {s(SRD_X,4)}, s64 offen offset:{896*i} lds')
a('s_add_u32 m0, s14, s15')
a('s_mul_i32 s65, s12, 245760')
a(f's_mov_b32 exec_hi, s{sEB}')
a('s_add_u32 s65, s65, s13')
for h in range(2):
    if h:
        a('s_addk_i32 m0, 3840')
        a(f's_addk_i32 s65, {4*3840}')
    for i in range(4):
        if not (DBG & 4):
            a(f'buffer_load_dwordx4 v{vB+i}, {s(SRD_B,4)}, s65 offen offset:{960*i} lds')
a('s_mov_b32 exec_hi, -1')
a('s_add_u32 s12, s12, 1')
a('s_cmp_eq_u32 s12, 10')
a('s_cselect_b32 s12, 0, s12')
a(f's_add_u32 s14, s14, {SL}')
a('s_cmp_eq_u32 s14, s62')
a(f's_cselect_b32 s64, {3*SL}, 0')
a('s_sub_u32 s14, s14, s64')
a('s_setpc_b64 s[60:61]')


def p2_decode(t1, jreg, mir, zt, jj, tmp1, tmp2):
    a(f's_bfe_u32 s{jreg}, s2, 0x30003')
    a(f's_and_b32 s{t1}, s2, 1')
    a(f's_and_b32 s{tmp1}, s2, 6')
    a(f's_lshr_b32 s{tmp2}, s2, 7')
    a(f's_add_u32 s{tmp1}, s{tmp1}, s{tmp2}')
    a(f's_lshl_b32 s{tmp1}, s{tmp1}, 1')
    a(f's_add_u32 s{t1}, s{t1}, s{tmp1}')
    a(f's_sub_u32 s{tmp1}, 32, s{t1}')
    a(f's_cmp_eq_u32 s{t1}, 0')
    a(f's_cselect_b32 s{tmp1}, 16, s{tmp1}')
    a('s_bitcmp1_b32 s2, 6')
    a(f's_cselect_b32 s{t1}, s{tmp1}, s{t1}')
    if zt is None:
        a(f's_cmp_ge_u32 s{jreg}, 4')
        a(f's_cselect_b32 s{mir}, 1, 0')
        return
    a(f's_sub_u32 s{tmp1}, 32, s{t1}')
    a(f's_and_b32 s{tmp1}, s{tmp1}, 31')
    a(f's_sub_u32 s{tmp2}, 7, s{jreg}')
    a(f's_cmp_ge_u32 s{jreg}, 4')
    a(f's_cselect_b32 s{zt}, s{tmp1}, s{t1}')
    a(f's_cselect_b32 s{jj}, s{tmp2}, s{jreg}')


def check(cur, sn):
    a(f'v_xor_b32 v{cur}, s{sn}, v{cur}')
    a(f'v_xor_b32 v{cur+1}, s{sn}, v{cur+1}')
    a(f'v_or_b32 v{cur}, v{cur}, v{cur+1}')
    a(f'v_cmp_ne_u32 vcc, 0, v{cur}')


def pload(vd, va, soff):
    a(f'buffer_load_dword v{vd}, v{va}, {s(SRD_WS,4)}, s{soff} offen sc1')
    a(f'buffer_load_dword v{vd+1}, v{va+1}, {s(SRD_WS,4)}, s{soff} offen sc1')


def poll(tag, va, vd, soff, sn, scnt, slp):
    pload(vd, va, soff)
    a.label(f'L_poll_{tag}')
    for h in range(2):
        cur, nxt = (vd, vd + 2) if h == 0 else (vd + 2, vd)
        a(f's_sleep {slp}')
        pload(nxt, va, soff)
        a('s_waitcnt vmcnt(2)')
        check(cur, sn)
        a(f's_cbranch_vccz L_polled_{tag}')
    a(f's_sub_u32 s{scnt}, s{scnt}, 1')
    a(f's_cmp_lg_u32 s{scnt}, 0')
    a(f's_cbranch_scc1 L_poll_{tag}')
    a.label(f'L_polled_{tag}')


def wo_chunk(ch):
    a(f's_add_u32 m0, s71, {WCH[ch]}')
    a(f's_add_u32 s72, s73, {ch*20480}')
    for i in range(4):
        a(f'buffer_load_dwordx4 v{vO}, {s(SRD_WS,4)}, s72 offen offset:{1024*i} sc1 lds')
    a('s_addk_i32 m0, 4096')
    a('s_addk_i32 s72, 4096')
    a(f'buffer_load_dwordx4 v{vO}, {s(SRD_WS,4)}, s72 offen sc1 lds')


def check4(cur, sn):
    for q in range(4):
        a(f'v_xor_b32 v{cur+q}, s{sn}, v{cur+q}')
    a(f'v_or3_b32 v{cur}, v{cur}, v{cur+1}, v{cur+2}')
    a(f'v_or_b32 v{cur}, v{cur}, v{cur+3}')
    a(f'v_cmp_ne_u32 vcc, 0, v{cur}')


a.label('L_p2setup1')
a('s_bfe_u32 s70, s2, 0x30003')
a('s_mul_i32 s71, s3, 5120')
a('s_mul_i32 s73, s70, 102400')
a('s_add_u32 s73, s73, s71')
a(f's_add_u32 s73, s73, {P_OFF}')
a('s_mul_i32 s70, s70, 160')
a(f'v_min_u32 v{vW}, 23, v0')
a(f'v_lshlrev_b32 v{vW}, 7, v{vW}')
a(f'v_add_u32 v{vW}, {F2}, v{vW}')
srd(SRD_WS, S_WS, WS_SIZE)
srd(SRD_C, S_OUT, 2621440)
p2_decode(sT1, 65, None, 66, 67, 68, 69)
a(f's_cselect_b32 s{sMir}, 1, 0')
a('s_mul_i32 s78, s66, 98304')
a('s_mul_i32 s67, s67, 320')
a('s_add_u32 s78, s78, s67')
a('s_mul_i32 s67, s3, 4608')
a('s_add_u32 s78, s78, s67')
a(f's_add_u32 s78, s78, {Z_OFF}')
a('s_and_b32 s79, s2, 7')
a('s_lshl_b32 s79, s79, 15')
a(f's_add_u32 s79, s79, {F_OFF}')
a(f'v_mul_u32_u24 v{vT}, 49, v0')
a(f'v_lshrrev_b32 v{vT}, 10, v{vT}')
a(f'v_mul_u32_u24 v{vT}, {1536-336}, v{vT}')
a(f'v_lshl_add_u32 v{vZp}, v0, 4, v{vT}')
a(f'v_lshlrev_b32 v{vPa}, 7, v0')
a(f'v_and_b32 v{vPa+1}, {31*128}, v{vPa}')
a(f'v_add_u32 v{vPa+1}, 8192, v{vPa+1}')
a(f'v_add_u32 v{vPq}, 16384, v{vPa}')
a(f'v_and_b32 v{vPq+1}, {15*128}, v{vPa}')
a(f'v_add_u32 v{vPq+1}, {16384+8192}, v{vPq+1}')
a(f'v_mov_b32 v{vCn}, {CNT}')
a(f'v_mov_b32 v{vCn+1}, 1')
a('s_setpc_b64 s[60:61]')
a.label('L_p2setup2')
a(f'v_and_b32 v{kt}, 15, v0')
a(f'v_lshrrev_b32 v{kt+1}, 4, v0')
a(f'v_lshrrev_b32 v{kt+2}, 5, v0')
a(f'v_lshlrev_b32 v{vO}, 4, v0')
a(f'v_add_u32 v{vWa}, {WCH[1]}, v{vO}')
a(f'v_mul_u32_u24 v{kt+3}, {327680-2560}, v{kt+2}')
a(f'v_add_u32 v{vO+1}, v{vO}, v{kt+3}')
a(f's_mov_b32 s{sImg}, {OIMG[0]}')
for i in range(1, 4):
    a(f's_cmp_eq_u32 s3, {i}')
    a(f's_cselect_b32 s{sImg}, {OIMG[i]}, s{sImg}')
a(f'v_mul_u32_u24 v{kt+3}, 160, v{kt}')
a(f'v_lshl_add_u32 v{kt+3}, v{kt+1}, 4, v{kt+3}')
a(f'v_add_u32 v{vOr}, s{sImg}, v{kt+3}')
a(f'v_mul_u32_u24 v{kt+3}, 2400, v{kt+2}')
a(f'v_add_u32 v{vOr+1}, v{vOr}, v{kt+3}')
a(f's_lshl_b32 s{sOb}, s{sT1}, 2')
a(f's_add_u32 s{sOb}, s{sOb}, s3')
a(f's_lshl_b32 s{sGo}, s{sOb}, 6')
a(f's_add_u32 s{sGo}, s{sGo}, {G_OFF}')
a(f's_mul_i32 s{sOb}, s{sOb}, 2560')
a(f'v_lshlrev_b32 v{vGa}, 2, v{kt}')
a('s_lshl_b32 s66, s3, 9')
a(f's_add_u32 s66, s66, s{sT1}')
a(f'v_lshl_add_u32 v{kt+2}, v{kt}, 5, s66')
a(f'v_mul_u32_u24 v{vOut}, 1280, v{kt+2}')
a(f'v_add_u32 v{vOut}, s70, v{vOut}')
a(f'v_lshl_add_u32 v{vOut+1}, v{kt+1}, 3, v{vOut}')
a(f'v_and_b32 v{kt+3}, 1, v{kt+1}')
a(f'v_lshl_add_u32 v{vOut}, v{kt+3}, 5, v{vOut}')
a(f'v_and_b32 v{kt+3}, 2, v{kt+1}')
a(f'v_lshl_add_u32 v{vOut}, v{kt+3}, 3, v{vOut}')
a(f'v_cvt_f32_u32 v{kt+2}, v{kt+2}')
a(f's_lshl_b32 s66, s{sMir}, 31')
a(f'v_xor_b32 v{kt+2}, s66, v{kt+2}')
a(f'v_lshrrev_b32 v{kt+3}, 5, v0')
a(f'v_bfe_u32 v{kt+4}, v0, 4, 1')
a(f'v_lshl_add_u32 v{kt+3}, v{kt+4}, 1, v{kt+3}')
a(f'v_cvt_f32_u32 v{kt+3}, v{kt+3}')
a(f'v_mul_f32 v{kt+3}, v{kt+3}, v{kt+2}')
a(f'v_mul_f32 v{kt+3}, {hx(f2u(4/2048.0))}, v{kt+3}')
for i in range(4):
    if i in (0, 2):
        a('s_setpc_b64 s[60:61]')
        a.label(f'L_p2setup{3+i//2}')
    for jr in range(0, 4, 2):
        for e in range(2):
            a(f'v_fmamk_f32 v{kt+4+e}, v{kt+2}, {hx(f2u((16*i+jr//2+2*e)/2048.0))}, v{kt+3}')
        for e in range(2):
            a(f'v_cos_f32 v{kt+6+e}, v{kt+4+e}')
            a(f'v_sin_f32 v{kt+4+e}, v{kt+4+e}')
        for e in range(2):
            a(f'{cvt} v{WsF+4*i+jr+e}, v{kt+6+e}, v{kt+4+e}')
a(f's_cmp_eq_u32 s{sMir}, 0')
a('s_cselect_b32 s66, 0, 80')
a('s_cselect_b32 s67, 1, -1')
a('s_cselect_b32 s68, 64, 0xffffffc0')
a(f'v_bfe_u32 v{kt+4}, v0, 4, 1')
a(f'v_lshrrev_b32 v{kt+3}, 5, v0')
a(f'v_lshl_add_u32 v{kt+4}, v{kt+4}, 2, v{kt+3}')
a(f'v_mul_u32_u24 v{kt+4}, 672, v{kt+4}')
a(f'v_add_u32 v{kt+4}, {ZIMG}, v{kt+4}')
a(f'v_mul_lo_u32 v{kt+2}, v{kt}, s67')
a(f'v_add_u32 v{kt+2}, s66, v{kt+2}')
a(f'v_and_b32 v{kt+3}, 1, v{kt+2}')
a(f'v_mul_u32_u24 v{kt+3}, 1344, v{kt+3}')
a(f'v_lshrrev_b32 v{kt+2}, 1, v{kt+2}')
a(f'v_lshl_add_u32 v{kt+2}, v{kt+2}, 3, v{kt+3}')
a(f'v_add_u32 v{vZa}, v{kt+2}, v{kt+4}')
for T in range(1, 5):
    a(f'v_add_u32 v{vZa+T}, s68, v{vZa+T-1}')
a(f's_mov_b32 s{sZok}, s3')
a(f's_mov_b32 s{sRet}, 20000')
a('s_setpc_b64 s[60:61]')

def _unused(ch):
    a(f's_add_u32 s72, s70, {ch*128*1280}')
    for i in range(5):
        a(f's_add_u32 m0, s71, {WCH[ch]+4096*i}')
        a(f'buffer_load_dwordx4 v{vW+i}, {s(SRD_G,4)}, s72 offen lds')


def spin(tag, off, n, slp=1):
    a(f's_branch L_spin1_{tag}')
    a.label(f'L_spin_{tag}')
    a(f's_sleep {slp}')
    a.label(f'L_spin1_{tag}')
    a(f'ds_read_b32 v{kt}, v{vCn} offset:{off}')
    a('s_waitcnt lgkmcnt(0)')
    a(f'v_readfirstlane_b32 s64, v{kt}')
    a(f's_cmp_ge_u32 s64, {n}')
    a(f's_cbranch_scc0 L_spin_{tag}')


def lds_inc(off):
    a('s_mov_b64 exec, 1')
    a(f'ds_add_u32 v{vCn}, v{vCn+1} offset:{off}')
    a('s_mov_b64 exec, -1')


def w_reads(ks):
    ch, kb = ks >> 2, ks & 3
    ad, base = (vWa, WCH[ch] - WCH[1]) if ch in (1, 2) else (vO, WCH[ch])
    return [f'ds_read_b128 {v(bF[ks%NR][T],4)}, v{ad} offset:{base+kb*5120+1024*T}' for T in range(5)]


def poll2(tag):
    a('s_cmp_lg_u32 s3, 0')
    a(f's_cbranch_scc1 L_e2ok_{tag}')
    a(f's_mov_b32 s66, {SPIN}')
    a.label(f'L_e2_{tag}')
    a('s_waitcnt vmcnt(0)')
    check4(vPd, sNon)
    a(f's_cbranch_vccz L_e2ok_{tag}')
    a('s_sleep 6')
    a(f'buffer_load_dwordx4 {v(vPd,4)}, v{vW}, {s(SRD_WS,4)}, s79 offen sc1')
    a('s_sub_u32 s66, s66, 1')
    a('s_cmp_lg_u32 s66, 0')
    a(f's_cbranch_scc1 L_e2_{tag}')
    a.label(f'L_e2ok_{tag}')


def preflag():
    a('s_cmp_lg_u32 s3, 3')
    a('s_cbranch_scc1 L_nopre')
    a(f'v_mov_b32 v{kt}, s{sNon}')
    a('s_mov_b64 exec, 15')
    a(f'buffer_store_dword v{kt}, v{vFl}, {s(SRD_WS,4)}, 0 offen sc0 sc1')
    a('s_mov_b64 exec, -1')
    a.label('L_nopre')


a.label('L_ql_main')
toks = [('I', 0)] + ([] if SPLIT else [('S', 0)]) + [('I', 1), ('W', 0)]
for i in range(1, 9):
    toks += [] + [('J' if SPLIT and i <= 4 else 'I', i + 1)] + [('W', i)]
toks += [('P', 0), ('W', 9)]
seqv = []
for tk, k in toks:
    if tk == 'I':
        if k > SPLIT:
            a('s_call_b64 s[60:61], L_issue')
        seqv += [('I', k)] * ((0 if DBG & 2 else 4) + (0 if DBG & 4 else 8))
        if k == 9:
            stamp(3)
    elif tk == 'J':
        pc = k - 1
        a('s_cmp_lt_u32 s3, 2')
        a(f's_cbranch_scc1 L_j{k}')
        a(f's_call_b64 s[60:61], L_p2setup{pc}')
        a('s_call_b64 s[60:61], L_issue')
        a(f's_branch L_jj{k}')
        a.label(f'L_j{k}')
        a('s_call_b64 s[60:61], L_issue')
        a(f's_call_b64 s[60:61], L_p2setup{pc}')
        a.label(f'L_jj{k}')
        seqv += [('I', k)] * 12
        if pc == 1:
            nonce_load()
    elif tk == 'C':
        wo_chunk(k)
        seqv += [('C', k)] * 5
    elif tk == 'P':
        a('s_cmp_lg_u32 s3, 0')
        a('s_cbranch_scc1 L_nop0')
        a(f'buffer_load_dwordx4 {v(vPd,4)}, v{vW}, {s(SRD_WS,4)}, s79 offen sc1')
        a.label('L_nop0')
    elif tk == 'S':
        nonce_load()
        for pc in range(1, 5):
            a(f's_call_b64 s[60:61], L_p2setup{pc}')
    elif tk == 'W':
        last = max([n for n, t_ in enumerate(seqv) if t_ == ('I', k)] + [-1])
        if k == 7:
            a('s_waitcnt lgkmcnt(0)')
            my_nonce(sNon)
        a(f's_waitcnt vmcnt({len(seqv)-1-last})')
        if k == 0:
            stamp(2)
            stamp(5, 6)
        if k == 9:
            poll2('q')
        a('s_barrier')
        if k < 3:
            stamp(6 + k, 6)
        if k == 9:
            stamp(4)
        if k < 9:
            stamp(k + 1, 3)
a.label('L_post9')
stamp(1, 4)
a('s_setprio 3')
for ch in range(5):
    if ch == 3:
        stamp(2, 4)
        spin('c', 4, 4, 2)
        stamp(3, 4)
    wo_chunk(ch)
    if ch == PPOS:
        a('s_cmp_lg_u32 s3, 0')
        a('s_cbranch_scc1 L_nop1')
        pload(vPd, vPa, 79)
        a.label('L_nop1')
stamp(4, 4)
a('s_cmp_lg_u32 s3, 0')
a('s_cbranch_scc1 L_nop3')
a(f's_waitcnt vmcnt({5*(4-PPOS)})')
check(vPd, sNon)
a('s_cbranch_vccz L_polled_d')
a(f's_mov_b32 s66, {SPIN}')
poll('d', vPa, vPd, 79, sNon, 66, SLP_D)
a('s_call_b64 s[60:61], L_setf')
a.label('L_nop3')
spin('f', 16, 1, 1)
a('s_call_b64 s[60:61], L_zissue')
stamp(5, 4)
a('s_waitcnt vmcnt(0)')
lds_inc(0)
stamp(6, 4)
if DEFER:
    spin('o1', 12, 5, 2)
a('s_setprio 0')
stamp(7, 4)
spin('a', 0, 4)
stamp(8, 4)
stamp(5, 1)
zr = [[f'ds_read_b64 {v(bF[st][T]+2*j2,2)}, v{vZa+T} offset:{(16*st+j2)*336}' for T in range(5) for j2 in range(2)] for st in range(4)]
for x in zr[0] + zr[1] + zr[2] + zr[3] + w_reads(4):
    a(x)
a('s_waitcnt lgkmcnt(5)')
for st in range(4):
    Mz = []
    for T in range(5):
        d = v(accD[T], 4)
        Mz.append(f'{mf} {d}, {v(bF[st][T],4)}, {v(WsF+4*st,4)}, {"0" if st == 0 else d}')
    for x in interleave(Mz, w_reads(st), per=1):
        a(x)
for ks in range(5, 8):
    for x in w_reads(ks):
        a(x)
stamp(9, 4)
if PFP == 1:
    preflag()
a('s_waitcnt vmcnt(0)')
for T in range(5):
    for r_ in range(4):
        a(f'v_mul_f32 v{accD[T]+r_}, v{accD[T]+r_}, v{vGt}')
a(f'v_sub_f32 v{vGt}, 1.0, v{vGt}')
a('s_waitcnt lgkmcnt(0)')
a('s_setprio 3')
stamp(6, 1)
a('s_cmp_lg_u32 s3, 1')
a('s_cbranch_scc1 L_b13')
if WAITO:
    spin('o2', 12, 9)
a(f's_mov_b32 s66, {SPIN}')
poll('q', vPq, vPd, 79, sNon, 66, SLP_Q)
a('s_cmp_ge_u32 s2, 2')
a('s_cbranch_scc1 L_b13')
a('s_lshl_b32 s65, s2, 2')
a(f's_add_u32 s65, s65, {N_OFF}')
a(f'v_mov_b32 v{kt}, s65')
a(f'v_mov_b32 v{kt+1}, s{sNon}')
a('s_mov_b64 exec, 1')
a(f'buffer_store_dword v{kt+1}, v{kt}, {s(SRD_WS,4)}, 0 offen')
a('s_mov_b64 exec, -1')
a.label('L_b13')
stamp(7, 1)
a('s_barrier')
stamp(8, 1)
stamp(1, 5)


def odma(i, first=False):
    hq2, r5 = divmod(i, 5)
    off = hq2 * 655360 + r5 * 1024 + (327680 - 2560 if r5 >= 3 else 0)
    return [f's_add_u32 m0, s{sImg}, {1024*i}', f's_add_u32 s64, s{sOb}, {off}',
            f'buffer_load_dwordx4 v{vO+(r5==2)}, {s(SRD_WS,4)}, s64 offen sc1 lds']


for i in range(NUP):
    for x in odma(i):
        a(x)
nissued = NUP
stamp(2, 5)


def o_read(ks):
    hq2, r5 = divmod(ks, 5)
    off = hq2 * 5120 + r5 * 64 + (2400 if r5 >= 3 else 0)
    return f'ds_read_b128 {v(oF[ks%NO],4)}, v{vOr+(r5==2)} offset:{off}'


def o_need(ks):
    hq2, r5 = divmod(ks, 5)
    return hq2 * 5 + (3 if r5 < 2 else 5)


def o_check(f):
    o = oF[f % NO]
    if CHK1:
        return [f'v_cmp_eq_u32 vcc, -1, v{o+3}']
    return [f'v_max3_u32 v{kt}, v{o}, v{o+1}, v{o+2}', f'v_max_u32 v{kt}, v{kt}, v{o+3}', f'v_cmp_eq_u32 vcc, -1, v{kt}']


OD = 3
lds_seq = []
vm_have = -1


def emit_o(ks):
    global vm_have
    n = o_need(ks)
    assert n <= nissued
    if n > vm_have:
        a(f's_waitcnt vmcnt({nissued-n})')
        vm_have = n
    a(o_read(ks))
    lds_seq.append(('o', ks))


for ks in range(OD):
    emit_o(ks)
a(f's_waitcnt lgkmcnt({OD-1})')
for x in o_check(0):
    a(x)
a('s_cbranch_vccnz L_retry0')
a.label('L_back0')
stamp(3, 5)
wq = [(ks, n, x) for ks in range(NR, 20) for n, x in enumerate(w_reads(ks))]
for ks in range(20):
    if ks + OD < 20:
        emit_o(ks + OD)
    need_ = [n for n, t_ in enumerate(lds_seq) if t_ in (('o', ks), ('o', ks + 1), ('w', ks))]
    assert not any(q[0] == ks for q in wq)
    a(f's_waitcnt lgkmcnt({min(15, len(lds_seq)-1-max(need_))})')
    C = o_check(ks + 1) if ks < 19 else []
    quota = 4 if ks % 2 else 3
    for T in range(5):
        d = v(accO[T], 4)
        a(f'{mf} {d}, {v(bF[ks%NR][T],4)}, {v(oF[ks%NO],4)}, {"0" if ks == 0 else d}')
        k_here = 1 if T else 0
        while k_here and quota and wq and (wq[0][0] - NR < ks or (wq[0][0] - NR == ks and wq[0][1] <= T)):
            q = wq.pop(0)
            a(q[2])
            lds_seq.append(('w', q[0]))
            k_here -= 1
            quota -= 1
        for x in C[T:T+1]:
            a(x)
        if T in (2, 4) and nissued < 20:
            for x in odma(nissued):
                a(x)
            nissued += 1
    if ks < 19:
        a(f's_cbranch_vccnz L_retry{ks+1}')
        a.label(f'L_back{ks+1}')
    if ks in (1, 4, 9, 14, 19):
        stamp({1:4, 4:5, 9:6, 14:7, 19:8}[ks], 5)
stamp(9, 1)
P = bF[0][0]
F = []
for T in range(5):
    for r_ in range(4):
        F.append(f'v_fma_f32 v{accD[T]+r_}, v{accO[T]+r_}, v{vGt}, v{accD[T]+r_}')
    F.append(f'{cvt} v{P+2*T}, v{accD[T]}, v{accD[T]+1}')
    F.append(f'{cvt} v{P+2*T+1}, v{accD[T]+2}, v{accD[T]+3}')
    if T in (1, 3):
        F.append(f'v_permlane16_swap_b32 v{P+2*T-2}, v{P+2*T}')
        F.append(f'v_permlane16_swap_b32 v{P+2*T-1}, v{P+2*T+1}')
        F.append(f'buffer_store_dwordx4 {v(P+2*T-2,4)}, v{vOut}, {s(SRD_C,4)}, 0 offen offset:{32*(T-1)}' + ['', ' sc1', ' nt', ' sc0 sc1'][OSC])
F.append(f'buffer_store_dwordx2 {v(P+8,2)}, v{vOut+1}, {s(SRD_C,4)}, 0 offen offset:128' + ['', ' sc1', ' nt', ' sc0 sc1'][OSC])
for x in F:
    a(x)
if PROF == 1:
    a(f's_sub_u32 s82, s80, s{sRet}')
    a('s_add_u32 s82, s82, 20000')
endpgm()

a.label('L_setf')
a('s_mov_b64 exec, 1')
a(f'ds_add_u32 v{vCn}, v{vCn+1} offset:16')
a(f'ds_add_u32 v{vCn}, v{vCn+1} offset:12')
a('s_mov_b64 exec, -1')
a('s_setpc_b64 s[60:61]')
a.label('L_zissue')
a(f'buffer_load_dword v{vGt}, v{vGa}, {s(SRD_WS,4)}, s{sGo} offen sc1')
a('s_mul_i32 s64, s3, 1008')
a(f's_add_u32 m0, s64, {ZIMG}')
a('s_mov_b32 exec_hi, 0x7fffffff')
for i in range(5):
    a(f'buffer_load_dwordx4 v{vZp}, {s(SRD_WS,4)}, s78 offen sc1 lds')
    a('s_add_u32 m0, m0, 4032')
    a('s_add_u32 s78, s78, 18432')
a('s_cmp_ge_u32 s3, 2')
a('s_cbranch_scc1 L_zret')
a(f'buffer_load_dwordx4 v{vZp}, {s(SRD_WS,4)}, s78 offen sc1 lds')
a.label('L_zret')
a('s_mov_b32 exec_hi, -1')
a('s_setpc_b64 s[60:61]')
for i in range(20):
    hq2, r5 = divmod(i, 5)
    off = hq2 * 655360 + r5 * 1024 + (327680 - 2560 if r5 >= 3 else 0)
    if r5 == 0:
        a.label(f'L_odma{hq2}')
    a(f's_add_u32 s64, s{sOb}, {off}')
    a(f'buffer_load_dwordx4 v{vO+(r5==2)}, {s(SRD_WS,4)}, s64 offen sc1 lds')
    a(f's_add_u32 m0, m0, 1024')
a('s_setpc_b64 s[60:61]')


def retry_stubs():
    for f in range(20):
        hq2 = f // 5
        a.label(f'L_retry{f}')
        a(f's_sub_u32 s{sRet}, s{sRet}, 1')
        a(f's_cbranch_scc1 L_giveup{f}')
        a(f's_sleep {SLP_R}')
        a(f's_add_u32 m0, s{sImg}, {hq2*5120}')
        a(f's_call_b64 s[60:61], L_odma{hq2}')
        a(f's_waitcnt vmcnt({20-o_need(min(19, f+OD-1))})')
        for k in range(f, min(20, f + OD)):
            a(o_read(k))
        a('s_waitcnt lgkmcnt(0)')
        for x in o_check(f):
            a(x)
        a(f's_cbranch_vccnz L_retry{f}')
        a(f's_branch L_back{f}')
        a.label(f'L_giveup{f}')
        a(f's_mov_b32 s{sRet}, 0')
        a(f's_branch L_back{f}')


a.label('L_qc')
a('s_setprio 2')
ra = RA(2, 256)
vXb = ra.get(2); vWb = ra.get(2)
vXc = ra.get(2); vWc = ra.get(2)
biasC = ra.get(4); biasP = ra.get(4); mCur = ra.get(2); mLo = ra.get(1); vOm = ra.get(1); vOr2 = ra.get(1)
Ec = ra.get(4); Cone = ra.get(4)
vOL = ra.get(1); vOG = ra.get(1); vX7 = ra.get(2); vC2 = ra.get(2); vFc = ra.get(2)
accQ = [ra.get(6) for b in range(NB)]
accK = [ra.get(4) for b in range(NB)]
accV = [ra.get(4) for b in range(NB)]
accR = [ra.get(4) for b in range(NB)]
fX = [[ra.get(4) for b in range(NB)] for k in range(2)]
fW = [[ra.get(4) for t in range(4)] for k in range(2)]
Vp = fW[0][0]; VRp = fW[1][0]
tmp = fX[1][0]
m_, g_ = tmp, tmp + 1
a('s_sub_u32 s9, s3, 4')
a('s_bfe_u32 s5, s2, 0x20001')
a('s_mul_i32 s12, s9, 40')
a(f'v_and_b32 v{m_}, 15, v0')
a(f'v_lshrrev_b32 v{g_}, 4, v0')
a(f'v_lshrrev_b32 v{tmp+2}, 1, v{m_}')
a(f'v_xor_b32 v{tmp+2}, v{tmp+2}, v{g_}')
a(f'v_lshlrev_b32 v{tmp+2}, 4, v{tmp+2}')
a(f'v_mul_u32_u24 v{tmp+3}, 896, v{m_}')
a(f'v_add_u32 v{vXb}, v{tmp+3}, v{tmp+2}')
a(f'v_xor_b32 v{vXb+1}, 64, v{vXb}')
a(f'v_lshrrev_b32 v{tmp+2}, 5, v0')
a(f'v_bfe_u32 v{tmp+3}, v0, 2, 3')
a(f'v_lshl_add_u32 v{tmp+2}, v{tmp+2}, 4, v{tmp+3}')
a(f'v_mul_u32_u24 v{tmp+2}, 480, v{tmp+2}')
a(f's_add_u32 s13, s12, {ABYTES}')
a(f'v_add_u32 v{tmp+2}, s13, v{tmp+2}')
a(f'v_and_b32 v{tmp+3}, 3, v0')
a(f'v_lshl_add_u32 v{vWb}, v{tmp+3}, 3, v{tmp+2}')
a(f'v_cmp_eq_u32 vcc, 1, v{tmp+3}')
a(f'v_min_u32 v{tmp+3}, 2, v{tmp+3}')
a(f'v_mul_u32_u24 v{tmp+3}, 160, v{tmp+3}')
a(f'v_add3_u32 v{vWb+1}, v{tmp+2}, v{tmp+3}, 32')
for r_ in range(4):
    a(f'v_cndmask_b32_e64 v{Cone+r_}, 0, 1.0, vcc')
for r_ in range(accQ[0], accR[-1] + 4, 2):
    a(f'v_mov_b64 {v(r_,2)}, 0')
a(f'v_mov_b32 v{vC2}, {CNT}')
a(f'v_mov_b32 v{vC2+1}, 1')
a(f'ds_write_b128 v{vC2}, {v(accK[0],4)}')
a(f'ds_write_b32 v{vC2}, v{accK[0]} offset:16')
NEG = hx(f2u(-1e30))
a(f'v_lshlrev_b32 v{tmp+2}, 2, v{g_}')
a(f'v_sub_u32 v{tmp+2}, v{m_}, v{tmp+2}')
a(f'v_mov_b32 v{tmp+4}, {NEG}')
for r_ in range(4):
    a(f'v_subrev_u32 v{tmp+3}, {r_}, v{tmp+2}')
    a(f'v_cmp_gt_u32 vcc, 8, v{tmp+3}')
    a(f'v_add_u32 v{tmp+3}, {16-r_}, v{tmp+2}')
    a(f'v_cmp_gt_u32 s[64:65], 8, v{tmp+3}')
    a(f'v_cndmask_b32_e64 v{biasC+r_}, v{tmp+4}, 0, vcc')
    a(f'v_cndmask_b32_e64 v{biasP+r_}, v{tmp+4}, 0, s[64:65]')
a(f'v_mov_b32 v{tmp+4}, 0xffff')
a(f'v_mov_b32 v{tmp+5}, 0xffff0000')
for d in range(2):
    a(f'v_cmp_le_i32 vcc, {2*d}, v{tmp+2}')
    a(f'v_cmp_le_i32 s[64:65], {2*d+1}, v{tmp+2}')
    a(f'v_cndmask_b32 v{mCur+d}, 0, v{tmp+4}, vcc')
    a(f'v_cndmask_b32_e64 v{tmp+3}, 0, v{tmp+5}, s[64:65]')
    a(f'v_or_b32 v{mCur+d}, v{mCur+d}, v{tmp+3}')
a(f'v_cmp_gt_u32 vcc, 32, v0')
a(f'v_mul_u32_u24 v{tmp+2}, {OROW}, v{m_}')
a(f's_add_u32 s13, s12, {OST}')
a(f'v_cndmask_b32_e64 v{mLo}, 0, -1, vcc')
a(f'v_add_u32 v{tmp+2}, s13, v{tmp+2}')
a(f'v_lshl_add_u32 v{vOm}, v{g_}, 3, v{tmp+2}')
a(f'v_lshl_add_u32 v{vOr2}, v{g_}, 1, v{tmp+2}')
a(f'v_mov_b64 {v(Ec,2)}, 0')
a(f'v_mov_b64 {v(Ec+2,2)}, 0')
a('s_mov_b32 exec_lo, 0')
a('s_mov_b32 exec_hi, 0x01000001')
a(f'v_mov_b32 v{Ec+2}, 0x3f80')
a('s_mov_b32 exec_hi, 0x10000010')
a(f'v_mov_b32 v{Ec+2}, 0x3f800000')
a('s_mov_b64 exec, -1')
a(f'v_mov_b64 {v(vXc,2)}, {v(vXb,2)}')
a(f'v_mov_b64 {v(vWc,2)}, {v(vWb,2)}')
sOG = 40
OMASK = [44, 46, 48, 50]


def o_store_setup():
    t = tmp
    a(f's_mul_i32 s66, s7, {U}')
    a('s_cmp_eq_u32 s7, 0')
    a('s_cselect_b32 s68, 0, 7')
    a('s_add_u32 s66, s66, s68')
    a('s_sub_u32 s66, s66, s10')
    a('s_lshl_b32 s67, s9, 2')
    a('s_sub_u32 s66, s66, s67')
    a('s_add_u32 s68, s67, s10')
    a('s_lshl_b32 s69, s8, 5')
    a('s_add_u32 s69, s69, s4')
    a('s_mul_i32 s69, s69, 10240')
    a(f'v_mul_u32_u24 v{t}, 205, v0')
    a(f'v_lshrrev_b32 v{t}, 11, v{t}')
    a(f'v_lshlrev_b32 v{vOG}, 4, v0')
    a(f'v_mul_u32_u24 v{t+1}, {OBLK-160}, v{t}')
    a(f's_mul_i32 s67, s67, {OROW}')
    a(f's_add_u32 s67, s67, {OST}')
    a(f'v_add3_u32 v{vOL}, v{t+1}, v{vOG}, s67')
    a(f'v_lshl_add_u32 v{t+1}, v{t}, 4, 16')
    a(f'v_cmp_gt_u32 vcc, 60, v0')
    a(f'v_cndmask_b32 v{t+1}, -16, v{t+1}, vcc')
    for i in range(4):
        a(f's_add_u32 s72, s68, {i}')
        a(f's_and_b32 s73, s72, 15')
        a(f's_mul_i32 s73, s73, 20480')
        a(f's_lshr_b32 s72, s72, 4')
        a(f's_mul_i32 s72, s72, 160')
        a(f's_add_u32 s72, s72, s73')
        a(f's_add_u32 s{sOG+i}, s72, s69')
        a(f's_sub_u32 s72, s66, {i}')
        a(f'v_cmp_le_i32 s[{OMASK[i]}:{OMASK[i]+1}], s72, v{t+1}')
    a(f'v_mul_u32_u24 v{t+1}, {OROW-160}, v{t}')
    a(f'v_add3_u32 v{vX7}, v{t+1}, v{vOG}, s67')
    a(f'v_add_u32 v{t+2}, s68, v{t}')
    a(f'v_and_b32 v{t+3}, 15, v{t+2}')
    a(f'v_mul_u32_u24 v{t+3}, 20480, v{t+3}')
    a(f'v_lshrrev_b32 v{t+2}, 4, v{t+2}')
    a(f'v_sub_u32 v{t+2}, v{t+2}, v{t}')
    a(f'v_mul_i32_i24 v{t+2}, 160, v{t+2}')
    a(f'v_add3_u32 v{t+2}, v{t+2}, v{t+3}, v{vOG}')
    a(f'v_add_u32 v{t+2}, s69, v{t+2}')
    a(f'v_mov_b32 v{t+1}, {hx(OOB)}')
    a(f'v_cmp_le_i32 vcc, s66, v{t}')
    a(f'v_cndmask_b32 v{t+2}, v{t+1}, v{t+2}, vcc')
    a(f'v_cmp_gt_u32 vcc, 40, v0')
    a(f'v_cndmask_b32 v{vX7+1}, v{t+1}, v{t+2}, vcc')


o_store_setup()
a('s_mul_i32 s64, s5, 20')
a('s_add_u32 s64, s64, s6')
a('s_lshl_b32 s64, s64, 7')
a('s_lshl_b32 s65, s4, 15')
a('s_add_u32 s64, s64, s65')
a(f's_add_u32 s64, s64, {F_OFF+16384}')
a(f'v_lshl_add_u32 v{vFc}, v0, 16, s64')
a('s_cmp_eq_u32 s3, 7')
a('s_cselect_b32 s64, 4, 0')
a(f'v_mov_b32 v{tmp}, {hx(OOB)}')
a(f'v_cmp_gt_u32 vcc, s64, v0')
a(f'v_cndmask_b32 v{vFc}, v{tmp}, v{vFc}, vcc')
CS = 20 ** -0.5 * math.log2(math.e)
a(f's_mov_b32 s66, {hx(f2u(CS))}')
a(f's_mov_b32 s67, {hx(f2u(CS))}')


def q_reads(kk):
    W = []
    for t in range(4):
        for bs in range(2):
            ad, off = (vWc, kk * 15360 + t * 160 + bs * 3840) if t < 3 else (vWc + 1, kk * 15360 + bs * 3840)
            W.append(f'ds_read_b64_tr_b16 {v(fW[kk][t]+2*bs,2)}, v{ad} offset:{off}')
    X = [f'ds_read_b128 {v(fX[kk][b],4)}, v{vXc+kk} offset:{128*b}' for b in range(NB)]
    if DBG & 8:
        return X[:1]
    return W + X


def q_mfmas(kk):
    L = []
    for b in range(NB):
        x = v(fX[kk][b], 4)
        for t, acc in ((0, accQ), (1, accK), (2, accV), (3, accR)):
            w = v(fW[kk][t], 4)
            d = v(acc[b], 4)
            L.append(f'{mf} {d}, {x}, {w}, {d}' if t == 2 else f'{mf} {d}, {w}, {x}, {d}')
    if DBG & 1:
        L = L[:1]
    return L


a('s_mov_b32 s14, 0')
a('s_mov_b32 s15, 10')
stamp(1, 6)
a('s_waitcnt lgkmcnt(0)')
stamp(2, 6)
nonce_load()
srd(SRD_WS, S_WS, WS_SIZE)
stamp(1)
a('s_barrier')
stamp(2)
for x in q_reads(0):
    a(x)
a('.p2align 3')
a.label('L_qc_loop')
a('s_waitcnt lgkmcnt(0)')
a('s_sub_u32 s15, s15, 1')
a(f's_add_u32 s14, s14, {SL}')
a(f's_cmp_eq_u32 s14, {3*SL}')
a('s_cselect_b32 s14, 0, s14')
a('s_cmp_eq_u32 s15, 0')
fill = q_reads(1) + [f'v_add_u32_e64 v{vXc}, s14, v{vXb}', f'v_add_u32_e64 v{vXc+1}, s14, v{vXb+1}',
                     f'v_add_u32_e64 v{vWc}, s14, v{vWb}', f'v_add_u32_e64 v{vWc+1}, s14, v{vWb+1}']
for x in interleave(q_mfmas(0), fill):
    a(x)
a('s_waitcnt lgkmcnt(0)')
a('s_cbranch_scc1 L_qc_last')
a('s_nop 0' if DBG & 16 else 's_barrier')
a('s_nop 0')
for x in interleave(q_mfmas(1), q_reads(0)):
    a(x)
a('s_branch L_qc_loop')
a.check_backedge('L_qc_loop')
a.label('L_qc_last')
stamp(3)
a('s_mov_b64 exec, 1')
a(f'ds_add_u32 v{vC2}, v{vC2+1} offset:4')
a('s_mov_b64 exec, -1')
my_nonce(64)
a(f'v_mov_b32 v{vFc+1}, s64')
a('s_cmp_eq_u32 s3, 7')
FLAG = f'buffer_store_dword v{vFc+1}, v{vFc}, {s(SRD_WS,4)}, 0 offen sc0 sc1'
B = range(NB)
E = list(q_mfmas(1))
e = E.append
SC = fX[0]; SP = fX[1]
for b in B:
    q, k, r, vv = accQ[b], accK[b], accR[b], accV[b]
    e(f'{cvt} v{q+3}, v{q+2}, v{q+3}')
    e(f'{cvt} v{q+2}, v{q}, v{q+1}')
    e(f'{cvt} v{k}, v{k}, v{k+1}')
    e(f'{cvt} v{k+1}, v{k+2}, v{k+3}')
    e(f'{cvt} v{q+4}, v{r}, v{r+1}')
    e(f'{cvt} v{k+3}, v{r+2}, v{r+3}')
    e(f'v_permlane16_swap_b32 v{q+4}, v{k+3}')
    e(f'v_and_b32 v{k+2}, v{mLo}, v{k+3}')
    e(f'{cvt} v{Vp+2+2*b}, v{vv}, v{vv+1}')
    e(f'{cvt} v{Vp+3+2*b}, v{vv+2}, v{vv+3}')
    e(f'{mf} {v(SC[b],4)}, {v(k,4)}, {v(q+2,4)}, {v(biasC,4)}')
    if b:
        e(f'{mf} {v(vv,4)}, {v(accK[b-1],4)}, {v(q+2,4)}, {v(biasP,4)}')
    e(f'{mf} {v(r,4)}, {v(q+2,4)}, {v(Ec,4)}, {v(Cone,4)}')
    e(f'{cvt} v{VRp+2+2*b}, v{r}, v{r+1}')
    e(f'{cvt} v{VRp+3+2*b}, v{r+2}, v{r+3}')
    if b:
        for r_ in range(4):
            e(f'v_max_f32 v{SC[b]+r_}, v{SC[b]+r_}, v{vv+r_}')
    e(f'v_max3_f32 v{q}, v{SC[b]}, v{SC[b]+1}, v{SC[b]+2}')
    e(f'v_max_f32 v{q}, v{q}, v{SC[b]+3}')
M = [accQ[b] for b in B]
for grp in ([0, 1, 2, 3], [4, 5, 6]):
    A_, B_, C_ = M[grp[0]], M[grp[1]], M[grp[2]]
    e(f'v_permlane16_swap_b32 v{A_}, v{B_}')
    e(f'v_max_f32 v{A_}, v{A_}, v{B_}')
    if len(grp) == 4:
        D_ = M[grp[3]]
    else:
        D_ = C_ + 1
        e(f'v_mov_b32 v{D_}, v{C_}')
    e(f'v_permlane16_swap_b32 v{C_}, v{D_}')
    e(f'v_max_f32 v{C_}, v{C_}, v{D_}')
    e(f'v_permlane32_swap_b32 v{A_}, v{C_}')
    e(f'v_max_f32 v{A_}, v{A_}, v{C_}')
    e(f'v_mul_f32 v{C_}, {hx(f2u(-CS))}, v{A_}')
    e(f'v_mul_f32 v{A_}, {hx(f2u(-CS))}, v{A_}')
    e(f'v_permlane32_swap_b32 v{A_}, v{C_}')
    e(f'v_mov_b32 v{B_}, v{A_}')
    e(f'v_permlane16_swap_b32 v{A_}, v{B_}')
    if len(grp) == 4:
        e(f'v_mov_b32 v{D_}, v{C_}')
        e(f'v_permlane16_swap_b32 v{C_}, v{D_}')
E2 = len(E)
for b in B:
    q, k, r, vv = accQ[b], accK[b], accR[b], accV[b]
    c_, p_ = SC[b], SP[b]
    if PK:
        for r_ in (0, 2):
            e(f'v_pk_fma_f32 {v(c_+r_,2)}, {v(c_+r_,2)}, s[66:67], {v(q,2)} op_sel_hi:[1,1,0]')
    else:
        for r_ in range(4):
            e(f'v_fma_f32 v{c_+r_}, v{c_+r_}, s66, v{q}')
    for r_ in range(4):
        e(f'v_exp_f32 v{c_+r_}, v{c_+r_}')
    e(f'{cvt} v{c_}, v{c_}, v{c_+1}')
    e(f'{cvt} v{c_+1}, v{c_+2}, v{c_+3}')
    e(f'v_and_b32 v{p_+2}, v{mCur}, v{c_}')
    e(f'v_and_b32 v{p_+3}, v{mCur+1}, v{c_+1}')
    e(f'v_xor_b32 v{p_}, v{p_+2}, v{c_}')
    e(f'v_xor_b32 v{p_+1}, v{p_+3}, v{c_+1}')
    e(f'{mf} {v(r,4)}, {v(VRp+2*b,4)}, {v(p_,4)}, 0')
    e(f'{mf} {v(vv,4)}, {v(Vp+2*b,4)}, {v(p_,4)}, 0')
    e(f'v_rcp_f32 v{r+1}, v{r+1}')
    if PK:
        for x in (vv, vv + 2):
            e(f'v_pk_mul_f32 {v(x,2)}, {v(x,2)}, {v(r,2)} op_sel:[0,1] op_sel_hi:[1,1]')
    else:
        for x in range(vv, vv + 4):
            e(f'v_mul_f32 v{x}, v{x}, v{r+1}')
    e(f'v_mul_f32 v{r+2}, v{r}, v{r+1}')
    e(f'{cvt} v{vv}, v{vv}, v{vv+1}')
    e(f'{cvt} v{vv+1}, v{vv+2}, v{vv+3}')
    e(f'{cvt} v{r+2}, v{r+2}, v{r+2}')
    e(f'ds_write_b64 v{vOm}, {v(vv,2)} offset:{OBLK*b}')
    e(f'ds_write_b16 v{vOr2}, v{r+2} offset:{OBLK*b+32}')
E, est = schedule(E, by_order_from=E2)
print('epilogue instrs', len(E), 'est cycles', est)
if PFP == 2 and FPOS >= 0:
    E[len(E) - FPOS:len(E) - FPOS] = ['s_cbranch_scc0 L_noflg', FLAG, 'L_noflg:']
for x in E:
    a(x)
stamp(4)
a('s_mov_b64 exec, 1')
a(f'ds_add_u32 v{vC2}, v{vC2+1} offset:12')
a('s_mov_b64 exec, -1')
a.label('L_spin_o')
a(f'ds_read_b32 v{tmp}, v{vC2} offset:12')
a('s_waitcnt lgkmcnt(0)')
a(f'v_readfirstlane_b32 s64, v{tmp}')
a('s_cmp_ge_u32 s64, 5')
a('s_cbranch_scc0 L_spin_o')
stamp(5)
vOD = fX[0][0]
for i in range(4):
    a(f'ds_read_b128 {v(vOD+4*i,4)}, v{vOL} offset:{OBLK+OROW*i}')
a(f'ds_read_b128 {v(vOD+16,4)}, v{vX7}')
for i in range(4):
    a(f's_mov_b64 exec, s[{OMASK[i]}:{OMASK[i]+1}]')
    a(f's_waitcnt lgkmcnt({4-i})')
    a(f'buffer_store_dwordx4 {v(vOD+4*i,4)}, v{vOG}, {s(SRD_WS,4)}, s{sOG+i} offen offset:160 sc1')
a('s_mov_b64 exec, -1')
a('s_waitcnt lgkmcnt(0)')
a(f'buffer_store_dwordx4 {v(vOD+16,4)}, v{vX7+1}, {s(SRD_WS,4)}, 0 offen sc1')
if PFP == 2 and FPOS < 0:
    a(FLAG)
if WAITO:
    a('s_mov_b64 exec, 1')
    a(f'ds_add_u32 v{vC2}, v{vC2+1} offset:12')
    a('s_mov_b64 exec, -1')
stamp(6)
a('s_barrier')
endpgm()

a.label('L_other')
a('s_cmp_ge_u32 s2, 256')
a('s_cbranch_scc1 L_exit')
a('s_bfe_u32 s5, s2, 0x20001')
a('s_cmp_lt_u32 s2, 64')
a('s_cbranch_scc1 L_dft')
a('s_sub_u32 s7, s6, 20')
a('s_mov_b32 s8, 2')
a('s_sub_u32 s6, s2, 160')
a('s_branch L_dft2')
a.label('L_dft')
a('s_lshr_b32 s7, s2, 4')
a('s_bfe_u32 s8, s2, 0x10003')
a('s_mov_b32 s6, s2')
a.label('L_dft2')
a('s_lshl_b32 s9, s5, 2')
a('s_add_u32 s7, s7, s9')
dX = 2; dWr = 3
dD = 96
a(f'v_mov_b32 v16, {CNT}')
a(f'v_mov_b32 v17, {CNT}')
a('v_mov_b32 v1, 1')
a('v_mov_b32 v18, 0')
a('v_mov_b32 v19, 4')
a('v_mov_b32 v20, 0')
a('v_mov_b32 v21, 8')
a('ds_write_b128 v16, v[18:21]')
a('v_mov_b64 v[4:5], 0')
a('v_mov_b64 v[6:7], 0')
a('ds_write_b128 v16, v[4:7] offset:16')
a(f'v_lshrrev_b32 v8, 3, v0')
a(f'v_mul_u32_u24 v9, 81920, v8')
a(f'v_and_b32 v10, 7, v0')
a(f'v_lshl_add_u32 v{dX}, v10, 4, v9')
a('s_lshr_b32 s14, s3, 2')
a('s_xor_b32 s14, s14, s8')
a('s_and_b32 s14, s14, 1')
a('s_lshl_b32 s10, s7, 1')
a('s_add_u32 s9, s14, s10')
a('s_lshl_b32 s9, s9, 1')
a('s_add_u32 s62, s9, s4')
a('s_and_b32 s63, s3, 3')
a('s_lshl_b32 s10, s63, 9')
a('s_add_u32 s9, s62, s10')
a('s_mul_i32 s9, s9, 1280')
a('s_lshl_b32 s15, s14, 2')
a('s_add_u32 s15, s15, s63')
a('s_mul_i32 s15, s15, 5120')
a('v_lshlrev_b32 v13, 4, v0')
if not ROT:
    a('s_lshr_b32 s66, s6, 3')
    a('s_lshl1_add_u32 s66, s66, s3')
    a('s_lshl_b32 s67, s66, 6')
    a('v_add_u32 v30, s67, v0')
    a('v_mul_u32_u24 v31, 2560, v30')
    a('v_subrev_u32 v30, 576, v30')
    a('v_mul_u32_u24 v32, 13108, v30')
    a('v_lshrrev_b32 v32, 16, v32')
    a('v_mul_u32_u24 v32, 5, v32')
    a('v_add_lshl_u32 v30, v32, v30, 7')
    a('s_bitcmp1_b32 s2, 1')
    a(f's_cselect_b32 s67, {2*525}, 0')
    a('s_add_u32 s67, s67, s4')
    a('s_mulk_i32 s67, 1280')
    a('s_and_b32 s68, s2, 4')
    a('s_mulk_i32 s68, 160')
    a('s_cmp_lt_u32 s66, 9')
    a('s_cselect_b64 vcc, -1, 0')
    a('s_cselect_b32 s67, s67, s68')
    a('s_mov_b32 s69, 245760')
    a('s_cselect_b32 s68, 128, s69')
    a('v_cndmask_b32 v30, v30, v31, vcc')
    a(f's_mov_b32 s{SRD_C+3}, 0x20000')
    a('s_mov_b32 s69, 2457600')
    a(f's_cselect_b32 s{SRD_C+2}, 2621440, s69')
a('s_waitcnt lgkmcnt(0)')
stamp(1)
a('s_barrier')
if not ROT:
    a(f's_cselect_b64 s[{SRD_C}:{SRD_C+1}], s[{S_X}:{S_X+1}], s[{S_WQKV}:{S_WQKV+1}]')
    a('s_cmp_ge_u32 s3, 2')
    a('s_cbranch_scc1 L_noph0')
    for st in range(PH1):
        if st >= PH0:
            a(f'buffer_load_dword v{33}, v30, {s(SRD_C,4)}, s67 offen')
        a('s_add_u32 s67, s67, s68')
    a.label('L_noph0')
a('s_sub_u32 s70, s3, 2')
a('s_mul_i32 s70, s70, 96')
a('s_add_u32 s70, s70, s6')
a('s_cmp_ge_u32 s70, 160')
a('s_cselect_b32 s74, 0, 1')
a('v_mov_b32 v27, 0')
a('s_cbranch_scc1 L_nopack0')
srd(SRD_B, S_WO, 819200)
a('s_and_b32 s71, s70, 7')
a('s_lshr_b32 s70, s70, 3')
a('s_mul_i32 s64, s70, 256')
a('s_add_u32 s64, s64, s71')
a('s_mul_i32 s64, s64, 160')
a('s_mul_i32 s65, s3, 5120')
a('s_add_u32 s65, s65, 81920')
a('v_mul_u32_u24 v24, 52, v0')
a('v_lshrrev_b32 v24, 9, v24')
a('v_mul_u32_u24 v24, 1120, v24')
a('v_add_u32 v24, v24, v13')
a('s_mov_b32 exec_hi, 0xff')
for i in range(8):
    a(f's_add_u32 m0, s65, {640*i}')
    a(f's_add_u32 s66, s64, {swap23(4*i)*1280}')
    a(f'buffer_load_dwordx4 v24, {s(SRD_B,4)}, s66 offen lds')
a('s_mov_b32 exec_hi, -1')
a('v_lshrrev_b32 v25, 5, v0')
a('v_bfe_u32 v26, v0, 2, 3')
a('v_lshl_add_u32 v25, v25, 4, v26')
a('v_mul_u32_u24 v25, 160, v25')
a('v_and_b32 v26, 3, v0')
a('v_lshl_add_u32 v25, v26, 3, v25')
a('v_add_u32 v27, s65, v25')
a('s_mul_i32 s71, s71, 20')
a('s_add_u32 s71, s71, s70')
a('s_mul_i32 s71, s71, 5120')
a(f's_add_u32 s71, s71, {P_OFF}')
a('s_add_u32 s70, s71, 4096')
a.label('L_nopack0')
a('s_mov_b32 m0, s15')
srd(SRD_X, S_X, 2621440)
srd(SRD_G, S_GW, 1280)


def x_loads():
    for l in range(5):
        a(f'buffer_load_dwordx4 {v(dD+8*l,4)}, v{dX}, {s(SRD_X,4)}, s75 offen offset:{128*l}')
        a(f'buffer_load_dwordx4 {v(dD+8*l+4,4)}, v{dX}, {s(SRD_X,4)}, s75 offen offset:{128*l+640}')


a('s_mov_b32 s75, s9')
if CLATE:
    a('s_cmp_ge_u32 s3, 4')
    a('s_cbranch_scc1 L_noxl')
a(f'buffer_load_dwordx4 v13, {s(SRD_G,4)}, 0 offen lds')
a(f'buffer_load_dwordx4 v13, {s(SRD_G,4)}, 0 offen offset:1024 lds')
x_loads()
a.label('L_noxl')
nonce_load()
srd(SRD_WS, S_WS, WS_SIZE)
a(f'v_lshrrev_b32 v11, 4, v0')
a(f'v_xor_b32 v11, v11, v10')
a('s_and_b32 s9, s3, 1')
a('s_lshl_b32 s9, s9, 2')
a('v_xor_b32 v11, s9, v11')
a(f'v_lshlrev_b32 v12, 7, v8')
a(f'v_lshl_add_u32 v12, v11, 4, v12')
a(f'v_add_u32 v{dWr}, s15, v12')
a('s_lshl_b32 s11, s8, 31')
a('s_or_b32 s11, s11, 0x3f803f80')
a('s_mov_b32 s12, 0x05040100')
a('s_mov_b32 s13, 0x07060302')
a('v_mov_b64 v[28:29], -1')
a('s_cmp_lt_u32 s3, 4')
a('s_cbranch_scc1 L_fold')
a('s_setprio 2')
rd = RA(24, 96)
vF = rd.get(4); vZ = rd.get(2); t0 = rd.get(6)
cC = rd.get(8); cP = rd.get(8); cN = rd.get(8)
gc = rd.get(8); gs = rd.get(8); gS = rd.get(2)
hc, hs = 160, 168
pB = [rd.get(8), rd.get(8)]
acc = [[176, 192], [208, 224]]
gu = 240
a(f'v_and_b32 v{t0}, 31, v0')
a(f'v_lshrrev_b32 v{t0+1}, 5, v0')
a(f'v_cvt_f32_u32 v{t0+2}, v{t0}')
a(f'v_cvt_f32_u32 v{t0+4}, v{t0+1}')
a(f'v_mul_f32 v{t0+3}, v{t0+4}, v{t0+2}')
a(f'v_mul_f32 v{t0+3}, {hx(f2u(0.125))}, v{t0+3}')
for i in range(8):
    for e in range(2):
        r_ = 2 * i + e
        kap = 8 * (r_ >> 2) + (r_ & 3)
        a(f'v_fmamk_f32 v{gu+e}, v{t0+2}, {hx(f2u(kap/32.0))}, v{t0+3}')
    for e in range(2):
        a(f'v_cos_f32 v{gu+2+e}, v{gu+e}')
        a(f'v_sin_f32 v{gu+4+e}, v{gu+e}')
    a(f'{cvt} v{cC+i}, v{gu+2}, v{gu+3}')
    a(f'{cvt} v{cN+i}, v{gu+4}, v{gu+5}')
    a(f'v_xor_b32 v{cP+i}, 0x80008000, v{cN+i}')
if CLATE == 1:
    x_loads()
a('s_cmp_eq_u32 s8, 2')
a('s_cselect_b32 s22, s63, s8')
a('s_cselect_b32 s23, 4, s63')
a('s_cselect_b32 s24, s63, 0')
a('s_mul_i32 s24, s24, 40960')
a('s_lshl_b32 s25, s23, 6')
a('s_add_u32 s25, s25, s22')
a(f'v_lshl_add_u32 v{gu}, v{t0}, 1, s25')
a(f'v_cmp_eq_u32 vcc, 0, v{gu}')
a(f'v_cvt_f32_u32 v{gu}, v{gu}')
a(f'v_mul_f32 v{gu}, {hx(f2u(1/640.0))}, v{gu}')
a(f'v_mul_f32 v{gS+1}, {hx(f2u(16.0))}, v{gu}')
a(f'v_mul_f32 v{gs}, v{t0+4}, v{gu}')
a(f'v_mul_f32 v{gs}, {hx(f2u(8.0))}, v{gs}')
a(f'v_cos_f32 v{gS}, v{gS+1}')
for jj in range(1, 8):
    a(f'v_fmamk_f32 v{gs+jj}, v{gu}, {hx(f2u(float(jj)))}, v{gs}')
for jj in range(8):
    a(f'v_sub_f32 v{hs+jj}, v{gs+jj}, v{gS+1}')
a(f'v_add_f32 v{gS}, v{gS}, v{gS}')
for c_, s_ in ((gc, gs), (hc, hs)):
    for jj in range(8):
        a(f'v_cos_f32 v{c_+jj}, v{s_+jj}')
    for jj in range(8):
        a(f'v_sin_f32_e64 v{s_+jj}, -v{s_+jj}')
    for jj in range(8):
        a(f'v_cndmask_b32_e64 v{s_+jj}, v{s_+jj}, {"1.0" if jj % 2 == 0 else "-1.0"}, vcc')
for jj in range(4):
    a(f'{cvt} v{pB[0]+jj}, v{gc+2*jj}, v{gc+2*jj+1}')
    a(f'{cvt} v{pB[0]+4+jj}, v{gs+2*jj}, v{gs+2*jj+1}')
for r_ in range(176, 240, 2):
    a(f'v_mov_b64 {v(r_,2)}, 0')
a(f'v_lshrrev_b32 v{t0+2}, 3, v{t0}')
a(f'v_mul_u32_u24 v{t0+2}, 5120, v{t0+2}')
a(f'v_lshl_add_u32 v{t0+2}, v10, 7, v{t0+2}')
a(f'v_bfe_u32 v{t0+3}, v0, 1, 3')
a(f'v_xor_b32 v{t0+3}, v{t0+3}, v{t0+1}')
a(f'v_lshl_add_u32 v{t0+2}, v{t0+3}, 4, v{t0+2}')
for q in range(4):
    a(f'v_xor_b32 v{vF+q}, {32*q}, v{t0+2}')
    a(f'v_add_u32 v{vF+q}, s24, v{vF+q}')
a(f'v_mul_u32_u24 v{t0+3}, {4*98304}, v{t0+1}')
a(f'v_lshl_add_u32 v{vZ}, v{t0}, 3, v{t0+3}')
a(f'v_add_u32 v{t0+3}, 1280, v{t0+3}')
a(f'v_mov_b32 v{t0+4}, {hx(OOB)}')
a(f'v_cndmask_b32 v{vZ+1}, v{t0+4}, v{t0+3}, vcc')
a(f'v_cndmask_b32_e64 v{t0+5}, -1, 0, vcc')
if CLATE == 2:
    x_loads()
a.label('L_fold')
stamp(2)
gw = 136
a(f'v_mov_b32 v14, {hx(OOB)}')
a('s_cmp_lg_u32 s14, s8')
a('s_cbranch_scc1 L_fold_go')
a(f'v_lshl_add_u32 v14, v10, 4, s15')
a(f's_waitcnt vmcnt({10+PFE})')
for i in range(10):
    a(f'ds_read_b128 {v(gw+4*i,4)}, v14 offset:{128*i}')
ga = 40
for q in range(4):
    a(f'v_mov_b32 v{ga+q}, 0')
a('s_and_b32 s64, s62, 31')
a('s_lshl_b32 s64, s64, 8')
a('s_lshr_b32 s65, s62, 5')
a('s_lshl_b32 s65, s65, 2')
a('s_add_u32 s64, s64, s65')
a('s_lshl_b32 s65, s63, 6')
a('s_add_u32 s64, s64, s65')
a(f's_add_u32 s64, s64, {G_OFF}')
a('v_lshl_add_u32 v14, v8, 3, s64')
a(f'v_mov_b32 v15, {hx(OOB)}')
a('v_cmp_eq_u32 vcc, 0, v10')
a('v_cndmask_b32 v14, v15, v14, vcc')
a('s_waitcnt lgkmcnt(0)')
a.label('L_fold_go')
t = 248
a(f'v_mov_b32 v15, s11')
for l in range(5):
    a(f's_waitcnt vmcnt({8-2*l+PFE})')
    lo, hi = dD + 8 * l, dD + 8 * l + 4
    o_ = 4 if l % 2 == 0 else 20
    for q in range(4):
        a(f'v_perm_b32 v{t+2*q}, v{hi+q}, v{lo+q}, s12')
        a(f'v_perm_b32 v{t+2*q+1}, v{hi+q}, v{lo+q}, s13')
    for q in range(8):
        a(f'v_dot2_f32_bf16 v{t+q}, v{t+q}, v15, 0')
    for q in range(4):
        a(f'{cvt} v{o_+q}, v{t+2*q}, v{t+2*q+1}')
    a(f'ds_write_b128 v{dWr}, {v(o_,4)} offset:{l*1024}')
a('s_cmp_lg_u32 s8, 2')
a('s_cbranch_scc1 L_fold_done')
a('s_mov_b32 s8, 3')
a('s_mov_b32 s11, 0xbf803f80')
a(f'v_add_u32 v{dWr}, 40960, v{dWr}')
a('s_branch L_fold_go')
a.label('L_fold_done')
a('s_mov_b64 exec, 1')
a('ds_add_u32 v17, v1 offset:24')
a('s_mov_b64 exec, -1')
stamp(3)
a('s_cmp_ge_u32 s3, 4')
a('s_cbranch_scc1 L_dc')
fl = 200
a('s_waitcnt lgkmcnt(0)')
a(f'v_mov_b32 v{fl+1}, s{S_N}')
a(f'v_mov_b32 v{fl+2}, s{S_N+1}')
a(f'v_and_b32 v{fl+3}, 1, v0')
a(f'v_cmp_eq_u32 vcc, 1, v{fl+3}')
a(f'v_cndmask_b32 v{fl+1}, v{fl+1}, v{fl+2}, vcc')
a(f'v_add_u32 v{fl+1}, 1, v{fl+1}')
a('s_setprio 3')
a('s_cmp_ge_u32 s3, 2')
a('s_cbranch_scc1 L_side23')
if not ROT:
    for st in range(PH1, 10):
        a(f'buffer_load_dword v{33}, v30, {s(SRD_C,4)}, s67 offen')
        a('s_add_u32 s67, s67, s68')
        a(f's_waitcnt vmcnt({PACE})')
if CWAIT:
    a('ds_write_b32 v17, v17 offset:20')
if PFP2:
    a('s_and_b32 s64, s2, 7')
    a('s_lshl_b32 s64, s64, 15')
    a(f's_add_u32 s64, s64, {F_OFF+F2}')
    a('v_min_u32 v34, 23, v0')
    a('v_lshlrev_b32 v34, 7, v34')
    my_nonce(65)
    a(f'buffer_load_dwordx4 v[36:39], v34, {s(SRD_WS,4)}, s64 offen sc1')
    a('s_lshr_b32 s66, s6, 3')
    a('s_lshl1_add_u32 s66, s66, s3')
    a(f's_mul_i32 s66, s66, {267*128}')
    a(f's_add_u32 s66, s66, {P_OFF}')
    a('v_lshlrev_b32 v34, 7, v0')
    a('s_waitcnt vmcnt(0)')
    check4(36, 65)
    a('s_cbranch_vccnz L_sidedone')
    for i in range(5):
        if i == 4:
            a('s_mov_b64 exec, 0x7ff')
        a(f'buffer_load_dword v33, v34, {s(SRD_WS,4)}, s66 offen sc1')
        a('s_add_u32 s66, s66, 8192')
    a('s_mov_b64 exec, -1')
a('s_branch L_sidedone')
a.label('L_side23')
a('s_cmp_eq_u32 s74, 0')
a('s_cbranch_scc1 L_nopack')
for T in range(5):
    for bs in range(2):
        a(f'ds_read_b64_tr_b16 {v(180+4*T+2*bs,2)}, v27 offset:{bs*1280+32*T}')
a('s_waitcnt lgkmcnt(0)')
for T in range(4):
    a(f'buffer_store_dwordx4 {v(180+4*T,4)}, v13, {s(SRD_WS,4)}, s71 offen offset:{1024*T} sc1')
a(f'buffer_store_dwordx4 {v(196,4)}, v13, {s(SRD_WS,4)}, s70 offen sc1')
a.label('L_nopack')
a('s_lshr_b32 s64, s6, 2')
a('s_lshl_b32 s64, s64, 7')
a('s_and_b32 s65, s6, 3')
a('s_lshl2_add_u32 s64, s65, s64')
a(f's_add_u32 s64, s64, {F_OFF+F2}')
a(f'v_lshl_add_u32 v{fl+4}, v0, 15, s64')
stamp(2)
a('s_mov_b64 exec, 1')
a('s_waitcnt vmcnt(0)')
a(f'ds_add_rtn_u32 v{fl+5}, v17, v1 offset:8')
a('s_waitcnt lgkmcnt(0)')
a(f'v_readfirstlane_b32 s64, v{fl+5}')
a('s_mov_b64 exec, 0xff')
a('s_cmp_lg_u32 s64, 1')
a('s_cbranch_scc1 L_noe2')
a(f'buffer_store_dword v{fl+1}, v{fl+4}, {s(SRD_WS,4)}, 0 offen sc0 sc1')
a.label('L_noe2')
a('s_mov_b64 exec, -1')
if CWAIT:
    a.label('L_spin_cw')
    a('s_sleep 2')
    a('ds_read_b32 v18, v17 offset:20')
    a('s_waitcnt lgkmcnt(0)')
    a('v_readfirstlane_b32 s64, v18')
    a('s_cmp_eq_u32 s64, 0')
    a('s_cbranch_scc1 L_spin_cw')
srd(SRD_B, S_WS, 2621440)
a('s_lshl1_add_u32 s60, s6, s3')
a('s_sub_u32 s60, s60, 2')
a('s_mul_i32 s60, s60, 14336')
a('v_mov_b64 v[4:5], -1')
a('v_mov_b64 v[6:7], -1')
for i in range(14):
    if i and i % 4 == 0:
        a('s_add_u32 s60, s60, 4096')
    a(f'buffer_store_dwordx4 v[4:7], v13, {s(SRD_B,4)}, s60 offen offset:{(i&3)*1024} sc1')
a.label('L_sidedone')
stamp(3)
a('s_setprio 0')
a('s_cmp_lg_u32 s14, s8')
a('s_cbranch_scc1 L_nogate')
for l in range(5):
    for h in range(2):
        for q in range(4):
            a(f'v_dot2c_f32_bf16 v{ga+q}, v{dD+8*l+4*h+q}, v{gw+4*(l+5*h)+q}')
a(f'v_add_f32 v{ga}, v{ga}, v{ga+1}')
a(f'v_add_f32 v{ga+2}, v{ga+2}, v{ga+3}')
a(f'v_add_f32 v{ga}, v{ga}, v{ga+2}')
a(f'v_add_f32_dpp v{ga}, v{ga}, v{ga} quad_perm:[1,0,3,2] row_mask:0xf bank_mask:0xf')
a(f'v_add_f32_dpp v{ga}, v{ga}, v{ga} quad_perm:[2,3,0,1] row_mask:0xf bank_mask:0xf')
a(f'v_add_f32_dpp v{ga}, v{ga}, v{ga} row_half_mirror row_mask:0xf bank_mask:0xf')
a(f'v_mul_f32 v{ga}, {hx(f2u(-math.log2(math.e)))}, v{ga}')
a(f'v_exp_f32 v{ga}, v{ga}')
a(f'v_add_f32 v{ga}, 1.0, v{ga}')
a(f'v_rcp_f32 v9, v{ga}')
a.label('L_nogate')
a(f'buffer_store_dword v9, v14, {s(SRD_WS,4)}, 0 offen sc1')
a('s_lshl_b32 s64, s6, 7')
a(f's_add_u32 s64, s64, {F_OFF}')
a(f'v_lshl_add_u32 v{fl}, v0, 15, s64')
my_nonce(sNon)
for pc in range(1, 5):
    a(f's_call_b64 s[60:61], L_p2setup{pc}')
a(f'v_mov_b32 v{fl+2}, {CNT}')
a('s_call_b64 s[60:61], L_arrive')
a('s_cmp_lg_u32 s3, 0')
a('s_cbranch_scc1 L_nop4')
a(f'buffer_load_dwordx4 {v(vPd,4)}, v{vW}, {s(SRD_WS,4)}, s79 offen sc1')
a.label('L_nop4')
poll2('d')
a('s_barrier')
stamp(4)
a('s_branch L_post9')
a.label('L_arrive')
a('s_mov_b64 exec, 1')
a('s_waitcnt vmcnt(0)')
a(f'ds_add_rtn_u32 v{fl+5}, v{fl+2}, v1 offset:28')
a('s_waitcnt lgkmcnt(0)')
a(f'v_readfirstlane_b32 s64, v{fl+5}')
a('s_mov_b64 exec, 0xff')
a('s_cmp_lg_u32 s64, 7')
a('s_cbranch_scc1 L_arr1')
a(f'buffer_store_dword v{fl+1}, v{fl}, {s(SRD_WS,4)}, 0 offen sc0 sc1')
a.label('L_arr1')
a('s_mov_b64 exec, -1')
a('s_setpc_b64 s[60:61]')

a.label('L_dc')
a.label('L_spin_b0')
a('ds_read_b32 v18, v16 offset:24')
a('s_waitcnt lgkmcnt(0)')
a('v_readfirstlane_b32 s64, v18')
a('s_cmp_ge_u32 s64, 8')
a('s_cbranch_scc0 L_spin_b0')
a('s_cmp_ge_u32 s22, 2')
a('s_cbranch_scc1 L_dc_end')
a('s_lshl_b32 s62, s7, 1')
a('s_add_u32 s62, s62, s4')
a('s_and_b32 s61, s62, 0xfc')
a('s_add_u32 s62, s62, s61')
a('s_lshl_b32 s61, s22, 2')
a('s_add_u32 s62, s62, s61')
a('s_mul_i32 s62, s62, 1536')
a('s_lshl_b32 s61, s23, 8')
a('s_add_u32 s62, s62, s61')
aF = [[96 + 8 * q + 4 * w for w in range(2)] for q in range(4)]


def a_reads(q, wrap):
    return [f'ds_read_b128 {v(aF[q][w],4)}, v{vF+q} offset:{w*20480+(1024 if wrap else 0)}' for w in range(2)]


for q in range(2):
    for x in a_reads(q, False):
        a(x)
for r_ in range(16):
    a(f's_add_u32 s{64+r_}, s62, {Z_OFF + (8*(r_>>2)+(r_&3))*98304}')
a('s_mov_b32 s61, 5')
stamp(4)
a('.p2align 3')
a.label('L_dloop')
for q in range(4):
    cur, nxt = pB[q & 1], pB[(q + 1) & 1]
    for x in a_reads((q + 2) & 3, q >= 2):
        a(x)
    a('s_waitcnt lgkmcnt(4)')
    if q == 0:
        a('s_sub_u32 s61, s61, 1')
    elif q == 1:
        a('s_cmp_lg_u32 s61, 0')
    else:
        a('s_nop 0')
    for g4 in range(4):
        w, tb = g4 >> 1, g4 & 1
        d = v(acc[w][tb], 16)
        a(f'{M32} {d}, {v(aF[q][w],4)}, {v(cur+4*tb,4)}, {d}')
        jj = 2 * g4
        (c0, s0), (c1, s1) = ((gc, gs), (hc, hs)) if q % 2 == 0 else ((hc, hs), (gc, gs))
        for x0, x1 in ((c0, c1), (s0, s1)):
            for e_ in range(2):
                a(f'v_fma_f32 v{x1+jj+e_}, v{gS}, v{x0+jj+e_}, -v{x1+jj+e_}')
        a(f'{cvt} v{nxt+g4}, v{c1+jj}, v{c1+jj+1}')
        a(f'{cvt} v{nxt+4+g4}, v{s1+jj}, v{s1+jj+1}')
for q in range(4):
    a(f'v_add_u32 v{vF+q}, 1024, v{vF+q}')
a('s_cbranch_scc1 L_dloop')
a.check_backedge('L_dloop')
stamp(6)
pk = [[128, 136], [144, 152]]
for w in range(2):
    for tb in range(2):
        for i in range(8):
            a(f'{cvt} v{pk[w][tb]+i}, v{acc[w][tb]+2*i}, v{acc[w][tb]+2*i+1}')


zo = 96


def z_cvt(w):
    return [f'{cvt} v{zo+2*r_+w}, v{acc[w][0]+r_}, v{acc[w][1]+r_}' for r_ in range(16)]


def z_st(va):
    return [f'buffer_store_dwordx2 {v(zo+2*r_,2)}, v{va}, {s(SRD_WS,4)}, s{64+r_} offen sc1' for r_ in range(16)]


a('s_waitcnt lgkmcnt(0)')
a('s_cmp_lg_u32 s25, 0')
a('s_cbranch_scc1 L_dc_nospec')
T = []
for w in range(2):
    Zr, Zi = acc[w]
    pb = pk[w][1]
    T += [f'{M32} {v(Zr,16)}, {v(cC,4)}, {v(pb,4)}, 0', f'{M32} {v(Zi,16)}, {v(cP,4)}, {v(pb,4)}, 0',
          f'{M32} {v(Zr,16)}, {v(cC+4,4)}, {v(pb+4,4)}, {v(Zr,16)}', f'{M32} {v(Zi,16)}, {v(cP+4,4)}, {v(pb+4,4)}, {v(Zi,16)}']
    T += [f'v_and_b32 v{pb+i}, v{t0+5}, v{pb+i}' for i in range(8)]
    T += z_cvt(w)
T += z_st(vZ + 1)
for x in schedule(T)[0]:
    a(x)
a('s_nop 1')
a.label('L_dc_nospec')
a('s_nop 1')
T = []
for w in range(2):
    Zr, Zi = acc[w]
    pa, pb = pk[w]
    T += [
        f'{M32} {v(Zr,16)}, {v(cC,4)}, {v(pa,4)}, 0',
        f'{M32} {v(Zi,16)}, {v(cP,4)}, {v(pa,4)}, 0',
        f'{M32} {v(Zr,16)}, {v(cC+4,4)}, {v(pa+4,4)}, {v(Zr,16)}',
        f'{M32} {v(Zi,16)}, {v(cP+4,4)}, {v(pa+4,4)}, {v(Zi,16)}',
        f'{M32} {v(Zr,16)}, {v(cN,4)}, {v(pb,4)}, {v(Zr,16)}',
        f'{M32} {v(Zi,16)}, {v(cC,4)}, {v(pb,4)}, {v(Zi,16)}',
        f'{M32} {v(Zr,16)}, {v(cN+4,4)}, {v(pb+4,4)}, {v(Zr,16)}',
        f'{M32} {v(Zi,16)}, {v(cC+4,4)}, {v(pb+4,4)}, {v(Zi,16)}',
    ]
M0_, M1_ = T[:8], T[8:]
for x in M0_ + M1_ + z_cvt(0) + interleave(z_cvt(1), z_st(vZ)):
    a(x)
stamp(9)
a.label('L_dc_end')
a(f'v_mov_b32 v{fl+1}, s{S_N}')
a(f'v_mov_b32 v{fl+2}, s{S_N+1}')
a(f'v_and_b32 v{fl+3}, 1, v0')
a(f'v_cmp_eq_u32 vcc, 1, v{fl+3}')
a('s_lshl_b32 s64, s6, 7')
a(f's_add_u32 s64, s64, {F_OFF}')
a(f'v_cndmask_b32 v{fl+1}, v{fl+1}, v{fl+2}, vcc')
a(f'v_add_u32 v{fl+1}, 1, v{fl+1}')
a(f'v_lshl_add_u32 v{fl}, v0, 15, s64')
a(f'v_mov_b32 v{fl+2}, {CNT}')
a('s_call_b64 s[60:61], L_arrive')
stamp(7)
a('s_barrier')
endpgm()

retry_stubs()
a.label('L_exit')
a.label('L_codeend')
a('s_endpgm')
if PROF:
    a.label('L_prof_end')
    a('s_waitcnt vmcnt(0)')
    a('s_memtime s[76:77]')
    a('s_memrealtime s[78:79]')
    a('s_waitcnt lgkmcnt(0)')
    a(f's_mov_b32 s72, s{S_WS}')
    a(f's_mov_b32 s73, s{S_WS+1}')
    a('s_mov_b32 s74, 0x1000000')
    a('s_mov_b32 s75, 0x20000')
    a('v_mov_b32 v2, s100')
    for i in range(1, NST):
        a(f's_sub_u32 s71, s{80+2*i}, s80')
        a(f's_cmp_eq_u32 s{80+2*i}, 0')
        a(f's_cselect_b32 s71, 0, s71')
        a(f'v_mov_b32 v{2+i}, s71')
    a('s_sub_u32 s76, s76, s80')
    a('v_mov_b32 v12, s76')
    a('v_mov_b32 v13, s78')
    a('s_lshl_b32 s71, s2, 3')
    a('s_add_u32 s71, s71, s3')
    a('s_lshl_b32 s71, s71, 6')
    a(f's_add_u32 s71, s71, {PROF_OFF}')
    a('v_mov_b32 v1, s71')
    a('buffer_store_dwordx4 v[2:5], v1, s[72:75], 0 offen')
    a('buffer_store_dwordx4 v[6:9], v1, s[72:75], 0 offen offset:16')
    a('buffer_store_dwordx4 v[10:13], v1, s[72:75], 0 offen offset:32')
    a('s_endpgm')

hdr = open('cdna_kernels/' + NAME + '.s.ref').read().split('; Override launch')[0]
out = hdr
out += f'; @launch grid=(256,1,1) block=(512,1,1) lds=163840\n'
out += '.amdgcn_target "amdgcn-amd-amdhsa--gfx950"\n.text\n'
if AL8:
    print('align8', a.align8())
out += a.text()
out += f'''.section .rodata,"a"
.p2align 6
.amdhsa_kernel {KN}
  .amdhsa_next_free_vgpr 256
  .amdhsa_next_free_sgpr 102
  .amdhsa_accum_offset 256
  .amdhsa_group_segment_fixed_size 0
  .amdhsa_kernarg_size 96
  .amdhsa_user_sgpr_count 2
  .amdhsa_user_sgpr_kernarg_segment_ptr 1
  .amdhsa_system_sgpr_workgroup_id_x 1
.end_amdhsa_kernel
'''
open(sys.argv[1], 'w').write(out)
print('wrote', sys.argv[1], 'lines', out.count('\n'), 'nops', a.nnop, 'qc vgpr', ra.hi, 'p2 vgpr', rk.hi)
```
